```python
import torch

def _softmax(x, axis=-1):
    return torch.softmax(x, dim=axis)

def _gelu(x):
    return torch.nn.functional.gelu(x, approximate='tanh')

def _silu(x):
    return torch.nn.functional.silu(x)

def _sigmoid(x):
    return torch.sigmoid(x)

def _layernorm(x, axis=-1, eps=1e-05):
    m = x.mean(dim=axis, keepdim=True)
    v = x.var(dim=axis, keepdim=True, unbiased=False)
    return (x - m) / torch.sqrt(v + eps)

def _scatter_add(tgt, idx, src, axis=0):
    return tgt.clone().index_add_(axis, idx, src)

def _segment_sum(src, seg, n):
    out = torch.zeros((n,) + src.shape[1:], dtype=src.dtype)
    return out.index_add_(0, seg, src)

def _pad(x, pw):
    flat = tuple((v for pair in reversed(pw) for v in pair))
    return torch.nn.functional.pad(x, flat)
kernel_name = 'recurrent_scan__mha_block__mixer_gmlp__prompt'

def setup_inputs():

    _w = lambda a: (lambda t: t.to(torch.bfloat16) if t.is_floating_point() else t)(torch.as_tensor(a))

    def _A_setup():
        B, S, D, H = (1, 2048, 576, 32)
        return {'x': _w((lambda *s: torch.randn(*s, dtype=torch.bfloat16) * 0.05)(B, S, D)), 'wqkv': _w((lambda *s: torch.randn(*s, dtype=torch.bfloat16) * 0.05)(D, 3 * D)), 'wo': _w((lambda *s: torch.randn(*s, dtype=torch.bfloat16) * 0.05)(D, D))}
    _A_in = _A_setup()

    def _B_setup():
        B, S, D, F = (1, 2048, 576, 4608)
        Fh = F // 2
        return {'x': _w((lambda *s: torch.randn(*s, dtype=torch.bfloat16) * 0.05)(B, S, D)), 'w_in': _w((lambda *s: torch.randn(*s, dtype=torch.bfloat16) * 1.6)(D, 2 * Fh)), 'w_sp': _w(0.01 * (lambda *s: torch.randn(*s, dtype=torch.bfloat16) * 1.6)(S, S)), 'b_sp': _w(1.0 + 0.01 * (lambda *s: torch.randn(*s, dtype=torch.bfloat16) * 0.05)(S)), 'w_out': _w((lambda *s: torch.randn(*s, dtype=torch.bfloat16) * 0.05)(Fh, D))}
    _B_in = _B_setup()
    return {'A_x': _A_in['x'], 'A_wqkv': _A_in['wqkv'], 'A_wo': _A_in['wo'], 'B_x': _B_in['x'], 'B_w_in': _B_in['w_in'], 'B_w_sp': _B_in['w_sp'], 'B_b_sp': _B_in['b_sp'], 'B_w_out': _B_in['w_out']}

def reference(A_x, A_wqkv, A_wo, B_x, B_w_in, B_w_sp, B_b_sp, B_w_out):

    def _A_ref(x, wqkv, wo):
        B, S, D = x.shape
        H = 32
        Dh = D // H
        qkv = (lambda x, *d: x.permute(*d))((x @ wqkv).reshape(B, S, 3, H, Dh), 2, 0, 3, 1, 4)
        q, k, v = (qkv[0], qkv[1], qkv[2])
        scores = torch.einsum('bhqd,bhkd->bhqk', q, k) * Dh ** (-0.5)
        p = _softmax(scores, axis=-1)
        o = torch.einsum('bhqk,bhkd->bhqd', p, v)
        return (lambda x, *d: x.permute(*d))(o, 0, 2, 1, 3).reshape(B, S, D) @ wo

    def _B_ref(x, w_in, w_sp, b_sp, w_out):
        B, S, D = x.shape
        F = w_in.shape[-1]
        Fh = F // 2
        z = _gelu(torch.einsum('bsd,df->bsf', x, w_in))
        z1 = z[..., :Fh].clone()
        z2 = _layernorm(z[..., Fh:], axis=-1)
        g = torch.einsum('ts,bsf->btf', w_sp, z2) + b_sp[None, :, None]
        return torch.einsum('bsf,fd->bsd', z1 * g, w_out)
    x = A_x
    xn = _layernorm(x, axis=-1)
    s = _A_ref(xn, A_wqkv, A_wo)
    g = _silu(_B_ref(xn, B_w_in, B_w_sp, B_b_sp, B_w_out))
    return x + s * g
```

```python
import re

TRANS = ("v_exp_f32", "v_rcp_f32", "v_rsq_f32", "v_sqrt_f32", "v_log_f32", "v_sin_f32", "v_cos_f32",
         "v_exp_f16", "v_rcp_f16", "v_rcp_iflag_f32")

_reg_re = re.compile(r"^(-|abs\(|neg\()?\|?([vas])(?:(\d+)|\[(\d+):(\d+)\])\|?\)?$")


def regs_of(op):
    op = op.strip()
    if op in ("vcc", "vcc_lo", "vcc_hi"):
        return {("vcc", 0)}
    if op in ("exec", "exec_lo", "exec_hi"):
        return {("exec", 0)}
    if op == "m0":
        return {("m0", 0)}
    m = _reg_re.match(op)
    if not m:
        return set()
    k = m.group(2)
    if m.group(3) is not None:
        return {(k, int(m.group(3)))}
    return {(k, i) for i in range(int(m.group(4)), int(m.group(5)) + 1)}


def split_ops(s):
    out, depth, cur = [], 0, ""
    for ch in s:
        if ch in "[(":
            depth += 1
        if ch in "])":
            depth -= 1
        if ch == "," and depth == 0:
            out.append(cur.strip()); cur = ""
        else:
            cur += ch
    if cur.strip():
        out.append(cur.strip())
    return out


class Ins:
    __slots__ = ("text", "mn", "kind", "rd", "wr", "srca", "srcb", "srcc", "passes", "states", "dpp",
                 "lds", "wide_store", "data", "target", "label", "sread")

    def __init__(self, text):
        self.text = text
        t = text.split(";")[0].strip()
        self.label = None
        self.target = None
        self.rd, self.wr = set(), set()
        self.srca = self.srcb = self.srcc = set()
        self.passes = 0
        self.states = 1
        self.dpp = False
        self.lds = False
        self.wide_store = False
        self.data = set()
        self.sread = set()
        if not t:
            self.mn, self.kind, self.states = "", "none", 0
            return
        if t.endswith(":"):
            self.mn, self.kind, self.states, self.label = "", "label", 0, t[:-1]
            return
        if t.startswith("."):
            self.mn, self.kind, self.states = "", "none", 0
            return
        parts = t.split(None, 1)
        mn = parts[0]
        rest = parts[1] if len(parts) > 1 else ""
        self.mn = mn
        ops = split_ops(rest)
        mods = ""
        if ops:
            last = ops[-1].split(None, 1)
            ops[-1] = last[0]
            mods = last[1] if len(last) > 1 else ""
        R = [regs_of(o) for o in ops]
        if mn == "s_nop":
            self.kind = "salu"; self.states = int(ops[0], 0) + 1
        elif mn.startswith("v_mfma"):
            self.kind = "mfma"
            self.wr = R[0]; self.srca = R[1]; self.srcb = R[2]; self.srcc = R[3]
            self.rd = R[1] | R[2] | R[3]
            self.passes = 8 if "32x32" in mn else 4
        elif mn.startswith("v_"):
            self.kind = "valu"
            self.dpp = "_dpp" in mn or "quad_perm" in mods or "row_" in mods
            if mn.startswith("v_cmp"):
                self.wr = R[0]; self.rd = set().union(*R[1:])
                if mn.startswith("v_cmpx"):
                    self.wr = self.wr | {("exec", 0)}
            elif mn.startswith("v_permlane") and "swap" in mn:
                self.wr = R[0] | R[1]; self.rd = R[0] | R[1]
            elif mn in ("v_add_co_u32", "v_sub_co_u32", "v_addc_co_u32", "v_subb_co_u32", "v_mad_u64_u32",
                        "v_add_co_u32_e32", "v_addc_co_u32_e32", "v_div_scale_f32"):
                self.wr = R[0] | R[1]; self.rd = set().union(*R[2:])
            elif mn == "v_nop":
                pass
            else:
                self.wr = R[0]; self.rd = set().union(*R[1:]) if len(R) > 1 else set()
                if mn.startswith(("v_fmac", "v_dot2c", "v_pk_fmac", "v_mac")) or self.dpp or "sdwa" in mn \
                        or mn.startswith("v_writelane"):
                    self.rd = self.rd | R[0]
        elif mn.startswith(("buffer_", "global_")):
            self.kind = "vmem"
            allmods = mods + " " + (ops[-1] if ops else "")
            self.lds = bool(re.search(r"\blds\b", mods)) or "load_lds" in mn
            if mn in ("buffer_inv", "buffer_wbl2"):
                pass
            elif "load" in mn:
                if self.lds:
                    self.rd = set().union(*R) | {("m0", 0)}
                else:
                    self.wr = R[0]; self.rd = set().union(*R[1:])
                    if "d16" in mn:
                        self.rd = self.rd | R[0]
            elif "store" in mn:
                self.rd = set().union(*R)
                self.data = R[0] if mn.startswith("buffer_") else R[1]
                self.wide_store = "x3" in mn or "x4" in mn
            elif "atomic" in mn:
                self.rd = set().union(*R)
                if re.search(r"\bsc0\b", mods):
                    self.wr = R[0]
        elif mn.startswith("ds_"):
            self.kind = "ds"
            if mn.startswith(("ds_read", "ds_bpermute", "ds_permute", "ds_swizzle")) or "_rtn" in mn:
                self.wr = R[0]; self.rd = set().union(*R[1:])
            else:
                self.rd = set().union(*R)
        elif mn.startswith(("s_load", "s_buffer_load", "s_memtime", "s_memrealtime")):
            self.kind = "smem"
            self.wr = R[0]; self.rd = set().union(*R[1:]) if len(R) > 1 else set()
        elif mn.startswith(("s_cbranch", "s_branch")):
            self.kind = "branch"; self.target = ops[0]
        elif mn.startswith("s_"):
            self.kind = "salu"
            if mn.startswith(("s_cmp", "s_waitcnt", "s_barrier", "s_endpgm", "s_setprio", "s_sleep", "s_bitcmp")):
                self.rd = set().union(*R) if R else set()
            else:
                self.wr = R[0] if R else set()
                self.rd = set().union(*R[1:]) if len(R) > 1 else set()
                if "saveexec" in mn:
                    self.wr = self.wr | {("exec", 0)}
        else:
            raise ValueError("unknown instruction: " + text)


def vec(s):
    return {r for r in s if r[0] in ("v", "a")}


def sca(s):
    return {r for r in s if r[0] in ("s", "vcc")}


def need(p, c):
    n = 0
    if p.kind == "valu":
        pw = vec(p.wr)
        if c.kind == "mfma" and pw & c.rd:
            n = max(n, 2)
        if c.kind == "valu":
            if p.mn in TRANS and pw & c.rd:
                n = max(n, 1)
            if c.mn.startswith(("v_readfirstlane", "v_readlane")) and pw & c.rd:
                n = max(n, 1)
            if c.mn.startswith("v_permlane") and pw & c.rd:
                n = max(n, 2)
            if c.dpp and pw & c.rd:
                n = max(n, 2)
            if "sdwa" in p.mn and pw & c.rd:
                n = max(n, 1)
        if c.kind in ("vmem", "ds") and p.mn in TRANS and pw & c.rd:
            n = max(n, 1)
        ps = sca(p.wr)
        if ps:
            crd = set(c.rd)
            if c.kind == "valu" and c.mn.startswith(("v_cndmask", "v_addc", "v_subb", "v_div_fmas")) and len(split_ops(c.text.split(None, 1)[1])) <= 4:
                crd |= {("vcc", 0)} if "vcc" in c.text else set()
            if c.kind == "vmem" and ps & crd:
                n = max(n, 5)
            if c.kind == "valu" and ps & crd:
                n = max(n, 4 if c.mn.startswith(("v_readlane", "v_writelane", "v_div_fmas")) else 2)
            if c.kind in ("salu", "smem") and ps & crd:
                n = max(n, 2)
            if c.kind == "branch" and ("vcc", 0) in ps and "vcc" in c.mn:
                n = max(n, 5)
        if ("exec", 0) in p.wr:
            if c.kind in ("valu", "mfma", "vmem", "ds"):
                n = max(n, 5)
    elif p.kind == "mfma":
        big = p.passes == 8
        if c.kind == "mfma":
            if p.wr & (c.srca | c.srcb):
                n = max(n, 12 if big else 8)
            if p.wr & c.srcc:
                if not (p.wr == c.srcc and p.mn == c.mn):
                    n = max(n, 10 if big else 6)
            elif p.wr & c.wr and p.mn != c.mn:
                n = max(n, 12 if big else 8)
        elif c.kind in ("valu", "vmem", "ds"):
            if p.wr & (c.rd | c.wr):
                n = max(n, 12 if big else 8)
            if c.kind == "valu" and p.srcc & c.wr:
                n = max(n, 7 if big else 3)
            if c.kind in ("vmem", "ds") and p.srcc & c.wr:
                n = max(n, 7 if big else 3)
    elif p.kind == "salu":
        if ("m0", 0) in p.wr and c.kind == "vmem" and c.lds:
            n = max(n, 1)
    elif p.kind == "vmem":
        if p.wide_store and p.data & vec(c.wr):
            n = max(n, 2 if c.kind in ("valu", "mfma") else 1)
    return n


MAXD = 13


def first_violation(hist, c):
    dist = 0
    miss = 0
    for p in reversed(hist):
        if dist >= MAXD:
            break
        if p.states == 0:
            continue
        k = need(p, c)
        if k > dist:
            miss = max(miss, k - dist)
        dist += p.states
    return miss


class Asm:
    def __init__(self):
        self.lines = []
        self.nlabel = 0

    def __call__(self, s):
        for ln in s.split("\n"):
            ln = ln.strip()
            if ln:
                self.lines.append(ln)

    def ext(self, lst):
        for s in lst:
            self(s)

    def label(self, name):
        self.lines.append(name + ":")

    def newlabel(self, base="L"):
        self.nlabel += 1
        return f"{base}_{self.nlabel}"

    def finish(self):
        ins = [Ins(t) for t in self.lines]
        out = []
        nins = 0
        for c in ins:
            if c.states:
                m = first_violation(out[-40:], c)
                if m:
                    out.append(Ins(f"s_nop {m-1}"))
                    nins += 1
            out.append(c)
        changed = True
        while changed:
            changed = False
            lab = {x.label: i for i, x in enumerate(out) if x.label}
            for b, x in enumerate(out):
                if x.kind != "branch":
                    continue
                t = lab[x.target]
                hist = out[max(0, b - 40):b + 1]
                seen = 0
                worst = 0
                j = t
                cur = list(hist)
                while j < len(out) and seen < MAXD:
                    c = out[j]
                    if c.states:
                        dist = seen
                        for p in reversed(hist):
                            if dist >= MAXD:
                                break
                            if p.states == 0:
                                continue
                            k = need(p, c)
                            if k > dist:
                                worst = max(worst, k - dist)
                            dist += p.states
                        seen += c.states
                        if c.mn in ("s_branch", "s_endpgm"):
                            break
                    j += 1
                if worst:
                    out.insert(b, Ins(f"s_nop {worst-1}"))
                    nins += 1
                    changed = True
                    break
        self.n_nops = nins
        res = []
        for x in out:
            res.append(x.text if x.kind == "label" or x.text.startswith(".") else "    " + x.text)
        return res


def interleave(main, fill, positions=None):
    out = []
    n = len(main)
    k = len(fill)
    j = 0
    for i, m in enumerate(main):
        out.append(m)
        tgt = (k * (i + 1) + n - 1) // n
        while j < tgt:
            out.append(fill[j]); j += 1
    return out
```

```python
from asmlib import Asm

S, D, H, DH, FH = 2048, 576, 32, 18, 2304
KA_X, KA_WQKV, KA_WO, KA_BX, KA_WIN, KA_WSP, KA_BSP, KA_WOUT, KA_OUT, KA_DBG, KA_WS = [8 * i for i in range(11)]
SZ_X = S * D * 2
SZ_WQKV = D * 3 * D * 2
SZ_WO = D * D * 2
SZ_WIN = D * 2 * FH * 2
SZ_WSP = S * S * 2
SZ_BSP = S * 2
SZ_WOUT = FH * D * 2
SZ_WS = 268435456
XF = 0x0000000
WB = 0x0300000
Z2 = 0x0600000
Z2N = 0x1000000
QF = 0x1A00000
KV = 0x1D00000
KMX = 0x2300000
UF = 0x2400000
OF = 0x2E00000
WS_USED = 0x3300000


def swap23(m):
    return (m & ~12) | ((m & 4) << 1) | ((m & 8) >> 1)


def srd(a, dst, ptr, nbytes):
    a(f"""
    s_mov_b32 s{dst}, s{ptr}
    s_and_b32 s{dst+1}, s{ptr+1}, 0xffff
    s_mov_b32 s{dst+2}, {nbytes}
    s_mov_b32 s{dst+3}, 0x00020000
    """)


class Kernel:
    def __init__(self, name, grid, block, lds, nvgpr, nagpr=0, nsgpr=96):
        self.name, self.grid, self.block, self.lds = name, grid, block, lds
        self.nvgpr, self.nagpr, self.nsgpr = nvgpr, nagpr, nsgpr
        self.a = Asm()

    def text(self):
        body = self.a.finish()
        return (f".globl {self.name}\n.p2align 8\n.type {self.name},@function\n{self.name}:\n"
                + "\n".join(body) + "\n")

    def desc(self):
        acc = (self.nvgpr + 3) // 4 * 4
        nfv = acc + self.nagpr if self.nagpr else self.nvgpr
        return f""".p2align 6
.amdhsa_kernel {self.name}
  .amdhsa_next_free_vgpr {nfv}
  .amdhsa_next_free_sgpr {self.nsgpr}
  .amdhsa_accum_offset {acc}
  .amdhsa_group_segment_fixed_size 0
  .amdhsa_kernarg_size 88
  .amdhsa_user_sgpr_count 2
  .amdhsa_user_sgpr_kernarg_segment_ptr 1
  .amdhsa_system_sgpr_workgroup_id_x 1
.end_amdhsa_kernel
"""


def reduce16(a, v, t, op="v_add_f32"):
    for mod in ("quad_perm:[1,0,3,2]", "quad_perm:[2,3,0,1]", "row_half_mirror", "row_mirror"):
        a(f"{op}_dpp v{v}, v{v}, v{v} {mod} row_mask:0xf bank_mask:0xf")


def reduce_x16(a, v, t, op="v_add_f32"):
    a(f"v_mov_b32 v{t}, v{v}")
    a(f"v_permlane16_swap_b32 v{v}, v{t}")
    a(f"{op} v{v}, v{v}, v{t}")


def reduce_x32(a, v, t, op="v_add_f32"):
    a(f"v_mov_b32 v{t}, v{v}")
    a(f"v_permlane32_swap_b32 v{v}, v{t}")
    a(f"{op} v{v}, v{v}, v{t}")


def round_bf16(a, v):
    a(f"v_cvt_pk_bf16_f32 v{v}, v{v}, v{v}")
    a(f"v_lshlrev_b32 v{v}, 16, v{v}")


def fbits(x):
    import struct
    return "0x%08x" % struct.unpack("<I", struct.pack("<f", x))[0]


class Waits:
    def __init__(self, a):
        self.a = a
        self.vm = []
        self.lg = []

    def ivm(self, text, tag=None):
        self.a(text); self.vm.append(tag)

    def ilg(self, text, tag=None):
        self.a(text); self.lg.append(tag)

    def _n(self, lst, tag):
        idx = [i for i, t in enumerate(lst) if t == tag]
        if not idx:
            return None
        return len(lst) - 1 - idx[-1]

    def wvm(self, tag):
        n = self._n(self.vm, tag)
        if n is None:
            return
        n = min(n, 63)
        self.a(f"s_waitcnt vmcnt({n})")
        self.vm = self.vm[len(self.vm) - n:] if n else []

    def wlg(self, tag):
        n = self._n(self.lg, tag)
        if n is None:
            return
        n = min(n, 15)
        self.a(f"s_waitcnt lgkmcnt({n})")
        self.lg = self.lg[len(self.lg) - n:] if n else []


import math
GC1 = -2.0 * math.log2(math.e) * math.sqrt(2.0 / math.pi)
GC2 = GC1 * 0.044715
QSCALE = math.log2(math.e) / math.sqrt(18.0)


def gelu_ops(x, t, sc1, sc2v):
    return [f"v_mul_f32 v{t}, v{x}, v{x}",
            f"v_fma_f32 v{t}, v{t}, v{sc2v}, s{sc1}",
            f"v_mul_f32 v{t}, v{t}, v{x}",
            f"v_exp_f32 v{t}, v{t}",
            f"v_add_f32 v{t}, 1.0, v{t}",
            f"v_rcp_f32 v{t}, v{t}",
            f"v_mul_f32 v{x}, v{x}, v{t}"]


def gelu_group(xs, temps, sc1, sc2v):
    seqs = [gelu_ops(x, t, sc1, sc2v) for x, t in zip(xs, temps)]
    out = []
    for step in range(7):
        for s in seqs:
            out.append(s[step])
    return out


import os
PROF = os.environ.get("PROF", "")
PROFOFF = 0x3100000


class Prof:
    def __init__(self, a, on, kidx=0, base=64):
        self.a, self.on, self.n, self.base, self.kidx = a, on, 2, base, kidx
        if on:
            a(f"s_memrealtime s[{base}:{base+1}]")

    def stamp(self):
        if not self.on:
            return
        self.a(f"s_memtime s[{self.base+2*self.n}:{self.base+2*self.n+1}]")
        self.n += 1

    def dump(self, sws, waves, swg="s2", vt=1):
        if not self.on:
            return
        a = self.a
        a("s_mov_b64 exec, -1")
        a("s_waitcnt vmcnt(0)")
        self.stamp()
        a(f"s_memrealtime s[{self.base+2}:{self.base+3}]")
        a(f"v_lshrrev_b32 v{vt}, 6, v0")
        a(f"v_lshlrev_b32 v{vt}, 6, v{vt}")
        a("s_waitcnt lgkmcnt(0)")
        a("s_mov_b64 exec, 1")
        a(f"s_mul_i32 s{self.base-2}, {swg}, {waves*64}")
        a(f"s_add_u32 s{self.base-2}, s{self.base-2}, {PROFOFF + self.kidx*0x28000}")
        for i in range(self.n):
            a(f"v_mov_b32 v{vt+1}, s{self.base+2*i}")
            a(f"buffer_store_dword v{vt+1}, v{vt}, s[{sws}:{sws+3}], s{self.base-2} offen offset:{4*i}")
            a("s_nop 1")
```

```python
from common import *

def ln_finish(a, f, n, vmean, vvar, t, pk):
    round_bf16(a, vmean)
    round_bf16(a, vvar)
    a(f"v_add_f32 v{vvar}, {fbits(1e-5)}, v{vvar}")
    round_bf16(a, vvar)
    a(f"v_sqrt_f32 v{vvar}, v{vvar}")
    round_bf16(a, vvar)
    a(f"v_rcp_f32 v{vvar}, v{vvar}")
    for i in range(n):
        a(f"v_sub_f32 v{f+i}, v{f+i}, v{vmean}")
    for i in range(n // 2):
        a(f"v_cvt_pk_bf16_f32 v{pk+i}, v{f+2*i}, v{f+2*i+1}")
    for i in range(n // 2):
        a(f"v_lshlrev_b32 v{f+2*i}, 16, v{pk+i}")
        a(f"v_and_b32 v{f+2*i+1}, 0xffff0000, v{pk+i}")
    for i in range(n):
        a(f"v_mul_f32 v{f+i}, v{f+i}, v{vvar}")
    for i in range(n // 2):
        a(f"v_cvt_pk_bf16_f32 v{pk+i}, v{f+2*i}, v{f+2*i+1}")


def build_k0():
    NLN, NWB = 256, 288
    k = Kernel("k0_prep_kernel", NLN + NWB, 256, 0, 64)
    a = k.a
    pf = Prof(a, bool(PROF), 0)
    pf.stamp()
    a(f"""
    s_cmp_ge_u32 s2, {NLN+NWB}
    s_cbranch_scc1 K0_END
    s_load_dwordx4 s[4:7], s[0:1], {KA_X}
    s_load_dwordx2 s[24:25], s[0:1], {KA_WIN}
    s_load_dwordx2 s[26:27], s[0:1], {KA_WS}
    v_and_b32 v1, 63, v0
    v_lshrrev_b32 v2, 6, v0
    s_waitcnt lgkmcnt(0)
    """)
    srd(a, 8, 4, SZ_X)
    srd(a, 12, 6, SZ_WQKV)
    srd(a, 16, 24, SZ_WIN)
    srd(a, 20, 26, WS_USED)
    a(f"""
    s_cmp_ge_u32 s2, {NLN}
    s_cbranch_scc1 K0_WB
    v_lshrrev_b32 v3, 5, v1
    v_lshl_add_u32 v3, v2, 1, v3
    s_lshl_b32 s28, s2, 3
    v_add_u32 v3, s28, v3            ; row
    v_and_b32 v4, 31, v1             ; c0
    v_mul_u32_u24 v5, 1152, v3
    v_lshl_add_u32 v5, v4, 4, v5
    """)
    for i in range(12):
        a(f"v_mov_b32 v{8+i}, 0")
    a(f"""
    s_mov_b32 s30, 0x00ffffff
    s_mov_b32 s31, 0x00ffffff
    s_mov_b64 exec, s[30:31]
    buffer_load_dwordx4 v[8:11], v5, s[8:11], 0 offen
    buffer_load_dwordx4 v[12:15], v5, s[8:11], 0 offen offset:384
    buffer_load_dwordx4 v[16:19], v5, s[8:11], 0 offen offset:768
    s_mov_b64 exec, -1
    v_lshrrev_b32 v6, 5, v3
    v_mul_u32_u24 v6, 36, v6
    v_lshrrev_b32 v7, 1, v4
    v_add_u32 v6, v6, v7
    v_lshlrev_b32 v6, 10, v6
    v_and_b32 v7, 1, v4
    v_lshlrev_b32 v7, 5, v7
    v_and_b32 v20, 31, v3
    v_add_u32 v7, v7, v20
    v_lshl_add_u32 v6, v7, 4, v6
    s_waitcnt vmcnt(0)
    """)
    F = 24
    for i in range(12):
        a(f"v_lshlrev_b32 v{F+2*i}, 16, v{8+i}")
        a(f"v_and_b32 v{F+2*i+1}, 0xffff0000, v{8+i}")
    a(f"v_add_f32 v50, v{F}, v{F+1}")
    a(f"v_add_f32 v51, v{F+2}, v{F+3}")
    for i in range(4, 24, 2):
        a(f"v_add_f32 v50, v50, v{F+i}")
        a(f"v_add_f32 v51, v51, v{F+i+1}")
    a("v_add_f32 v50, v50, v51")
    reduce16(a, 50, 52)
    reduce_x16(a, 50, 52)
    a(f"v_mul_f32 v50, {fbits(1.0/576)}, v50")
    a("v_mov_b32 v51, 0\nv_mov_b32 v53, 0\ns_mov_b64 exec, s[30:31]")
    for i in range(24):
        a(f"v_sub_f32 v52, v{F+i}, v50")
        a(f"v_fmac_f32 v{51 if i % 2 == 0 else 53}, v52, v52")
    a("s_mov_b64 exec, -1\nv_add_f32 v51, v51, v53")
    reduce16(a, 51, 52)
    reduce_x16(a, 51, 52)
    a(f"v_mul_f32 v51, {fbits(1.0/576)}, v51")
    ln_finish(a, F, 24, 50, 51, 52, 8)
    a(f"""
    s_mov_b64 exec, s[30:31]
    s_mov_b32 s32, {XF}
    s_mov_b32 s33, {XF + 12*1024}
    s_mov_b32 s34, {XF + 24*1024}
    buffer_store_dwordx4 v[8:11], v6, s[20:23], s32 offen
    buffer_store_dwordx4 v[12:15], v6, s[20:23], s33 offen
    buffer_store_dwordx4 v[16:19], v6, s[20:23], s34 offen
    """)
    pf.dump(20, 4)
    pf.n -= 1
    a("s_endpgm")
    a.label("K0_WB")
    a(f"""
    s_sub_u32 s28, s2, {NLN}          ; j in 0..287
    s_mul_i32 s29, s28, 3641          ; j/18 = (j*3641)>>16 for j<288
    s_lshr_b32 s29, s29, 16           ; g
    s_mul_i32 s30, s29, 18
    s_sub_u32 s30, s28, s30
    v_readfirstlane_b32 s31, v2       ; T = wave
    v_and_b32 v3, 31, v1              ; m
    v_lshrrev_b32 v4, 5, v1           ; h
    v_and_b32 v5, 19, v3
    v_and_b32 v6, 4, v3
    v_lshlrev_b32 v6, 1, v6
    v_or_b32 v5, v5, v6
    v_and_b32 v6, 8, v3
    v_lshrrev_b32 v6, 1, v6
    v_or_b32 v5, v5, v6               ; phi
    s_lshl_b32 s32, s30, 5
    v_lshlrev_b32 v6, 3, v4
    v_add_u32 v6, s32, v6             ; k row
    s_mul_i32 s33, s29, 36            ; 36 g
    """)
    for i in range(16):
        a(f"v_mov_b32 v{16+i}, 0")
    a(f"""
    s_cmp_eq_u32 s31, 3
    s_cbranch_scc1 K0_WB3
    s_mul_i32 s34, s31, 576
    s_add_u32 s34, s34, s33
    v_lshrrev_b32 v7, 4, v5
    v_mul_u32_u24 v7, 18, v7
    v_and_b32 v8, 15, v5
    v_add3_u32 v7, v7, v8, s34
    s_branch K0_WBQ
    K0_WB3:
    v_cmp_gt_u32 vcc, 16, v5
    s_and_saveexec_b64 s[36:37], vcc
    s_mul_i32 s34, s29, 144
    s_add_u32 s34, s34, {FH+128}
    v_add_u32 v7, s34, v5
    v_mul_u32_u24 v9, {2*FH}, v6
    v_add_lshl_u32 v9, v9, v7, 1
    """)
    for ks in range(2):
        for j in range(8):
            r = 16 * ks + j
            a(f"s_mov_b32 s38, {r * 2 * FH * 2}")
            a(f"buffer_load_ushort v{(24 if j % 2 else 16)+4*ks+j//2}, v9, s[16:19], s38 offen")
    a(f"""
    s_mov_b64 exec, s[36:37]
    v_subrev_u32 v8, 16, v5
    v_lshrrev_b32 v10, 3, v8
    v_bfe_u32 v11, v8, 1, 2           ; sigma
    v_and_b32 v12, 1, v8              ; d
    v_mul_u32_u24 v7, 576, v11
    v_mul_u32_u24 v10, 18, v10
    v_add3_u32 v7, v7, v10, v12
    v_add3_u32 v7, v7, s33, 16
    v_cmp_le_u32 vcc, 16, v5
    v_cmp_ne_u32 s[38:39], 3, v11
    s_and_b64 vcc, vcc, s[38:39]
    s_mov_b64 exec, vcc
    K0_WBQ:
    v_mul_u32_u24 v9, {3*D}, v6
    v_add_lshl_u32 v9, v9, v7, 1
    """)
    for ks in range(2):
        for j in range(8):
            r = 16 * ks + j
            a(f"s_mov_b32 s38, {r * 3 * D * 2}")
            a(f"buffer_load_ushort v{(24 if j % 2 else 16)+4*ks+j//2}, v9, s[12:15], s38 offen")
    a(f"""
    s_mov_b64 exec, -1
    s_lshl_b32 s34, s30, 1
    s_add_u32 s34, s34, s33
    s_lshl_b32 s34, s34, 2
    s_add_u32 s34, s34, s31
    s_lshl_b32 s34, s34, 10
    s_add_u32 s34, s34, {WB}
    s_add_u32 s35, s34, 4096
    v_lshlrev_b32 v9, 4, v1
    s_waitcnt vmcnt(0)
    v_lshl_or_b32 v16, v24, 16, v16
    v_lshl_or_b32 v17, v25, 16, v17
    v_lshl_or_b32 v18, v26, 16, v18
    v_lshl_or_b32 v19, v27, 16, v19
    v_lshl_or_b32 v20, v28, 16, v20
    v_lshl_or_b32 v21, v29, 16, v21
    v_lshl_or_b32 v22, v30, 16, v22
    v_lshl_or_b32 v23, v31, 16, v23
    buffer_store_dwordx4 v[16:19], v9, s[20:23], s34 offen
    buffer_store_dwordx4 v[20:23], v9, s[20:23], s35 offen
    """)
    pf.dump(20, 4)
    a("""
    K0_END:
    s_endpgm
    """)
    return k


def build_ln2():
    k = Kernel("k1b_ln2_kernel", 256, 256, 4 * 1024 + 512, 128)
    a = k.a
    pf = Prof(a, bool(PROF), 2)
    pf.stamp()
    a(f"""
    s_cmp_ge_u32 s2, 256
    s_cbranch_scc1 LN2_END
    s_load_dwordx2 s[26:27], s[0:1], {KA_WS}
    s_waitcnt lgkmcnt(0)
    """)
    srd(a, 20, 26, WS_USED)
    ln2_body(a, "s2", 20, 0)
    pf.dump(20, 4)
    a("LN2_END:\ns_endpgm")
    return k


def ln2_body(a, sG, sws, ldsbase, sc=""):
    F = 48
    P = 8
    a(f"""
    v_and_b32 v1, 63, v0
    v_lshrrev_b32 v2, 6, v0
    s_mul_i32 s28, {sG}, 36864
    s_add_u32 s28, s28, {Z2}
    v_lshlrev_b32 v3, 4, v0
    """)
    for i in range(9):
        a(f"buffer_load_dwordx4 v[{P+4*i}:{P+4*i+3}], v3, s[{sws}:{sws+3}], s28 offen")
        if i < 8:
            a("s_add_u32 s28, s28, 4096")
    a(f"""
    v_and_b32 v4, 7, v1
    v_lshl_add_u32 v5, v4, 2, v2
    v_lshlrev_b32 v5, 3, v5
    v_add_u32 v5, {ldsbase+4096}, v5
    v_lshlrev_b32 v6, 5, v4
    v_add_u32 v6, {ldsbase+4096}, v6
    v_add_u32 v7, {ldsbase}, v3
    v_lshrrev_b32 v44, 4, v1
    v_and_b32 v45, 1, v1
    v_lshl_add_u32 v44, v44, 1, v45
    v_lshlrev_b32 v44, 7, v44
    v_bfe_u32 v45, v1, 2, 2
    v_lshl_add_u32 v44, v45, 4, v44
    v_bfe_u32 v45, v1, 1, 1
    v_lshl_add_u32 v44, v45, 3, v44
    v_lshl_add_u32 v44, v2, 10, v44
    v_add_u32 v44, {ldsbase}, v44
    v_lshrrev_b32 v45, 5, v1
    v_lshl_add_u32 v45, v2, 1, v45
    v_lshlrev_b32 v45, 17, v45
    v_and_b32 v46, 31, v1
    v_lshl_add_u32 v45, v46, 4, v45
    s_lshl_b32 s29, {sG}, 9
    s_add_u32 s29, s29, {Z2N}
    """)
    for i in range(9):
        a(f"s_waitcnt vmcnt({8-i})")
        for j in range(4):
            a(f"v_lshlrev_b32 v{F+8*i+2*j}, 16, v{P+4*i+j}")
            a(f"v_and_b32 v{F+8*i+2*j+1}, 0xffff0000, v{P+4*i+j}")
        for j in range(8):
            if i == 0 and j < 2:
                a(f"v_mov_b32 v{120+j}, v{F+j}")
            else:
                a(f"v_add_f32 v{120+j%2}, v{120+j%2}, v{F+8*i+j}")
    a("v_add_f32 v120, v120, v121")

    def red8(v):
        a(f"v_add_f32_dpp v{v}, v{v}, v{v} row_ror:8 row_mask:0xf bank_mask:0xf")
        reduce_x16(a, v, 123)
        reduce_x32(a, v, 123)
    red8(120)
    a(f"v_mul_f32 v120, {fbits(1.0/576)}, v120")
    a("v_mov_b32 v121, 0\nv_mov_b32 v122, 0")
    for i in range(72):
        a(f"v_sub_f32 v{124+i%2}, v{F+i}, v120")
        a(f"v_fmac_f32 v{121+i%2}, v{124+i%2}, v{124+i%2}")
    a("v_add_f32 v121, v121, v122")
    red8(121)
    a(f"""
    ds_write_b64 v5, v[120:121]
    s_waitcnt lgkmcnt(0)
    s_barrier
    ds_read_b128 v[120:123], v6
    ds_read_b128 v[124:127], v6 offset:16
    s_waitcnt lgkmcnt(0)
    ; means: v120,v122,v124,v126 ; M2: v121,v123,v125,v127
    v_add_f32 v46, v120, v122
    v_add_f32 v47, v124, v126
    v_add_f32 v46, v46, v47
    v_mul_f32 v46, 0.25, v46          ; mean
    v_add_f32 v47, v121, v123
    v_add_f32 v47, v47, v125
    v_add_f32 v47, v47, v127
    v_sub_f32 v120, v120, v46
    v_sub_f32 v122, v122, v46
    v_sub_f32 v124, v124, v46
    v_sub_f32 v126, v126, v46
    v_mul_f32 v120, v120, v120
    v_fmac_f32 v120, v122, v122
    v_fmac_f32 v120, v124, v124
    v_fmac_f32 v120, v126, v126
    v_fmac_f32 v47, 0x44100000, v120  ; + 576 * sum(d^2)
    v_mul_f32 v47, {fbits(1.0/2304)}, v47
    """)
    ln_finish(a, F, 72, 46, 47, 120, P)
    for i in range(9):
        a(f"ds_write_b128 v7, v[{P+4*i}:{P+4*i+3}]")
        d = F + 4 * i
        a(f"ds_read_b64_tr_b16 v[{d}:{d+1}], v44")
        a(f"ds_read_b64_tr_b16 v[{d+2}:{d+3}], v44 offset:64")
    for i in range(9):
        d = F + 4 * i
        a(f"s_waitcnt lgkmcnt({min(15, 3*(8-i))})")
        a(f"buffer_store_dwordx4 v[{d}:{d+3}], v45, s[{sws}:{sws+3}], s29 offen{sc}")
        if i < 8:
            a(f"s_add_u32 s29, s29, {8*128*1024}")
```

```python
from common import *

def build_k1():
    NSLOT = 18
    k = Kernel("k1_gemm1_kernel", 256, 256, NSLOT * 8192, 256, nagpr=144)
    a = k.a
    w = Waits(a)
    pf = Prof(a, bool(PROF), 1)
    ACCA, ACCB, WF, TMP = 16, 80, 144, 192
    a(f"""
    s_cmp_ge_u32 s2, 256
    s_cbranch_scc1 K1_END
    s_load_dwordx2 s[24:25], s[0:1], {KA_WIN}
    s_load_dwordx2 s[26:27], s[0:1], {KA_WS}
    v_and_b32 v1, 63, v0              ; lane
    v_lshrrev_b32 v2, 6, v0           ; wave
    s_and_b32 s28, s2, 7
    s_lshr_b32 s29, s2, 3
    s_and_b32 s30, s28, 1
    s_lshl_b32 s30, s30, 3
    s_and_b32 s31, s29, 7
    s_add_u32 s30, s30, s31           ; rb
    s_lshr_b32 s31, s28, 1
    s_lshl_b32 s31, s31, 2
    s_lshr_b32 s32, s29, 3
    s_add_u32 s31, s31, s32           ; g
    v_readfirstlane_b32 s32, v2       ; wave
    s_lshl_b32 s33, s30, 2
    s_add_u32 s33, s33, s32
    v_lshlrev_b32 v3, 4, v1           ; lane*16
    s_mul_i32 s34, s33, {36*1024}
    s_add_u32 s34, s34, {XF}
    v_lshrrev_b32 v4, 4, v1
    v_and_b32 v5, 15, v1
    v_lshlrev_b32 v6, 2, v4
    v_xor_b32 v5, v5, v6
    v_lshl_add_u32 v4, v2, 3, v4
    v_mul_u32_u24 v4, {2*FH*2}, v4
    v_lshl_add_u32 v4, v5, 4, v4
    s_mul_i32 s35, s31, 288
    s_add_u32 s35, s35, {FH*2}
    s_lshl_b32 s36, s32, 11
    s_mul_i32 s37, s31, {36*4096}
    s_add_u32 s37, s37, {WB}
    s_add_u32 s37, s37, s36
    v_lshrrev_b32 v5, 5, v1
    v_bfe_u32 v6, v1, 2, 2            ; r
    v_lshl_add_u32 v5, v5, 3, v6
    v_lshlrev_b32 v5, 8, v5
    v_bfe_u32 v7, v1, 4, 1
    v_lshl_add_u32 v5, v7, 5, v5
    v_and_b32 v7, 1, v1
    v_lshl_add_u32 v5, v7, 4, v5
    v_bfe_u32 v7, v1, 1, 1
    v_lshl_add_u32 v5, v7, 3, v5
    """)
    for T in range(4):
        a(f"v_xor_b32 v7, {T}, v6\nv_lshl_add_u32 v{8+T}, v7, 6, v5")
    a("s_waitcnt lgkmcnt(0)")
    srd(a, 16, 24, SZ_WIN)
    srd(a, 20, 26, WS_USED)

    def issue_A(p):
        for i in range(4):
            ks = 4 * p + i
            w.ivm(f"buffer_load_dwordx4 a[{4*ks}:{4*ks+3}], v3, s[20:23], s34 offen offset:{1024*i}", ("P", p))
        a("s_add_u32 s34, s34, 4096")
        for st in range(2):
            for hf in range(2):
                a(f"s_add_u32 m0, s36, {(2*p+st)*8192 + hf*1024}")
                w.ivm(f"buffer_load_dwordx4 v4, s[16:19], s35 offen lds", ("P", p))
                a(f"s_add_u32 s35, s35, {(4 if hf == 0 else 28) * 2*FH*2}")

    def issue_B_ops(q):
        ops = []
        for st in range(2):
            def f(st=st):
                a(f"s_add_u32 m0, s36, {(2*q+st)*8192}")
                w.ivm(f"buffer_load_dwordx4 v3, s[20:23], s37 offen lds", ("P", 9 + q))
                w.ivm(f"buffer_load_dwordx4 v3, s[20:23], s37 offen offset:1024 lds", ("P", 9 + q))
                a("s_add_u32 s37, s37, 8192")
            ops.append(f)
        return ops

    pf.stamp()
    for p in range(7):
        issue_A(p)
    pf.stamp()
    a(f"""
    s_mov_b32 s40, {fbits(GC1)}
    v_mov_b32 v15, {fbits(GC2)}
    v_bfe_u32 v12, v1, 3, 2
    v_mul_u32_u24 v12, 36864, v12
    v_and_b32 v7, 7, v1
    v_lshl_add_u32 v12, v7, 4, v12
    v_lshrrev_b32 v7, 5, v1
    v_lshl_add_u32 v12, v7, 7, v12
    s_mul_i32 s41, s33, {4*36864}
    s_mul_i32 s42, s31, {18*128}
    s_add_u32 s41, s41, s42
    s_add_u32 s41, s41, {Z2}
    """)
    a("v_mov_b32 v13, v3")

    trbump = [0]
    bbump = [0]

    def reads(t):
        fs = WF + 16 * (t % 3)
        out = []
        if t < 36:
            off = (t // 2) * 8192 + (t % 2) * 4096
            if off - trbump[0] >= 65536:
                def bump():
                    for T in range(4):
                        a(f"v_add_u32 v{8+T}, 0x10000, v{8+T}")
                out.append(bump)
                trbump[0] += 65536
            o = off - trbump[0]
            for T in range(4):
                for i in range(2):
                    out.append(lambda T=T, i=i, o=o: w.ilg(
                        f"ds_read_b64_tr_b16 v[{fs+4*T+2*i}:{fs+4*T+2*i+1}], v{8+T} offset:{o + i*1024}", (t, T)))
        else:
            off = (t - 36) * 4096
            if off - bbump[0] >= 65536:
                out.append(lambda: a("v_add_u32 v13, 0x10000, v13"))
                bbump[0] += 65536
            o = off - bbump[0]
            for T in range(4):
                out.append(lambda T=T, o=o: w.ilg(
                    f"ds_read_b128 v[{fs+4*T}:{fs+4*T+3}], v13 offset:{o + T*1024}", (t, T)))
        return out

    def phase_sync(p):
        w.wvm(("P", p))
        a("s_barrier")

    epi = []
    for T in range(4):
        for hf in range(2):
            base = ACCA + 16 * T + 8 * hf
            xs = list(range(base, base + 8))
            tm = [TMP + 8 * ((2 * T + hf) % 2) + i for i in range(8)]
            for s in gelu_group(xs, tm, 40, 15):
                epi.append(lambda s=s: a(s))
            pk = TMP + 16 + 4 * ((2 * T + hf) % 4)
            for i in range(4):
                epi.append(lambda i=i, pk=pk, base=base: a(f"v_cvt_pk_bf16_f32 v{pk+i}, v{base+2*i}, v{base+2*i+1}"))
            epi.append(lambda pk=pk, T=T, hf=hf: w.ivm(
                f"buffer_store_dwordx4 v[{pk}:{pk+3}], v12, s[20:23], s41 offen offset:{(4*T+2*hf)*128}", "st"))
    epi_pos = [0]

    phase_sync(0)
    pf.stamp()
    for f in reads(0) + reads(1):
        f()
    for t in range(72):
        extra = []
        if t in (12, 24, 36, 48, 60):
            pf.stamp()
        tn = t + 2
        if tn < 72 and tn % 4 == 0:
            p = tn // 4
            phase_sync(p)
            if p in (1, 2):
                extra.append(lambda p=p: issue_A(6 + p))
            q = p - 2
            if 0 <= q < 9:
                extra += issue_B_ops(q)
        rd = reads(tn) if tn < 72 else []
        fs = WF + 16 * (t % 3)
        acc = ACCA if t < 36 else ACCB
        ks = t % 36
        nrd = len(rd)
        for T in range(4):
            w.wlg((t, T))
            c = "0" if ks == 0 else f"v[{acc+16*T}:{acc+16*T+15}]"
            a(f"v_mfma_f32_32x32x16_bf16 v[{acc+16*T}:{acc+16*T+15}], v[{fs+4*T}:{fs+4*T+3}], a[{4*ks}:{4*ks+3}], {c}")
            for f in rd[(nrd * T) // 4:(nrd * (T + 1)) // 4]:
                f()
            if extra:
                extra.pop(0)()
            if t >= 37:
                tgt = (len(epi) * ((t - 37) * 4 + T + 1) + 139) // 140
                while epi_pos[0] < min(tgt, len(epi)):
                    epi[epi_pos[0]]()
                    epi_pos[0] += 1
        for f in extra:
            f()
    assert epi_pos[0] == len(epi)

    pf.stamp()
    Q, K, V, M = ACCB, ACCB + 16, ACCB + 32, ACCB + 48
    a(f"""
    s_lshl_b32 s42, s31, 7
    s_add_u32 s42, s42, s33           ; 2g*64 + rt
    s_mul_i32 s43, s42, 1152
    s_add_u32 s43, s43, {QF}
    s_add_u32 s44, s43, {64*1152}
    s_mul_i32 s45, s42, 2560
    s_add_u32 s45, s45, {KV}
    s_add_u32 s46, s45, {64*2560}
    s_mov_b32 s47, {fbits(QSCALE)}
    v_lshrrev_b32 v7, 5, v1           ; h
    v_and_b32 v6, 31, v1              ; s
    v_mul_u32_u24 v8, {64*1152}, v7
    v_lshl_add_u32 v8, v6, 2, v8
    v_mul_u32_u24 v9, {64*2560}, v7
    v_lshl_add_u32 v9, v6, 4, v9
    v_lshlrev_b32 v10, 8, v7
    s_lshl_b32 s48, s42, 2
    s_add_u32 s48, s48, {KMX}
    """)
    pk = TMP
    for i in range(16):
        a(f"v_mul_f32 v{Q+i}, s47, v{Q+i}")
    for i in range(8):
        a(f"v_cvt_pk_bf16_f32 v{pk+i}, v{Q+2*i}, v{Q+2*i+1}")
    a(f"buffer_store_dwordx4 v[{pk}:{pk+3}], v3, s[20:23], s43 offen")
    a(f"buffer_store_dwordx4 v[{pk+4}:{pk+7}], v3, s[20:23], s44 offen")
    pk = TMP + 8
    for i in range(8):
        a(f"v_cvt_pk_bf16_f32 v{pk+i}, v{K+2*i}, v{K+2*i+1}")
    a(f"buffer_store_dwordx4 v[{pk}:{pk+3}], v3, s[20:23], s45 offen")
    a(f"buffer_store_dwordx4 v[{pk+4}:{pk+7}], v3, s[20:23], s46 offen")
    pk = TMP + 32
    for i in range(8):
        a(f"v_cvt_pk_bf16_f32 v{pk+i}, v{V+2*i}, v{V+2*i+1}")
    a(f"buffer_store_dwordx4 v[{pk}:{pk+3}], v3, s[20:23], s45 offen offset:1024")
    a(f"buffer_store_dwordx4 v[{pk+4}:{pk+7}], v3, s[20:23], s46 offen offset:1024")
    pk = TMP + 40
    a(f"""
    v_mul_f32 v{M+8}, s47, v{M+8}
    v_mul_f32 v{M+9}, s47, v{M+9}
    v_cvt_pk_bf16_f32 v{pk+4}, v{M+8}, v{M+9}
    v_cvt_pk_bf16_f32 v{pk}, v{M+10}, v{M+11}
    v_mov_b32 v{pk+1}, 0x3f803f80
    v_cvt_pk_bf16_f32 v{pk+2}, v{M+12}, v{M+13}
    v_mov_b32 v{pk+3}, 0x00003f80
    buffer_store_dword v{pk+4}, v8, s[20:23], s43 offen offset:1024
    buffer_store_dwordx4 v[{pk}:{pk+3}], v9, s[20:23], s45 offen offset:2048
    """)
    for s in gelu_group(list(range(M, M + 8)), [TMP + 48 + i for i in range(8)], 40, 15):
        a(s)
    pk = TMP + 56
    for i in range(4):
        a(f"v_cvt_pk_bf16_f32 v{pk+i}, v{M+2*i}, v{M+2*i+1}")
    a(f"buffer_store_dwordx4 v[{pk}:{pk+3}], v12, s[20:23], s41 offen offset:{16*128}")
    a(f"v_mul_f32 v16, v{K}, v{K}\nv_mul_f32 v17, v{K+8}, v{K+8}")
    for i in range(1, 8):
        a(f"v_fmac_f32 v16, v{K+i}, v{K+i}\nv_fmac_f32 v17, v{K+8+i}, v{K+8+i}")
    a(f"""
    v_permlane32_swap_b32 v16, v17
    v_add_f32 v16, v16, v17
    v_fmac_f32 v16, v{M+10}, v{M+10}
    v_fmac_f32 v16, v{M+11}, v{M+11}
    """)
    reduce16(a, 16, 17, "v_max_f32")
    reduce_x16(a, 16, 17, "v_max_f32")
    a(f"""
    s_mov_b32 exec_lo, 1
    s_mov_b32 exec_hi, 1
    buffer_store_dword v16, v10, s[20:23], s48 offen
    """)
    pf.stamp()
    pf.dump(20, 4)
    a("""
    K1_END:
    s_endpgm
    """)
    return k
```

```python
from common import *

CH = 20480
NSL = 4

def attn_body(a, pf, sid, sws, L="AT"):
    SA, SB, OA, OB = 16, 32, 48, 64
    PA, PB = 80, 88
    QMA, QMB, QTA, QTB = 96, 100, 104, 108
    KM = [112, 116]; KT = [120, 124]
    VV = [128, 136]
    vK, vKt, vV, vL16 = 2, 3, 4, 5
    T0 = 144
    a(f"""
    v_and_b32 v1, 63, v0
    v_lshrrev_b32 v6, 6, v0
    s_and_b32 s28, {sid}, 7
    s_lshr_b32 s29, {sid}, 3
    s_lshl_b32 s30, s28, 2
    s_lshr_b32 s31, s29, 3
    s_add_u32 s30, s30, s31           ; head
    s_and_b32 s31, s29, 7             ; qb
    v_readfirstlane_b32 s32, v6       ; wave
    v_lshlrev_b32 v{vL16}, 4, v1
    s_mul_i32 s33, s30, {64*2560}
    s_add_u32 s33, s33, {KV}
    s_mul_i32 s35, s32, 5120
    s_lshl_b32 s36, s31, 3
    s_lshl_b32 s37, s32, 1
    s_add_u32 s36, s36, s37           ; qt
    s_lshl_b32 s37, s30, 6
    s_add_u32 s37, s37, s36
    s_mul_i32 s37, s37, 1152
    s_add_u32 s37, s37, {QF}
    s_lshl_b32 s38, s30, 8
    s_add_u32 s38, s38, {KMX}
    v_lshlrev_b32 v7, 2, v1           ; lane*4
    v_mov_b32 v{QTA}, 0
    v_mov_b32 v{QTB}, 0
    buffer_load_dwordx4 v[{QMA}:{QMA+3}], v{vL16}, s[{sws}:{sws+3}], s37 offen
    buffer_load_dwordx4 v[{QMB}:{QMB+3}], v{vL16}, s[{sws}:{sws+3}], s37 offen offset:1152
    buffer_load_dword v{T0}, v7, s[{sws}:{sws+3}], s38 offen
    s_mov_b32 exec_hi, 0
    buffer_load_dword v{QTA}, v7, s[{sws}:{sws+3}], s37 offen offset:1024
    buffer_load_dword v{QTB}, v7, s[{sws}:{sws+3}], s37 offen offset:{1152+1024}
    s_mov_b32 exec_hi, -1
    s_mov_b32 s39, 0
    """)

    def dma_chunk():
        a(f"""
        s_mov_b32 m0, s40
        s_add_u32 s41, s34, 4096
        buffer_load_dwordx4 v{vL16}, s[{sws}:{sws+3}], s34 offen lds
        buffer_load_dwordx4 v{vL16}, s[{sws}:{sws+3}], s34 offen offset:1024 lds
        buffer_load_dwordx4 v{vL16}, s[{sws}:{sws+3}], s34 offen offset:2048 lds
        buffer_load_dwordx4 v{vL16}, s[{sws}:{sws+3}], s34 offen offset:3072 lds
        s_add_u32 m0, s40, 4096
        s_add_u32 s34, s34, {CH}
        buffer_load_dwordx4 v{vL16}, s[{sws}:{sws+3}], s41 offen lds
        s_add_u32 s40, s40, {CH}
        s_sub_u32 s41, s40, {NSL*CH}
        s_cmp_ge_u32 s40, {NSL*CH}
        s_cselect_b32 s40, s41, s40
        """)

    a.label(f"{L}_PASS")
    a(f"""
    s_add_u32 s34, s33, s35
    s_mov_b32 s40, s35
    """)
    for c in range(3):
        dma_chunk()
    a(f"""
    v_mov_b32 v{vK}, v{vL16}
    v_and_b32 v8, 31, v1
    v_lshrrev_b32 v9, 5, v1           ; h
    v_lshlrev_b32 v{vKt}, 4, v8
    v_lshl_add_u32 v{vKt}, v9, 2, v{vKt}
    v_add_u32 v{vKt}, 2048, v{vKt}
    v_bfe_u32 v10, v1, 2, 2           ; r
    v_lshl_add_u32 v10, v9, 2, v10    ; key = 4h + r
    v_lshlrev_b32 v10, 4, v10
    v_and_b32 v11, 1, v1
    v_lshlrev_b32 v11, 9, v11
    v_bfe_u32 v12, v1, 1, 1
    v_lshl_add_u32 v11, v12, 3, v11
    v_add_u32 v11, 1024, v11
    v_mov_b32 v12, {2048+8}
    v_and_b32 v13, 16, v1
    v_cmp_ne_u32 vcc, 0, v13
    v_cndmask_b32 v11, v11, v12, vcc
    v_add_u32 v{vV}, v10, v11
    """)
    for r in list(range(OA, OA + 32)) + list(range(PB + 4, PB + 8)) + list(range(VV[1], VV[1] + 8)) \
            + [QTA + 1, QTA + 2, QTA + 3, QTB + 1, QTB + 2, QTB + 3] + [KT[0] + i for i in (1, 2, 3)] + [KT[1] + i for i in (1, 2, 3)]:
        a(f"v_mov_b32 v{r}, 0")
    a(f"""
    s_cmp_lg_u32 s39, 0
    s_cbranch_scc1 {L}_GO
    s_waitcnt vmcnt(15)
    """)
    reduce16(a, T0, T0 + 1, "v_max_f32")
    reduce_x16(a, T0, T0 + 1, "v_max_f32")
    reduce_x32(a, T0, T0 + 1, "v_max_f32")
    for (QM, QT, t) in ((QMA, QTA, T0 + 2), (QMB, QTB, T0 + 3)):
        a(f"v_dot2_f32_bf16 v{t}, v{QT}, v{QT}, 0")
        for i in range(4):
            a(f"v_dot2_f32_bf16 v{t}, v{QM+i}, v{QM+i}, v{t}")
    a("s_nop 2")
    for (QT, t) in ((QTA, T0 + 2), (QTB, T0 + 3)):
        reduce_x32(a, t, T0 + 1)
        a(f"""
        v_mul_f32 v{t}, v{t}, v{T0}
        v_sqrt_f32 v{t}, v{t}
        v_mul_f32 v{t}, {fbits(-1.02)}, v{t}
        v_mov_b32 v{T0+1}, 0
        v_cvt_pk_bf16_f32 v{t}, v{t}, v{T0+1}
        s_mov_b32 exec_lo, 0
        v_mov_b32 v{QT}, v{t}
        s_mov_b32 exec_lo, -1
        """)
    a.label(f"{L}_GO")
    pf.stamp()
    a(f"""
    s_waitcnt vmcnt(10)
    s_barrier
    ds_read_b128 v[{KM[0]}:{KM[0]+3}], v{vK}
    ds_read_b32 v{KT[0]}, v{vKt}
    ds_read_b128 v[{KM[1]}:{KM[1]+3}], v{vK} offset:2560
    ds_read_b32 v{KT[1]}, v{vKt} offset:2560
    """)
    for p in range(2):
        for i in range(2):
            a(f"ds_read_b64_tr_b16 v[{VV[0]+4*p+2*i}:{VV[0]+4*p+2*i+1}], v{vV} offset:{16*(16*p+8*i)}")
    mf = lambda d, x, y, c: f"v_mfma_f32_32x32x16_bf16 v[{d}:{d+15}], v[{x}:{x+3}], v[{y}:{y+3}], " + (f"v[{d}:{d+15}]" if c else "0")
    a(f"""
    s_waitcnt lgkmcnt(0)
    {mf(SA, KT[0], QTA, False)}
    {mf(SA, KM[0], QMA, True)}
    s_mov_b32 s42, 0
    s_mov_b32 s43, 0
    s_nop 9
    """)
    pf.stamp()
    a.label(f"{L}_LOOP")
    for t in range(8):
        b, nb = t % 2, (t + 1) % 2
        mfs = [mf(SB, KT[b], QTB, False), mf(OB, VV[nb] + 4, PB + 4, True), mf(SB, KM[b], QMB, True), mf(OA, VV[b], PA, True),
               mf(SA, KT[nb], QTA, False), mf(OA, VV[b] + 4, PA + 4, True), mf(SA, KM[nb], QMA, True), mf(OB, VV[b], PB, True)]
        for sl in range(8):
            if sl == 3:
                a("s_waitcnt lgkmcnt(0)")
            a(mfs[sl])
            if sl == 3:
                if t == 6:
                    a(f"""
                    s_cmp_ge_u32 s42, 5
                    s_cbranch_scc1 {L}_NODMA
                    s_waitcnt vmcnt(5)
                    s_barrier
                    """)
                    dma_chunk()
                    a(f"""
                    s_branch {L}_DMADONE
                    {L}_NODMA:
                    s_waitcnt vmcnt(0)
                    s_barrier
                    {L}_DMADONE:
                    s_add_u32 s43, s43, {CH}
                    s_mov_b32 s44, {CH}
                    s_cmp_ge_u32 s43, {NSL*CH}
                    s_cselect_b32 s44, {-(NSL-1)*CH & 0xffffffff}, s44
                    s_cselect_b32 s43, 0, s43
                    v_add_u32 v{vK}, s44, v{vK}
                    v_add_u32 v{vKt}, s44, v{vKt}
                    """)
                if t == 7:
                    a(f"v_add_u32 v{vV}, s44, v{vV}")
                ko = ((t + 2) % 8) * 2560
                a(f"ds_read_b128 v[{KM[b]}:{KM[b]+3}], v{vK} offset:{ko}")
                a(f"ds_read_b32 v{KT[b]}, v{vKt} offset:{ko}")
            if sl in (4, 5):
                p = sl - 4
                vo = ((t + 1) % 8) * 2560
                for i in range(2):
                    a(f"ds_read_b64_tr_b16 v[{VV[nb]+4*p+2*i}:{VV[nb]+4*p+2*i+1}], v{vV} offset:{vo + 16*(16*p+8*i)}")
            S_, P_ = (SA, PA) if sl < 4 else (SB, PB)
            o = 4 * (sl % 4)
            for i in range(4):
                a(f"v_exp_f32 v{S_+o+i}, v{S_+o+i}")
            a(f"v_cvt_pk_bf16_f32 v{P_+o//2}, v{S_+o}, v{S_+o+1}")
            a(f"v_cvt_pk_bf16_f32 v{P_+o//2+1}, v{S_+o+2}, v{S_+o+3}")
    a(f"""
    s_add_u32 s42, s42, 1
    s_cmp_lt_u32 s42, 8
    s_cbranch_scc1 {L}_LOOP
    {mf(OB, VV[1] + 4, PB + 4, True)}
    """)
    pf.stamp()
    a(f"""
    s_waitcnt lgkmcnt(0)
    s_cmp_lg_u32 s39, 0
    s_cbranch_scc1 {L}_OUT
    s_mov_b32 s44, {fbits(2.0**-70)}
    v_min_f32 v{T0}, v{OA+10}, v{OB+10}
    v_cmp_nle_f32 vcc, s44, v{T0}
    s_cmp_lg_u64 vcc, 0
    s_cselect_b32 s44, 1, 0
    s_barrier
    v_mov_b32 v{T0}, s44
    v_lshlrev_b32 v{T0+1}, 2, v6
    ds_write_b32 v{T0+1}, v{T0}
    v_mov_b32 v{T0+1}, 0
    s_waitcnt lgkmcnt(0)
    s_barrier
    ds_read_b128 v[{T0+2}:{T0+5}], v{T0+1}
    s_waitcnt lgkmcnt(0)
    v_or_b32 v{T0+2}, v{T0+2}, v{T0+3}
    v_or3_b32 v{T0+2}, v{T0+2}, v{T0+4}, v{T0+5}
    v_readfirstlane_b32 s44, v{T0+2}
    s_cmp_eq_u32 s44, 0
    s_cbranch_scc1 {L}_OUT
    s_barrier
    s_mov_b32 s39, 1
    s_mov_b32 exec_lo, 0
    v_mov_b32 v{QTA}, 0
    v_mov_b32 v{QTB}, 0
    s_mov_b32 exec_lo, -1
    v_mov_b32 v{T0}, 0xff800000
    v_mov_b32 v{T0+1}, 0xff800000
    v_and_b32 v8, 31, v1
    v_lshrrev_b32 v9, 5, v1
    v_lshlrev_b32 v8, 4, v8
    v_lshl_add_u32 v8, v9, 2, v8
    s_mov_b32 s44, s33
    s_mov_b32 s45, 0
    {L}_MAXL:
    buffer_load_dwordx4 v[{KM[0]}:{KM[0]+3}], v{vL16}, s[{sws}:{sws+3}], s44 offen
    buffer_load_dword v{KT[0]}, v8, s[{sws}:{sws+3}], s44 offen offset:2048
    s_waitcnt vmcnt(0)
    {mf(SA, KT[0], QTA, False)}
    {mf(SB, KT[0], QTB, False)}
    {mf(SA, KM[0], QMA, True)}
    {mf(SB, KM[0], QMB, True)}
    """)
    for i in range(8):
        a(f"v_max3_f32 v{T0}, v{SA+2*i}, v{SA+2*i+1}, v{T0}")
    for i in range(8):
        a(f"v_max3_f32 v{T0+1}, v{SB+2*i}, v{SB+2*i+1}, v{T0+1}")
    a(f"""
    s_add_u32 s44, s44, 2560
    s_add_u32 s45, s45, 1
    s_cmp_lt_u32 s45, 64
    s_cbranch_scc1 {L}_MAXL
    """)
    for (QT, t) in ((QTA, T0), (QTB, T0 + 1)):
        reduce_x32(a, t, T0 + 2, "v_max_f32")
        a(f"""
        v_sub_f32 v{t}, 0, v{t}
        v_cvt_pk_bf16_f32 v{T0+2}, v{t}, v{t}
        v_lshlrev_b32 v{T0+2}, 16, v{T0+2}
        v_sub_f32 v{T0+3}, v{t}, v{T0+2}
        v_cvt_pk_bf16_f32 v{T0+2}, v{T0+2}, v{T0+3}
        s_mov_b32 exec_lo, 0
        v_mov_b32 v{QT}, v{T0+2}
        s_mov_b32 exec_lo, -1
        """)
    a(f"s_branch {L}_PASS")
    a.label(f"{L}_OUT")
    a(f"""
    s_mul_i32 s44, s36, {36*1024}
    s_add_u32 s44, s44, {OF}
    s_lshl_b32 s45, s30, 10
    s_add_u32 s45, s45, s44
    s_add_u32 s46, s45, {36*1024}
    s_lshr_b32 s47, s30, 2
    s_lshl_b32 s47, s47, 9
    s_and_b32 s48, s30, 3
    s_lshl_b32 s48, s48, 2
    s_add_u32 s47, s47, s48
    s_add_u32 s47, s47, s44
    s_add_u32 s47, s47, {32*1024}
    s_add_u32 s48, s47, {36*1024}
    v_rcp_f32 v{T0}, v{OA+10}
    v_rcp_f32 v{T0+1}, v{OB+10}
    """)
    for (O, t, P_, so, st) in ((OA, T0, PA, 45, 47), (OB, T0 + 1, PB, 46, 48)):
        for i in range(10):
            a(f"v_mul_f32 v{O+i}, v{O+i}, v{t}")
        for i in range(5):
            a(f"v_cvt_pk_bf16_f32 v{P_+i}, v{O+2*i}, v{O+2*i+1}")
        a(f"buffer_store_dwordx4 v[{P_}:{P_+3}], v{vL16}, s[{sws}:{sws+3}], s{so} offen")
    a(f"""
    s_mov_b32 exec_hi, 0
    buffer_store_dword v{PA+4}, v{vL16}, s[{sws}:{sws+3}], s47 offen
    buffer_store_dword v{PB+4}, v{vL16}, s[{sws}:{sws+3}], s48 offen
    s_mov_b32 exec_hi, -1
    """)


def build_k2a():
    k = Kernel("k2a_attn_kernel", 256, 256, NSL * CH, 160)
    a = k.a
    pf = Prof(a, bool(PROF), 3)
    pf.stamp()
    a(f"""
    s_cmp_ge_u32 s2, 256
    s_cbranch_scc1 K2A_END
    s_load_dwordx2 s[26:27], s[0:1], {KA_WS}
    s_waitcnt lgkmcnt(0)
    """)
    srd(a, 20, 26, WS_USED)
    attn_body(a, pf, "s2", 20)
    pf.dump(20, 4)
    a("K2A_END:\ns_endpgm")
    return k
```

```python
from common import *

STG = 18432
XCH = 4 * STG

def gemm2_body(a, pf, sid, sws, swin, swsp, sbsp, L="G2", pre_spatial=None):
    ACC = 16
    FR = [96, 132]
    Z1 = 168
    TMP = 204
    vL16 = 2
    rB = [3, 4, 5, 6]
    rA = [7, 8, 9, 10]
    rX = 11
    dT, dT2, dF, dF2, dX = 12, 13, 14, 15, 240
    a(f"""
    v_and_b32 v1, 63, v0
    v_lshrrev_b32 v{TMP}, 6, v0
    s_and_b32 s28, {sid}, 7
    s_lshr_b32 s29, {sid}, 3
    s_and_b32 s30, s28, 1
    s_lshl_b32 s30, s30, 3
    s_and_b32 s31, s29, 7
    s_add_u32 s30, s30, s31           ; tb
    s_lshr_b32 s31, s28, 1
    s_lshl_b32 s31, s31, 2
    s_lshr_b32 s32, s29, 3
    s_add_u32 s31, s31, s32           ; fb
    s_and_b32 s33, s31, 1             ; e
    s_lshr_b32 s31, s31, 1            ; fp
    v_readfirstlane_b32 s32, v{TMP}   ; wave
    v_lshlrev_b32 v{vL16}, 4, v1
    s_lshr_b32 s34, s32, 1            ; i
    s_and_b32 s35, s32, 1             ; j
    s_mul_i32 s36, s31, 9
    s_add_u32 s37, s36, 8
    s_lshl_b32 s38, s33, 2
    s_add_u32 s36, s36, s38
    s_lshl_b32 s38, s32, 11           ; w*2048
    s_add_u32 s39, s38, 8192
    s_lshl_b32 s40, s32, 9
    s_add_u32 s40, s40, 16384
    s_lshl_b32 s41, s34, 1
    s_add_u32 s41, s41, s33
    s_lshl_b32 s42, s30, 2
    s_add_u32 s42, s42, s32
    s_mul_i32 s42, s42, {36*1024}
    s_add_u32 s42, s42, {XF}
    s_mov_b32 s43, 0
    v_lshrrev_b32 v{TMP+1}, 4, v1
    v_and_b32 v{TMP+2}, 15, v1
    v_lshlrev_b32 v{TMP+3}, 2, v{TMP+1}
    v_xor_b32 v{TMP+2}, v{TMP+2}, v{TMP+3}
    v_lshl_add_u32 v{TMP+1}, v{TMP}, 3, v{TMP+1}
    v_mul_u32_u24 v{dF}, {4*FH}, v{TMP+1}
    v_lshl_add_u32 v{dF}, v{TMP+2}, 4, v{dF}
    s_lshl_b32 s44, s36, 6
    v_add_u32 v{dF}, s44, v{dF}
    v_add_u32 v{dF2}, {4*4*FH - 1024}, v{dF}
    v_bfe_u32 v{TMP+1}, v1, 2, 3
    v_lshl_add_u32 v{TMP+1}, v{TMP}, 3, v{TMP+1}
    v_mul_u32_u24 v{dX}, {4*FH}, v{TMP+1}
    v_and_b32 v{TMP+2}, 3, v1
    v_lshl_add_u32 v{dX}, v{TMP+2}, 4, v{dX}
    s_lshl_b32 s44, s37, 6
    v_add_u32 v{dX}, s44, v{dX}
    s_lshl_b32 s44, s41, 11
    s_lshl_b32 s45, s35, 10
    s_add_u32 s44, s44, s45
    v_add_u32 v{rB[0]}, s44, v{vL16}
    v_xor_b32 v{rB[1]}, 2048, v{rB[0]}
    v_xor_b32 v{rB[2]}, 1024, v{rB[0]}
    v_xor_b32 v{rB[3]}, 1024, v{rB[1]}
    v_lshrrev_b32 v{TMP+1}, 5, v1
    v_bfe_u32 v{TMP+2}, v1, 2, 2                     ; r
    v_lshl_add_u32 v{TMP+1}, v{TMP+1}, 3, v{TMP+2}   ; row
    s_lshl_b32 s44, s35, 4
    v_add_u32 v{TMP+1}, s44, v{TMP+1}
    v_bfe_u32 v{TMP+3}, v1, 4, 1
    v_lshlrev_b32 v{TMP+3}, 5, v{TMP+3}
    v_and_b32 v{TMP+4}, 1, v1
    v_lshl_add_u32 v{TMP+3}, v{TMP+4}, 4, v{TMP+3}
    v_bfe_u32 v{TMP+4}, v1, 1, 1
    v_lshl_add_u32 v{TMP+3}, v{TMP+4}, 3, v{TMP+3}   ; col4*8
    v_lshl_add_u32 v{TMP+4}, v{TMP+1}, 8, v{TMP+3}
    v_add_u32 v{TMP+4}, 8192, v{TMP+4}
    s_lshl_b32 s44, s35, 1
    v_xor_b32 v{TMP+5}, s44, v{TMP+2}                ; (2j) ^ r
    v_lshl_add_u32 v{rA[0]}, v{TMP+5}, 6, v{TMP+4}
    v_xor_b32 v{rA[1]}, 64, v{rA[0]}
    v_xor_b32 v{rA[2]}, 4096, v{rA[0]}
    v_xor_b32 v{rA[3]}, 4096, v{rA[1]}
    s_lshl_b32 s44, s35, 5
    v_xor_b32 v{TMP+3}, s44, v{TMP+3}
    v_lshl_add_u32 v{rX}, v{TMP+1}, 6, v{TMP+3}
    v_add_u32 v{rX}, 16384, v{rX}
    """)

    def dma_z1(sl):
        o = sl * STG
        return [f"s_add_u32 m0, s38, {o}\nbuffer_load_dwordx4 v{vL16}, s[{sws}:{sws+3}], s42 offen lds",
                f"buffer_load_dwordx4 v{vL16}, s[{sws}:{sws+3}], s42 offen offset:1024 lds\ns_add_u32 s42, s42, 2048",
                f"s_add_u32 m0, s39, {o}\nbuffer_load_dwordx4 v{dF}, s[{swin}:{swin+3}], s43 offen lds",
                f"buffer_load_dwordx4 v{dF2}, s[{swin}:{swin+3}], s43 offen offset:1024 lds",
                f"s_add_u32 m0, s40, {o}\ns_mov_b32 exec_hi, 0\nbuffer_load_dwordx4 v{dX}, s[{swin}:{swin+3}], s43 offen lds\n"
                f"s_mov_b32 exec_hi, -1\ns_add_u32 s43, s43, {32*4*FH}"]

    def dma_sp(sl):
        o = sl * STG
        return [f"s_add_u32 m0, s38, {o}\nbuffer_load_dwordx4 v{dT}, s[{swsp}:{swsp+3}], s42 offen lds",
                f"buffer_load_dwordx4 v{dT2}, s[{swsp}:{swsp+3}], s42 offen offset:1024 lds\ns_add_u32 s42, s42, 64",
                f"s_add_u32 m0, s39, {o}\nbuffer_load_dwordx4 v{vL16}, s[{sws}:{sws+3}], s43 offen lds",
                f"buffer_load_dwordx4 v{vL16}, s[{sws}:{sws+3}], s43 offen offset:1024 lds\ns_add_u32 s43, s43, 2048",
                f"s_add_u32 m0, s40, {o}\ns_mov_b32 exec_hi, 0\nbuffer_load_dwordx4 v{vL16}, s[{sws}:{sws+3}], s46 offen lds\n"
                f"s_mov_b32 exec_hi, -1\ns_add_u32 s46, s46, 2048"]

    A0f, A1f, A4, B0f, B1f, A0s, A1s, B0s, B1s = [4 * i for i in range(9)]

    def rd128(dst, reg, off):
        return f"ds_read_b128 v[{dst}:{dst+3}], v{reg} offset:{off}"

    def rdtr(dst, reg, off, step):
        return (f"ds_read_b64_tr_b16 v[{dst}:{dst+1}], v{reg} offset:{off}\n"
                f"ds_read_b64_tr_b16 v[{dst+2}:{dst+3}], v{reg} offset:{off+step}")

    def reads_z1(sl, fs):
        o = sl * STG
        return [rdtr(fs + A0f, rA[0], o, 1024), rd128(fs + B0f, rB[0], o), rd128(fs + B1f, rB[1], o),
                rdtr(fs + A1f, rA[1], o, 1024), rdtr(fs + A4, rX, o, 256), rdtr(fs + A0s, rA[2], o, 1024),
                rd128(fs + B0s, rB[2], o), rd128(fs + B1s, rB[3], o), rdtr(fs + A1s, rA[3], o, 1024)]

    def reads_sp(sl, fs):
        o = sl * STG
        return [rd128(fs + A0f, rA[0], o), rd128(fs + B0f, rB[0], o), rd128(fs + B1f, rB[1], o),
                rd128(fs + A1f, rA[0], o + 2048), rd128(fs + A4, rX, o), rd128(fs + A0s, rA[2], o),
                rd128(fs + B0s, rB[2], o), rd128(fs + B1s, rB[3], o), rd128(fs + A1s, rA[2], o + 2048)]

    def mfmas(fs):
        m = lambda t, x, y: f"v_mfma_f32_32x32x16_bf16 v[{ACC+16*t}:{ACC+16*t+15}], v[{fs+x}:{fs+x+3}], v[{fs+y}:{fs+y+3}], v[{ACC+16*t}:{ACC+16*t+15}]"
        return [m(0, A0f, B0f), m(1, A0f, B1f), m(2, A1f, B0f), m(3, A1f, B1f), m(4, A4, B0f),
                m(0, A0s, B0s), m(1, A0s, B1s), m(2, A1s, B0s), m(3, A1s, B1s)]

    def loop(name, nst, first_slot, dma, reads):
        a(f"s_waitcnt vmcnt(15)\ns_barrier")
        for r in reads(first_slot, FR[first_slot % 2]):
            a(r)
        for i in range(80):
            a(f"v_mov_b32 v{ACC+i}, 0")
        assert (nst - 4 + first_slot) % 4 == 0
        a(f"s_mov_b32 s47, {(nst - 4 + first_slot) // 4}")
        if first_slot:
            a(f"s_branch {name}_S{first_slot}")
        for sl in range(4):
            a.label(f"{name}_S{sl}")
            a(f"""
            s_waitcnt vmcnt(10) lgkmcnt(0)
            s_barrier
            """)
            ms = mfmas(FR[sl % 2]); rd = reads((sl + 1) % 4, FR[(sl + 1) % 2]); dm = dma(sl)
            for q in range(9):
                a(ms[q])
                if q < 5:
                    a(rd[2 * q])
                    if 2 * q + 1 < 9:
                        a(rd[2 * q + 1])
                if q >= 4:
                    a(dm[q - 4])
        a(f"""
        s_sub_u32 s47, s47, 1
        s_cmp_lg_u32 s47, 0
        s_cbranch_scc1 {name}_S0
        """)
        for sl in range(4):
            a(f"""
            s_waitcnt vmcnt({max(0, 10 - 5*sl)}) lgkmcnt(0)
            s_barrier
            """)
            ms = mfmas(FR[sl % 2]); rd = reads((sl + 1) % 4, FR[(sl + 1) % 2]) if sl < 3 else []
            for q in range(9):
                a(ms[q])
                if q < 5 and rd:
                    a(rd[2 * q])
                    if 2 * q + 1 < 9:
                        a(rd[2 * q + 1])

    def exchange():
        X = ACC + 64
        a(f"""
        s_lshl_b32 s48, s32, 11
        s_add_u32 s48, s48, {XCH}
        v_add_u32 v{TMP}, s48, v{vL16}
        v_xor_b32 v{TMP+1}, 2048, v{TMP}
        ds_write_b128 v{TMP}, v[{X+8}:{X+11}]
        ds_write_b128 v{TMP}, v[{X+12}:{X+15}] offset:1024
        s_waitcnt lgkmcnt(0)
        s_barrier
        ds_read_b128 v[{X+8}:{X+11}], v{TMP+1}
        ds_read_b128 v[{X+12}:{X+15}], v{TMP+1} offset:1024
        """)

    def exchange_fin():
        X = ACC + 64
        a("s_waitcnt lgkmcnt(0)")
        for i in range(8):
            a(f"v_add_f32 v{X+i}, v{X+i}, v{X+8+i}")

    for st in range(4):
        for d in dma_z1((st + 2) % 4):
            a(d)
    pf.stamp()
    loop(f"{L}Z", 18, 2, dma_z1, reads_z1)
    pf.stamp()
    a(f"""
    v_lshrrev_b32 v{TMP+1}, 2, v1
    v_and_b32 v{TMP+2}, 3, v1
    v_lshrrev_b32 v{TMP+3}, 4, v1
    v_xor_b32 v{TMP+2}, v{TMP+2}, v{TMP+3}
    s_lshl_b32 s44, s30, 7
    s_lshl_b32 s45, s32, 5
    s_add_u32 s44, s44, s45
    v_add_u32 v{TMP+1}, s44, v{TMP+1}
    v_lshlrev_b32 v{dT}, 12, v{TMP+1}
    v_lshl_add_u32 v{dT}, v{TMP+2}, 4, v{dT}
    v_add_u32 v{dT2}, {16*4096 - 1024}, v{dT}
    s_mov_b32 s42, 0
    s_add_u32 s43, s36, s32
    s_lshl_b32 s43, s43, 17
    s_add_u32 s43, s43, {Z2N}
    s_lshl_b32 s46, s37, 17
    s_lshl_b32 s44, s32, 9
    s_add_u32 s46, s46, s44
    s_add_u32 s46, s46, {Z2N}
    """)
    if pre_spatial:
        pre_spatial()
    for st in range(4):
        for d in dma_sp(st):
            a(d)
    a(f"""
    s_lshl_b32 s44, s30, 2
    s_add_u32 s44, s44, s41
    s_xor_b32 s45, s44, 1             ; B1
    v_and_b32 v{TMP+1}, 31, v1
    v_lshlrev_b32 v{TMP+1}, 1, v{TMP+1}
    s_lshl_b32 s48, s44, 6
    s_lshl_b32 s49, s45, 6
    """)
    exchange()
    a(f"""
    v_and_b32 v{TMP+2}, 15, v1
    v_bfe_u32 v{TMP+3}, v1, 2, 2
    v_lshrrev_b32 v{TMP+4}, 5, v1
    s_lshl_b32 s50, s35, 1
    v_add_u32 v{TMP+4}, s50, v{TMP+4}
    v_xor_b32 v{TMP+4}, v{TMP+4}, v{TMP+3}
    v_lshl_add_u32 v{TMP+4}, v{TMP+2}, 2, v{TMP+4}
    v_lshlrev_b32 v{TMP+4}, 4, v{TMP+4}
    v_bfe_u32 v{TMP+3}, v1, 4, 1
    v_lshl_add_u32 v{TMP+4}, v{TMP+3}, 10, v{TMP+4}
    s_lshl_b32 s50, s41, 11
    v_add_u32 v{rB[0]}, s50, v{TMP+4}
    v_xor_b32 v{rB[1]}, 2048, v{rB[0]}
    v_xor_b32 v{rB[2]}, 32, v{rB[0]}
    v_xor_b32 v{rB[3]}, 32, v{rB[1]}
    s_mul_i32 s50, s35, 5120
    s_add_u32 s50, s50, 8192
    v_add_u32 v{rA[0]}, s50, v{vL16}
    v_xor_b32 v{rA[2]}, 1024, v{rA[0]}
    s_lshl_b32 s50, s35, 8
    v_xor_b32 v{rX}, s50, v{vL16}
    s_lshl_b32 s50, s35, 10
    s_add_u32 s50, s50, 16384
    v_add_u32 v{rX}, s50, v{rX}
    s_mov_b32 s51, {fbits(GC1)}
    v_mov_b32 v{TMP+16}, {fbits(GC2)}
    """)
    order = [0, 1, 2, 3, 4, 5, 6, 7, 8]
    for gi in order:
        if gi == 8:
            exchange_fin()
        base = ACC + 8 * gi
        for s in gelu_group(list(range(base, base + 8)), [TMP + 2 + i for i in range(8)], 51, TMP + 16):
            a(s)
        for i in range(4):
            a(f"v_cvt_pk_bf16_f32 v{Z1+4*gi+i}, v{base+2*i}, v{base+2*i+1}")
    pf.stamp()
    loop(f"{L}S", 64, 0, dma_sp, reads_sp)
    pf.stamp()
    a(f"""
    v_and_b32 v{TMP+21}, 31, v1
    v_lshlrev_b32 v{TMP+21}, 1, v{TMP+21}
    s_lshl_b32 s48, s44, 6
    s_lshl_b32 s49, s45, 6
    buffer_load_ushort v{TMP+18}, v{TMP+21}, s[{sbsp}:{sbsp+3}], s48 offen
    buffer_load_ushort v{TMP+19}, v{TMP+21}, s[{sbsp}:{sbsp+3}], s49 offen
    """)
    exchange()
    a(f"""
    s_mul_i32 s48, s44, {144*1024}
    s_add_u32 s48, s48, {UF}
    s_mul_i32 s49, s45, {144*1024}
    s_add_u32 s49, s49, {UF}
    s_lshl_b32 s50, s37, 1
    s_add_u32 s50, s50, s35
    s_lshl_b32 s50, s50, 10
    s_add_u32 s50, s50, s48
    s_lshl_b32 s52, s35, 1
    s_add_u32 s52, s52, s36
    s_lshl_b32 s52, s52, 11
    s_add_u32 s48, s48, s52
    s_add_u32 s49, s49, s52
    s_waitcnt vmcnt(0)
    v_lshlrev_b32 v{TMP+18}, 16, v{TMP+18}
    v_lshlrev_b32 v{TMP+19}, 16, v{TMP+19}
    """)
    for gi in range(9):
        if gi == 8:
            exchange_fin()
        base = ACC + 8 * gi
        t, hf = gi // 2, gi % 2
        bias = TMP + 18 + (t % 2 if gi < 8 else 0)
        for i in range(8):
            a(f"v_add_f32 v{base+i}, v{base+i}, v{bias}")
        for i in range(4):
            a(f"v_lshlrev_b32 v{TMP+2+2*i}, 16, v{Z1+4*gi+i}")
            a(f"v_and_b32 v{TMP+3+2*i}, 0xffff0000, v{Z1+4*gi+i}")
        for i in range(8):
            a(f"v_mul_f32 v{base+i}, v{base+i}, v{TMP+2+i}")
        for i in range(4):
            a(f"v_cvt_pk_bf16_f32 v{Z1+4*gi+i}, v{base+2*i}, v{base+2*i+1}")
        if gi < 8:
            a(f"buffer_store_dwordx4 v[{Z1+4*gi}:{Z1+4*gi+3}], v{vL16}, s[{sws}:{sws+3}], s{48 + t % 2} offen offset:{(t//2)*2048 + hf*1024}")
        else:
            a(f"buffer_store_dwordx4 v[{Z1+4*gi}:{Z1+4*gi+3}], v{vL16}, s[{sws}:{sws+3}], s50 offen")


def build_k2b():
    k = Kernel("k2b_gemm2_kernel", 256, 256, 81920, 248)
    a = k.a
    pf = Prof(a, bool(PROF), 4)
    pf.stamp()
    a(f"""
    s_cmp_ge_u32 s2, 256
    s_cbranch_scc1 K2B_END
    s_load_dwordx4 s[4:7], s[0:1], {KA_WIN}
    s_load_dwordx2 s[24:25], s[0:1], {KA_BSP}
    s_load_dwordx2 s[26:27], s[0:1], {KA_WS}
    s_waitcnt lgkmcnt(0)
    """)
    srd(a, 8, 4, SZ_WIN)
    srd(a, 12, 6, SZ_WSP)
    srd(a, 16, 24, SZ_BSP)
    srd(a, 20, 26, WS_USED)
    gemm2_body(a, pf, "s2", 20, 8, 12, 16)
    pf.dump(20, 4)
    a("K2B_END:\ns_endpgm")
    return k
```

```python
from common import *

RS = 304
PART = 64 * RS
WSL = 4608

def build_k3(DEPTH=4):
    RING = DEPTH + 1
    lds = max(8 * PART, 4 * RING * WSL + 512)
    k = Kernel("k3_out_kernel", 256, 256, lds, 224, nagpr=160)
    a = k.a
    w = Waits(a)
    pf = Prof(a, bool(PROF), 5)
    pf.stamp()
    TOK = 32
    WFR = TOK + 16 * RING
    XR = WFR + 20
    TMP = XR + 12
    dW = [2, 3, 4, 5, 6]
    dO = [7, 8, 9, 10, 11]
    dO2 = [12, 13, 14]
    vTok, vTr, vOut = 15, 16, 17
    vTok2 = 20
    a(f"""
    s_cmp_ge_u32 s2, 256
    s_cbranch_scc1 K3_END
    s_load_dwordx2 s[4:5], s[0:1], {KA_X}
    s_load_dwordx2 s[6:7], s[0:1], {KA_WO}
    s_load_dwordx4 s[24:27], s[0:1], {KA_WOUT}
    s_load_dwordx2 s[28:29], s[0:1], {KA_WS}
    v_and_b32 v1, 63, v0
    v_lshrrev_b32 v{TMP}, 6, v0
    s_and_b32 s36, s2, 7
    s_lshr_b32 s37, s2, 3
    s_and_b32 s38, s36, 3
    s_lshl_b32 s38, s38, 3
    s_and_b32 s39, s37, 7
    s_add_u32 s38, s38, s39
    s_lshr_b32 s39, s36, 2
    s_lshl_b32 s39, s39, 2
    s_lshr_b32 s40, s37, 3
    s_add_u32 s39, s39, s40
    v_readfirstlane_b32 s40, v{TMP}   ; wave
    s_mul_i32 s41, s39, 144
    """)
    for i in range(5):
        a(f"""
        v_add_u32 v{TMP+1}, {64*i}, v1
        v_mul_u32_u24 v{TMP+2}, 7282, v{TMP+1}
        v_lshrrev_b32 v{TMP+2}, 16, v{TMP+2}          ; row
        v_mul_u32_u24 v{TMP+3}, 9, v{TMP+2}
        v_sub_u32 v{TMP+3}, v{TMP+1}, v{TMP+3}        ; ch
        v_lshlrev_b32 v{TMP+3}, 4, v{TMP+3}
        v_add_u32 v{TMP+3}, s41, v{TMP+3}
        v_mul_u32_u24 v{TMP+4}, 1152, v{TMP+2}
        v_add_u32 v{dW[i]}, v{TMP+4}, v{TMP+3}
        v_lshrrev_b32 v{TMP+4}, 4, v{TMP+2}
        v_mul_u32_u24 v{TMP+4}, 2304, v{TMP+4}
        v_add_u32 v{dO[i]}, v{dW[i]}, v{TMP+4}
        """)
        if i < 3:
            a(f"""
            v_lshrrev_b32 v{TMP+4}, 1, v{TMP+2}
            v_mul_u32_u24 v{TMP+4}, 18, v{TMP+4}
            v_and_b32 v{TMP+5}, 1, v{TMP+2}
            v_add3_u32 v{TMP+4}, v{TMP+4}, v{TMP+5}, 16
            v_mul_u32_u24 v{TMP+4}, 1152, v{TMP+4}
            v_add_u32 v{dO2[i]}, v{TMP+4}, v{TMP+3}
            v_mov_b32 v{vOut+i}, v{dW[i]}
            """)
    a(f"""
    v_lshrrev_b32 v{TMP+1}, 4, v1
    v_and_b32 v{TMP+2}, 15, v1
    v_lshlrev_b32 v{vTok}, 9, v{TMP+1}
    v_lshl_add_u32 v{vTok}, v{TMP+2}, 4, v{vTok}
    v_bfe_u32 v{TMP+2}, v1, 2, 2
    v_lshl_add_u32 v{TMP+1}, v{TMP+1}, 3, v{TMP+2}
    v_mul_u32_u24 v{vTr}, 144, v{TMP+1}
    v_and_b32 v{TMP+2}, 3, v1
    v_lshl_add_u32 v{vTr}, v{TMP+2}, 3, v{vTr}
    s_mul_i32 s42, s40, {RING*WSL}
    v_add_u32 v{vTr}, s42, v{vTr}
    ; sources
    s_mul_i32 s43, s40, {576*1152}
    s_lshl_b32 s44, s38, 1
    s_mul_i32 s45, s44, {144*1024}
    s_mul_i32 s46, s40, {36*1024}
    s_add_u32 s45, s45, s46
    s_add_u32 s45, s45, {UF}
    s_add_u32 s46, s45, {144*1024}
    s_mul_i32 s47, s40, {144*1152}
    s_mul_i32 s48, s44, {36*1024}
    s_add_u32 s48, s48, {OF}
    s_lshl_b32 s49, s40, 10
    s_add_u32 s50, s48, s49
    s_add_u32 s50, s50, {32*1024}
    s_add_u32 s51, s50, {36*1024}
    s_lshl_b32 s49, s40, 13
    s_add_u32 s48, s48, s49
    s_add_u32 s49, s48, {36*1024}
    s_lshl_b32 s52, s38, 6
    s_lshl_b32 s53, s40, 4
    s_add_u32 s52, s52, s53
    s_mul_i32 s52, s52, 1152
    s_mov_b32 s54, s47
    s_waitcnt lgkmcnt(0)
    """)
    srd(a, 8, 4, SZ_X)
    srd(a, 12, 6, SZ_WO)
    srd(a, 16, 24, SZ_WOUT)
    srd(a, 20, 28, WS_USED)
    srd(a, 32, 26, SZ_X)

    NS = 23

    def issue(n):
        sl = n % RING
        ops = []
        tk = TOK + 16 * sl
        if n < 22:
            sr, soff, dr = (16, 43, dW) if n < 18 else (12, 47, dO)
            for i in range(5):
                def f(i=i):
                    a(f"s_add_u32 m0, s42, {sl*WSL + i*1024}")
                    if i == 4:
                        a("s_mov_b32 exec_hi, 0")
                    w.ivm(f"buffer_load_dwordx4 v{dr[i]}, s[{sr}:{sr+3}], s{soff} offen lds", ("W", n))
                    if i == 4:
                        a("s_mov_b32 exec_hi, -1")
                        a(f"s_add_u32 s{soff}, s{soff}, {(32 if n < 18 else 36)*1152}")
                ops.append(f)
            s0, s1 = (45, 46) if n < 18 else (48, 49)
            for i in range(4):
                def f(i=i):
                    w.ivm(f"buffer_load_dwordx4 v[{tk+4*i}:{tk+4*i+3}], v{vTok}, s[20:23], s{s0 + i//2} offen offset:{(i%2)*256}", ("T", n))
                    if i == 3:
                        a(f"s_add_u32 s{s0}, s{s0}, 2048\ns_add_u32 s{s1}, s{s1}, 2048")
                ops.append(f)
        else:
            for i in range(3):
                def f(i=i):
                    a(f"s_add_u32 m0, s42, {sl*WSL + i*1024}")
                    if i == 2:
                        a("s_mov_b64 exec, 0xffff")
                    w.ivm(f"buffer_load_dwordx4 v{dO2[i]}, s[12:15], s54 offen lds", ("W", n))
                    if i == 2:
                        a("s_mov_b64 exec, -1")
                ops.append(f)
            def f():
                for i in range(16):
                    a(f"v_mov_b32 v{tk+i}, 0")
                a("s_mov_b32 exec_hi, 0")
                for i in range(4):
                    w.ivm(f"buffer_load_dwordx4 v[{tk+4*i}:{tk+4*i+3}], v{vTok}, s[20:23], s{50 + i//2} offen offset:{(i%2)*256}", ("T", n))
                a("s_mov_b32 exec_hi, -1")
            ops.append(f)
        return ops

    def wreads(n, nt):
        o = (n % RING) * WSL + nt * 32
        w.ilg(f"ds_read_b64_tr_b16 v[{WFR+4*nt}:{WFR+4*nt+1}], v{vTr} offset:{o}", (n, nt))
        w.ilg(f"ds_read_b64_tr_b16 v[{WFR+4*nt+2}:{WFR+4*nt+3}], v{vTr} offset:{o + 4*144}", (n, nt))

    for n in range(DEPTH):
        for f in issue(n):
            f()
    pf.stamp()
    w.wvm(("W", 0))
    for nt in range(5):
        wreads(0, nt)
    for n in range(NS):
        if n + 1 < NS:
            w.wvm(("W", n + 1))
        w.wvm(("T", n))
        pend = issue(n + DEPTH) if n + DEPTH < NS else []
        if n == NS - DEPTH:
            def fx():
                for i in range(3):
                    if i == 2:
                        a("s_mov_b64 exec, 0xffff")
                    w.ivm(f"buffer_load_dwordx4 v[{XR+4*i}:{XR+4*i+3}], v{vOut+i}, s[8:11], s52 offen", "X")
                a("s_mov_b64 exec, -1")
            pend = [fx]
        acc = 0 if n < 18 else 80
        first = n in (0, 18)
        tk = TOK + 16 * (n % RING)
        for nt in range(5):
            w.wlg((n, nt))
            for i in range(4):
                d = acc + 16 * nt + 4 * i
                c = "0" if first else f"a[{d}:{d+3}]"
                a(f"v_mfma_f32_16x16x32_bf16 a[{d}:{d+3}], v[{WFR+4*nt}:{WFR+4*nt+3}], v[{tk+4*i}:{tk+4*i+3}], {c}")
                if i % 2 == 1 and pend:
                    pend.pop(0)()
            if n + 1 < NS:
                wreads(n + 1, nt)
        for f in pend:
            f()
    pf.stamp()
    a(f"""
    s_barrier
    v_and_b32 v{TMP+1}, 15, v1
    v_mul_u32_u24 v{TMP+1}, {RS}, v{TMP+1}
    v_lshrrev_b32 v{TMP+2}, 4, v1
    v_lshl_add_u32 v{TMP+1}, v{TMP+2}, 4, v{TMP+1}
    s_mul_i32 s55, s40, {PART}
    v_add_u32 v{TMP+1}, s55, v{TMP+1}
    v_add_u32 v{TMP+2}, {4*PART}, v{TMP+1}
    """)
    for arr in range(2):
        for nt in range(5):
            if nt == 4:
                a("s_mov_b32 exec_hi, 0")
            for i in range(4):
                d = 80 * arr + 16 * nt + 4 * i
                a(f"ds_write_b128 v{TMP+1+arr}, a[{d}:{d+3}] offset:{i*16*RS + nt*64}")
            if nt == 4:
                a("s_mov_b32 exec_hi, -1")
    for i in range(3):
        a(f"""
        v_add_u32 v{TMP+3}, {64*i}, v1
        v_mul_u32_u24 v{TMP+4}, 7282, v{TMP+3}
        v_lshrrev_b32 v{TMP+4}, 16, v{TMP+4}
        v_mul_u32_u24 v{TMP+5}, 9, v{TMP+4}
        v_sub_u32 v{TMP+5}, v{TMP+3}, v{TMP+5}
        v_add_u32 v{TMP+4}, s53, v{TMP+4}
        v_and_b32 v{TMP+4}, 63, v{TMP+4}
        v_mul_u32_u24 v{TMP+4}, {RS}, v{TMP+4}
        v_lshl_add_u32 v{2+i}, v{TMP+5}, 5, v{TMP+4}
        v_add_u32 v{5+i}, {4*PART}, v{2+i}
        """)
    a(f"""
    s_waitcnt lgkmcnt(0)
    s_barrier
    s_mov_b32 s56, {fbits(-math.log2(math.e))}
    """)
    pf.stamp()
    R = TOK
    for rd in range(3):
        if rd == 2:
            a("s_mov_b64 exec, 0xffff")
        for arr in range(2):
            for p in range(4):
                for hf in range(2):
                    d = R + 32 * arr + 8 * p + 4 * hf
                    a(f"ds_read_b128 v[{d}:{d+3}], v{2 + 3*arr + rd} offset:{p*PART + hf*16}")
        a("s_waitcnt lgkmcnt(8)")
        for e in range(8):
            a(f"v_add_f32 v{R+e}, v{R+e}, v{R+8+e}")
            a(f"v_add_f32 v{R+16+e}, v{R+16+e}, v{R+24+e}")
        for e in range(8):
            a(f"v_add_f32 v{R+e}, v{R+e}, v{R+16+e}")
        for e in range(8):
            a(f"v_mul_f32 v{R+8+e}, s56, v{R+e}")
        for e in range(8):
            a(f"v_exp_f32 v{R+8+e}, v{R+8+e}")
        for e in range(8):
            a(f"v_add_f32 v{R+8+e}, 1.0, v{R+8+e}")
        for e in range(8):
            a(f"v_rcp_f32 v{R+8+e}, v{R+8+e}")
        a("s_waitcnt lgkmcnt(0)")
        for e in range(8):
            a(f"v_add_f32 v{R+32+e}, v{R+32+e}, v{R+40+e}")
            a(f"v_add_f32 v{R+48+e}, v{R+48+e}, v{R+56+e}")
        for e in range(8):
            a(f"v_mul_f32 v{R+e}, v{R+e}, v{R+8+e}")
            a(f"v_add_f32 v{R+32+e}, v{R+32+e}, v{R+48+e}")
        if rd == 0:
            a("s_waitcnt vmcnt(0)")
        for e in range(4):
            a(f"v_lshlrev_b32 v{R+16+2*e}, 16, v{XR+4*rd+e}")
            a(f"v_and_b32 v{R+17+2*e}, 0xffff0000, v{XR+4*rd+e}")
        for e in range(8):
            a(f"v_fmac_f32 v{R+16+e}, v{R+e}, v{R+32+e}")
        for e in range(4):
            a(f"v_cvt_pk_bf16_f32 v{XR+4*rd+e}, v{R+16+2*e}, v{R+17+2*e}")
        a(f"buffer_store_dwordx4 v[{XR+4*rd}:{XR+4*rd+3}], v{vOut+rd}, s[32:35], s52 offen")
    pf.dump(20, 4)
    a("K3_END:\ns_endpgm")
    return k
```

```python
import sys
from common import *
from k0 import build_k0, build_ln2
from k1 import build_k1

HEADER = open("recurrent_scan__mha_block__mixer_gmlp__prompt.s.ref").read().split("; Override launch")[0]

def build(kernels, path):
    out = HEADER
    for k in kernels:
        out += f"; @launch kernel={k.name} grid=({k.grid},1,1) block=({k.block},1,1) lds={k.lds}\n"
    out += '.amdgcn_target "amdgcn-amd-amdhsa--gfx950"\n.text\n'
    seen = []
    for k in kernels:
        if k.name in seen:
            continue
        seen.append(k.name)
        out += k.text()
    out += '.section .rodata,"a"\n'
    seen = []
    for k in kernels:
        if k.name in seen:
            continue
        seen.append(k.name)
        out += k.desc()
    open(path, "w").write(out)
    for k in kernels:
        print(k.name, "instrs", len(k.a.lines), "nops inserted", k.a.n_nops)

if __name__ == "__main__":
    ks = [build_k0(), build_k1(), build_ln2()]
    try:
        from k2a import build_k2a
        ks.append(build_k2a())
        from k2b import build_k2b
        ks.append(build_k2b())
        from k3 import build_k3
        ks.append(build_k3())
    except ImportError as e:
        print("skip", e)
    build(ks, sys.argv[1] if len(sys.argv) > 1 else "recurrent_scan__mha_block__mixer_gmlp__prompt.s")
```

```python
from asmlib import Asm

S, D, H, DH, FH = 2048, 576, 32, 18, 2304
KA_X, KA_WQKV, KA_WO, KA_BX, KA_WIN, KA_WSP, KA_BSP, KA_WOUT, KA_OUT, KA_DBG, KA_WS = [8 * i for i in range(11)]
SZ_X = S * D * 2
SZ_WQKV = D * 3 * D * 2
SZ_WO = D * D * 2
SZ_WIN = D * 2 * FH * 2
SZ_WSP = S * S * 2
SZ_BSP = S * 2
SZ_WOUT = FH * D * 2
SZ_WS = 268435456
XF = 0x0000000
QF = 0x0240000
OF = 0x0480000
KV = 0x06C0000
KMX = 0x0BC0000
STT = 0x0BC4000
WF = 0x0C10000
Z2N = 0x1400000
UF = 0x1D00000
WS_USED = 0x4000000
WFG = 468 * 1024
WFB = 180 * 1024
WFC = 324 * 1024


def swap23(m):
    return (m & ~12) | ((m & 4) << 1) | ((m & 8) >> 1)


def srd(a, dst, ptr, nbytes):
    a(f"""
    s_mov_b32 s{dst}, s{ptr}
    s_and_b32 s{dst+1}, s{ptr+1}, 0xffff
    s_mov_b32 s{dst+2}, {nbytes}
    s_mov_b32 s{dst+3}, 0x00020000
    """)


class Kernel:
    def __init__(self, name, grid, block, lds, nvgpr, nagpr=0, nsgpr=96):
        self.name, self.grid, self.block, self.lds = name, grid, block, lds
        self.nvgpr, self.nagpr, self.nsgpr = nvgpr, nagpr, nsgpr
        self.a = Asm()

    def text(self):
        body = self.a.finish()
        return (f".globl {self.name}\n.p2align 8\n.type {self.name},@function\n{self.name}:\n"
                + "\n".join(body) + "\n")

    def desc(self):
        acc = (self.nvgpr + 3) // 4 * 4
        nfv = acc + self.nagpr if self.nagpr else self.nvgpr
        return f""".p2align 6
.amdhsa_kernel {self.name}
  .amdhsa_next_free_vgpr {nfv}
  .amdhsa_next_free_sgpr {self.nsgpr}
  .amdhsa_accum_offset {acc}
  .amdhsa_group_segment_fixed_size 0
  .amdhsa_kernarg_size 88
  .amdhsa_user_sgpr_count 2
  .amdhsa_user_sgpr_kernarg_segment_ptr 1
  .amdhsa_system_sgpr_workgroup_id_x 1
.end_amdhsa_kernel
"""


def reduce16(a, v, t, op="v_add_f32"):
    for mod in ("quad_perm:[1,0,3,2]", "quad_perm:[2,3,0,1]", "row_half_mirror", "row_mirror"):
        a(f"{op}_dpp v{v}, v{v}, v{v} {mod} row_mask:0xf bank_mask:0xf")


def reduce_x16(a, v, t, op="v_add_f32"):
    a(f"v_mov_b32 v{t}, v{v}")
    a(f"v_permlane16_swap_b32 v{v}, v{t}")
    a(f"{op} v{v}, v{v}, v{t}")


def reduce_x32(a, v, t, op="v_add_f32"):
    a(f"v_mov_b32 v{t}, v{v}")
    a(f"v_permlane32_swap_b32 v{v}, v{t}")
    a(f"{op} v{v}, v{v}, v{t}")


def round_bf16(a, v):
    a(f"v_cvt_pk_bf16_f32 v{v}, v{v}, v{v}")
    a(f"v_lshlrev_b32 v{v}, 16, v{v}")


def fbits(x):
    import struct
    return "0x%08x" % struct.unpack("<I", struct.pack("<f", x))[0]


class Waits:
    def __init__(self, a):
        self.a = a
        self.vm = []
        self.lg = []

    def ivm(self, text, tag=None):
        self.a(text); self.vm.append(tag)

    def ilg(self, text, tag=None):
        self.a(text); self.lg.append(tag)

    def _n(self, lst, tag):
        idx = [i for i, t in enumerate(lst) if t == tag]
        if not idx:
            return None
        return len(lst) - 1 - idx[-1]

    def wvm(self, tag):
        n = self._n(self.vm, tag)
        if n is None:
            return
        n = min(n, 63)
        self.a(f"s_waitcnt vmcnt({n})")
        self.vm = self.vm[len(self.vm) - n:] if n else []

    def wlg(self, tag):
        n = self._n(self.lg, tag)
        if n is None:
            return
        n = min(n, 15)
        self.a(f"s_waitcnt lgkmcnt({n})")
        self.lg = self.lg[len(self.lg) - n:] if n else []


import math
GC1 = -2.0 * math.log2(math.e) * math.sqrt(2.0 / math.pi)
GC2 = GC1 * 0.044715
QSCALE = math.log2(math.e) / math.sqrt(18.0)


def gelu_ops(x, t, sc1, sc2v):
    return [f"v_mul_f32 v{t}, v{x}, v{x}",
            f"v_fma_f32 v{t}, v{t}, v{sc2v}, s{sc1}",
            f"v_mul_f32 v{t}, v{t}, v{x}",
            f"v_exp_f32 v{t}, v{t}",
            f"v_add_f32 v{t}, 1.0, v{t}",
            f"v_rcp_f32 v{t}, v{t}",
            f"v_mul_f32 v{x}, v{x}, v{t}"]


def gelu_group(xs, temps, sc1, sc2v):
    seqs = [gelu_ops(x, t, sc1, sc2v) for x, t in zip(xs, temps)]
    out = []
    for step in range(7):
        for s in seqs:
            out.append(s[step])
    return out


import os
PROF = os.environ.get("PROF", "")
PROFOFF = 0x2600000


class Prof:
    def __init__(self, a, on, kidx=0, base=64):
        self.a, self.on, self.n, self.base, self.kidx = a, on, 2, base, kidx
        if on:
            a(f"s_memrealtime s[{base}:{base+1}]")

    def stamp(self):
        if not self.on:
            return
        self.a(f"s_memtime s[{self.base+2*self.n}:{self.base+2*self.n+1}]")
        self.n += 1

    def dump(self, sws, waves, swg="s2", vt=1):
        if not self.on:
            return
        a = self.a
        a("s_mov_b64 exec, -1")
        a("s_waitcnt vmcnt(0)")
        self.stamp()
        a(f"s_memrealtime s[{self.base+2}:{self.base+3}]")
        a(f"v_lshrrev_b32 v{vt}, 6, v0")
        a(f"v_lshlrev_b32 v{vt}, 6, v{vt}")
        a("s_waitcnt lgkmcnt(0)")
        a("s_mov_b64 exec, 1")
        a(f"s_mul_i32 s{self.base-2}, {swg}, {waves*64}")
        a(f"s_add_u32 s{self.base-2}, s{self.base-2}, {PROFOFF + self.kidx*0x40000}")
        for i in range(self.n):
            a(f"v_mov_b32 v{vt+1}, s{self.base+2*i}")
            a(f"buffer_store_dword v{vt+1}, v{vt}, s[{sws}:{sws+3}], s{self.base-2} offen offset:{4*i}")
            a("s_nop 1")
```

```python
from common import *

SC = " sc1" if os.environ.get("SC1", "1") == "1" else ""

def ln_finish(a, f, n, vmean, vvar, t, pk):
    round_bf16(a, vmean)
    round_bf16(a, vvar)
    a(f"v_add_f32 v{vvar}, {fbits(1e-5)}, v{vvar}")
    round_bf16(a, vvar)
    a(f"v_sqrt_f32 v{vvar}, v{vvar}")
    round_bf16(a, vvar)
    a(f"v_rcp_f32 v{vvar}, v{vvar}")
    for i in range(n):
        a(f"v_sub_f32 v{f+i}, v{f+i}, v{vmean}")
    for i in range(n // 2):
        a(f"v_cvt_pk_bf16_f32 v{pk+i}, v{f+2*i}, v{f+2*i+1}")
    for i in range(n // 2):
        a(f"v_lshlrev_b32 v{f+2*i}, 16, v{pk+i}")
        a(f"v_and_b32 v{f+2*i+1}, 0xffff0000, v{pk+i}")
    for i in range(n):
        a(f"v_mul_f32 v{f+i}, v{f+i}, v{vvar}")
    for i in range(n // 2):
        a(f"v_cvt_pk_bf16_f32 v{pk+i}, v{f+2*i}, v{f+2*i+1}")


def build_k0():
    NCV, NLN, NWB = 144, 256, 288
    k = Kernel("k0_prep_kernel", NCV + NLN + NWB, 256, 36864, 64)
    a = k.a
    pf = Prof(a, bool(PROF), 0)
    pf.stamp()
    a(f"""
    s_cmp_ge_u32 s2, {NCV+NLN+NWB}
    s_cbranch_scc1 K0_END
    s_load_dwordx4 s[4:7], s[0:1], {KA_X}
    s_load_dwordx2 s[24:25], s[0:1], {KA_WIN}
    s_load_dwordx2 s[26:27], s[0:1], {KA_WS}
    v_and_b32 v1, 63, v0
    v_lshrrev_b32 v2, 6, v0
    s_waitcnt lgkmcnt(0)
    """)
    pf.stamp()
    srd(a, 8, 4, SZ_X)
    srd(a, 12, 6, SZ_WQKV)
    srd(a, 16, 24, SZ_WIN)
    srd(a, 20, 26, WS_USED)
    a(f"""
    s_cmp_ge_u32 s2, {NCV}
    s_cbranch_scc1 K0_NOTCV
    s_lshr_b32 s28, s2, 3             ; kp
    s_and_b32 s29, s2, 7              ; q
    v_readfirstlane_b32 s30, v2       ; wave
    s_mul_i32 s31, s28, {32*4*FH}
    s_mul_i32 s32, s29, 576
    s_add_u32 s31, s31, s32
    s_mul_i32 s33, s30, 9216
    s_mul_i32 s34, s30, {8*4*FH}
    s_add_u32 s31, s31, s34
    """)
    for i in range(9):
        a(f"""
        v_add_u32 v3, {64*i}, v1
        v_mul_u32_u24 v4, 1821, v3
        v_lshrrev_b32 v4, 16, v4
        v_mul_u32_u24 v5, 36, v4
        v_sub_u32 v5, v3, v5              ; chunk
        v_mul_u32_u24 v4, {2*FH}, v4
        v_lshl_add_u32 v4, v5, 4, v4
        s_add_u32 m0, s33, {1024*i}
        buffer_load_dwordx4 v4, s[16:19], s31 offen lds
        """)
    a(f"""
    s_lshr_b32 s35, s30, 1
    s_and_b32 s36, s30, 1
    v_lshrrev_b32 v3, 5, v1
    v_bfe_u32 v4, v1, 2, 2
    v_lshl_add_u32 v3, v3, 3, v4
    s_lshl_b32 s37, s36, 4
    v_add_u32 v3, s37, v3
    v_mul_u32_u24 v3, 1152, v3
    s_mul_i32 s37, s35, 288
    v_add_u32 v3, s37, v3
    v_and_b32 v4, 1, v1
    v_lshl_add_u32 v3, v4, 4, v3
    v_bfe_u32 v4, v1, 1, 1
    v_lshl_add_u32 v3, v4, 3, v3
    v_bfe_u32 v4, v1, 4, 1
    v_lshl_add_u32 v5, v4, 5, v3
    v_xor_b32 v4, 1, v4
    v_mul_u32_u24 v4, 576, v4
    v_add_u32 v6, v3, v4
    s_lshl_b32 s37, s29, 1
    s_add_u32 s37, s37, s35           ; g
    s_mul_i32 s37, s37, {WFG}
    s_add_u32 s37, s37, {WF}
    s_lshl_b32 s38, s28, 1
    s_add_u32 s38, s38, s36           ; ks
    s_mul_i32 s39, s38, 5120
    s_add_u32 s39, s39, s37
    s_add_u32 s40, s39, 4096
    s_lshl_b32 s41, s38, 12
    s_add_u32 s41, s41, s37
    s_add_u32 s41, s41, {WFB}
    v_lshlrev_b32 v7, 4, v1
    s_waitcnt vmcnt(0)
    s_barrier
    """)
    pf.stamp()
    for t in range(9):
        reg, off = (5, 576 + 64 * t) if t < 4 else ((6, 256) if t == 4 else (5, 64 * (t - 5)))
        a(f"ds_read_b64_tr_b16 v[{8+4*t}:{9+4*t}], v{reg} offset:{off}")
        a(f"ds_read_b64_tr_b16 v[{10+4*t}:{11+4*t}], v{reg} offset:{off + 4*1152}")
    for t in range(9):
        a(f"s_waitcnt lgkmcnt({min(15, 2*(8-t))})")
        so, off = (39, 1024 * t) if t < 4 else ((40, 0) if t == 4 else (41, 1024 * (t - 5)))
        a(f"buffer_store_dwordx4 v[{8+4*t}:{11+4*t}], v7, s[20:23], s{so} offen offset:{off}{SC}")
    pf.dump(20, 4)
    pf.n -= 2
    a(f"""
    s_endpgm
    K0_NOTCV:
    s_cmp_ge_u32 s2, {NCV+NLN}
    s_cbranch_scc1 K0_WB
    v_lshrrev_b32 v3, 5, v1
    v_lshl_add_u32 v3, v2, 1, v3
    s_sub_u32 s28, s2, {NCV}
    s_lshl_b32 s28, s28, 3
    v_add_u32 v3, s28, v3            ; row
    v_and_b32 v4, 31, v1             ; c0
    v_mul_u32_u24 v5, 1152, v3
    v_lshl_add_u32 v5, v4, 4, v5
    """)
    for i in range(12):
        a(f"v_mov_b32 v{8+i}, 0")
    a(f"""
    s_mov_b32 s30, 0x00ffffff
    s_mov_b32 s31, 0x00ffffff
    s_mov_b64 exec, s[30:31]
    buffer_load_dwordx4 v[8:11], v5, s[8:11], 0 offen
    buffer_load_dwordx4 v[12:15], v5, s[8:11], 0 offen offset:384
    buffer_load_dwordx4 v[16:19], v5, s[8:11], 0 offen offset:768
    s_mov_b64 exec, -1
    v_lshlrev_b32 v6, 2, v0
    v_mov_b32 v7, -1.0
    s_lshl_b32 s29, s28, 7
    s_add_u32 s29, s29, {STT}
    buffer_store_dword v7, v6, s[20:23], s29 offen
    v_lshrrev_b32 v6, 5, v3
    v_mul_u32_u24 v6, 36, v6
    v_lshrrev_b32 v7, 1, v4
    v_add_u32 v6, v6, v7
    v_lshlrev_b32 v6, 10, v6
    v_and_b32 v7, 1, v4
    v_lshlrev_b32 v7, 5, v7
    v_and_b32 v20, 31, v3
    v_add_u32 v7, v7, v20
    v_lshl_add_u32 v6, v7, 4, v6
    s_waitcnt vmcnt(1)
    """)
    F = 24
    pf.stamp()
    for i in range(12):
        a(f"v_lshlrev_b32 v{F+2*i}, 16, v{8+i}")
        a(f"v_and_b32 v{F+2*i+1}, 0xffff0000, v{8+i}")
    a(f"v_add_f32 v50, v{F}, v{F+1}")
    a(f"v_add_f32 v51, v{F+2}, v{F+3}")
    for i in range(4, 24, 2):
        a(f"v_add_f32 v50, v50, v{F+i}")
        a(f"v_add_f32 v51, v51, v{F+i+1}")
    a("v_add_f32 v50, v50, v51")
    reduce16(a, 50, 52)
    reduce_x16(a, 50, 52)
    a(f"v_mul_f32 v50, {fbits(1.0/576)}, v50")
    a("v_mov_b32 v51, 0\nv_mov_b32 v53, 0\ns_mov_b64 exec, s[30:31]")
    for i in range(24):
        a(f"v_sub_f32 v52, v{F+i}, v50")
        a(f"v_fmac_f32 v{51 if i % 2 == 0 else 53}, v52, v52")
    a("s_mov_b64 exec, -1\nv_add_f32 v51, v51, v53")
    reduce16(a, 51, 52)
    reduce_x16(a, 51, 52)
    a(f"v_mul_f32 v51, {fbits(1.0/576)}, v51")
    ln_finish(a, F, 24, 50, 51, 52, 8)
    a(f"""
    s_mov_b64 exec, s[30:31]
    s_mov_b32 s32, {XF}
    s_mov_b32 s33, {XF + 12*1024}
    s_mov_b32 s34, {XF + 24*1024}
    buffer_store_dwordx4 v[8:11], v6, s[20:23], s32 offen
    buffer_store_dwordx4 v[12:15], v6, s[20:23], s33 offen
    buffer_store_dwordx4 v[16:19], v6, s[20:23], s34 offen
    """)
    pf.dump(20, 4)
    pf.n -= 2
    a("s_endpgm")
    a.label("K0_WB")
    a(f"""
    s_sub_u32 s28, s2, {NCV+NLN}      ; j in 0..287
    s_mul_i32 s29, s28, 3641          ; j/18 = (j*3641)>>16 for j<288
    s_lshr_b32 s29, s29, 16           ; g
    s_mul_i32 s30, s29, 18
    s_sub_u32 s30, s28, s30
    v_readfirstlane_b32 s31, v2       ; T = wave
    v_and_b32 v3, 31, v1              ; m
    v_lshrrev_b32 v4, 5, v1           ; h
    v_and_b32 v5, 19, v3
    v_and_b32 v6, 4, v3
    v_lshlrev_b32 v6, 1, v6
    v_or_b32 v5, v5, v6
    v_and_b32 v6, 8, v3
    v_lshrrev_b32 v6, 1, v6
    v_or_b32 v5, v5, v6               ; phi
    s_lshl_b32 s32, s30, 5
    v_lshlrev_b32 v6, 3, v4
    v_add_u32 v6, s32, v6             ; k row
    s_mul_i32 s33, s29, 36            ; 36 g
    """)
    for i in range(16):
        a(f"v_mov_b32 v{16+i}, 0")
    a(f"""
    s_cmp_eq_u32 s31, 3
    s_cbranch_scc1 K0_WB3
    s_mul_i32 s34, s31, 576
    s_add_u32 s34, s34, s33
    v_lshrrev_b32 v7, 4, v5
    v_mul_u32_u24 v7, 18, v7
    v_and_b32 v8, 15, v5
    v_add3_u32 v7, v7, v8, s34
    s_branch K0_WBQ
    K0_WB3:
    v_lshrrev_b32 v10, 3, v5
    v_bfe_u32 v11, v5, 1, 2
    v_and_b32 v12, 1, v5
    v_mul_u32_u24 v7, 576, v11
    v_mul_u32_u24 v10, 18, v10
    v_add3_u32 v7, v7, v10, v12
    v_add3_u32 v7, v7, s33, 16
    v_cmp_gt_u32 vcc, 16, v5
    v_cmp_ne_u32 s[38:39], 3, v11
    s_and_b64 vcc, vcc, s[38:39]
    s_mov_b64 exec, vcc
    K0_WBQ:
    v_mul_u32_u24 v9, {3*D}, v6
    v_add_lshl_u32 v9, v9, v7, 1
    """)
    for ks in range(2):
        for j in range(8):
            r = 16 * ks + j
            a(f"s_mov_b32 s38, {r * 3 * D * 2}")
            a(f"buffer_load_ushort v{(24 if j % 2 else 16)+4*ks+j//2}, v9, s[12:15], s38 offen")
    a(f"""
    s_mov_b64 exec, -1
    s_mul_i32 s34, s29, {WFG}
    s_lshl_b32 s35, s30, 3
    s_add_u32 s35, s35, s31
    s_lshl_b32 s35, s35, 10
    s_add_u32 s34, s34, s35
    s_add_u32 s34, s34, {WF + WFC}
    s_add_u32 s35, s34, 4096
    v_lshlrev_b32 v9, 4, v1
    s_waitcnt vmcnt(0)
    """)
    pf.stamp()
    for i in range(8):
        a(f"v_lshl_or_b32 v{16+i}, v{24+i}, 16, v{16+i}")
    a(f"""
    buffer_store_dwordx4 v[16:19], v9, s[20:23], s34 offen{SC}
    buffer_store_dwordx4 v[20:23], v9, s[20:23], s35 offen{SC}
    """)
    pf.dump(20, 4)
    a("""
    K0_END:
    s_endpgm
    """)
    return k
```

```python
from common import *

SC = " sc1" if os.environ.get("SC1", "1") == "1" else ""

def build_k1(LA_A=int(os.environ.get('LAA', '10')), LA_B=40, INIT=4, ROT=int(os.environ.get('ROT', '0')), PFK1=int(os.environ.get('PFK1', '1')), SLGAP=int(os.environ.get('SLGAP', '40'))):
    RINGB = 160 * 1024
    k = Kernel("k1_gemm1_kernel", 256, 256, RINGB, 256, nagpr=144 + 60)
    a = k.a
    w = Waits(a)
    pf = Prof(a, bool(PROF), 1)
    ACC0, ACC1, Z2P, TMP = 16, 96, 160, 196
    AW = 144
    vL16, vRd, vZa, vZb, vGC2, vSum, vSq, vL1k = 3, 4, 5, 6, 7, 8, 9, 13
    a(f"""
    s_cmp_ge_u32 s2, 256
    s_cbranch_scc1 K1_END
    s_load_dwordx2 s[26:27], s[0:1], {KA_WS}
    s_load_dwordx2 s[4:5], s[0:1], {KA_WSP}
    s_load_dwordx2 s[6:7], s[0:1], {KA_WOUT}
    s_load_dwordx2 s[24:25], s[0:1], {KA_WO}
    v_and_b32 v1, 63, v0              ; lane
    v_lshrrev_b32 v2, 6, v0           ; wave
    s_and_b32 s28, s2, 7
    s_lshr_b32 s29, s2, 3
    s_and_b32 s30, s28, 1
    s_lshl_b32 s30, s30, 3
    s_and_b32 s31, s29, 7
    s_add_u32 s30, s30, s31           ; rb
    s_lshr_b32 s31, s28, 1
    s_lshl_b32 s31, s31, 2
    s_lshr_b32 s32, s29, 3
    s_add_u32 s31, s31, s32           ; g
    v_readfirstlane_b32 s32, v2       ; wave
    s_lshl_b32 s33, s30, 2
    s_add_u32 s33, s33, s32
    v_lshlrev_b32 v{vL16}, 4, v1
    s_and_b32 s53, s29, 7
    s_lshr_b32 s54, s29, 3
    s_lshl_b32 s54, s54, 1
    s_add_u32 s53, s53, s54
    s_sub_u32 s54, s53, 9
    s_cmp_ge_u32 s53, 9
    s_cselect_b32 s53, s54, s53
    s_mul_i32 s53, s53, {ROT}
    s_mul_i32 s38, s33, {36*1024}
    s_add_u32 s38, s38, {XF}
    s_add_u32 s35, s38, {36*1024}
    s_lshl_b32 s54, s53, 12
    s_add_u32 s34, s38, s54
    s_mul_i32 s36, s32, 5120
    s_lshl_b32 s39, s32, 12
    s_mul_i32 s54, s31, {WFG}
    s_add_u32 s54, s54, {WF}
    s_add_u32 s55, s54, s39
    s_add_u32 s57, s54, s36
    s_add_u32 s56, s57, {9*20480}
    s_mul_i32 s58, s53, 20480
    s_add_u32 s37, s57, s58
    s_lshl_b32 s58, s53, 14           ; rot*16K
    v_add_u32 v{vL1k}, 1024, v{vL16}
    v_mov_b32 v{vRd}, v{vL16}
    s_waitcnt lgkmcnt(0)
    """)
    srd(a, 16, 24, SZ_WO)
    srd(a, 8, 6, SZ_WOUT)
    srd(a, 20, 26, WS_USED)
    srd(a, 12, 4, SZ_WSP)
    pf.stamp()

    steps = []
    for g_, n_ in ((0, 5), (1, 4), (2, 4)):
        for ks in range(36):
            steps.append((g_, ks, n_))
    NT = len(steps)
    NUN = NT // 4
    usize = [steps[4 * u][2] * 4096 for u in range(NUN)]
    upos = []
    uwait = []
    pos_ = 0
    for u in range(NUN):
        if pos_ + usize[u] > RINGB:
            pos_ = 0
        upos.append(pos_)
        conf = [v for v in range(u) if upos[v] < pos_ + usize[u] and pos_ < upos[v] + usize[v]]
        uwait.append(max(conf) if conf else -1)
        pos_ += usize[u]
    order = []
    for u in range(NUN):
        if u < 9:
            order.append((4 * u, "x", u))
        order.append((4 * u, "u", u))
    st = dict(i=0, sub=0, done=-1)

    def item_ops(kind, u):
        ops = []
        if kind == "x":
            for i in range(4):
                ks = 4 * u + i
                ops.append(lambda ks=ks, i=i: w.ivm(
                    f"buffer_load_dwordx4 a[{4*ks}:{4*ks+3}], v{vL16}, s[20:23], s34 offen offset:{1024*i}", ("X", u)))
            def adv():
                a(f"""
                s_add_u32 s34, s34, 4096
                s_cmp_eq_u32 s34, s35
                s_cselect_b32 s34, s38, s34
                """)
            last = ops[-1]
            ops[-1] = lambda: (last(), adv())
        else:
            g_ = u // 9
            n_ = 5 if g_ == 0 else 4
            sw = 36 if g_ == 0 else 39
            def first():
                if u % 9 == 0 and u > 0:
                    a(f"""
                    s_add_u32 s57, s55, {WFC if g_ == 1 else WFB}
                    s_add_u32 s56, s57, {9*16384}
                    s_add_u32 s37, s57, s58
                    """)
                a(f"s_add_u32 m0, s{sw}, {upos[u]}")
                w.ivm(f"buffer_load_dwordx4 v{vL16}, s[20:23], s37 offen lds", ("U", u))
            ops.append(first)
            for i in range(1, 4):
                ops.append(lambda i=i: w.ivm(f"buffer_load_dwordx4 v{vL16}, s[20:23], s37 offen offset:{1024*i} lds", ("U", u)))
            if n_ == 5:
                def fifth():
                    a(f"s_add_u32 m0, s{sw}, {upos[u] + 1024}")
                    w.ivm(f"buffer_load_dwordx4 v{vL1k}, s[20:23], s37 offen offset:3072 lds", ("U", u))
                ops.append(fifth)
            def adv():
                a(f"""
                s_add_u32 s37, s37, {n_*4096}
                s_cmp_eq_u32 s37, s56
                s_cselect_b32 s37, s57, s37
                """)
            last = ops[-1]
            ops[-1] = lambda: (last(), adv())
        return ops

    cur = []

    def issue_next(t, force_upto=None):
        if not cur:
            if st["i"] >= len(order):
                return False
            nt_, kind, idx = order[st["i"]]
            if force_upto is not None:
                if nt_ > force_upto:
                    return False
                assert kind == "x" or uwait[idx] <= st["done"]
            else:
                la = LA_A if t < 30 else LA_B
                if nt_ > t + la or (kind == "u" and uwait[idx] > st["done"]):
                    return False
            cur.extend(item_ops(kind, idx))
            st["i"] += 1
        cur.pop(0)()
        return True

    def ensure(t_end):
        while issue_next(0, force_upto=t_end):
            pass

    rdbase = [0]

    def reads(t):
        g, ks, n = steps[t]
        fs = AW + 20 * (t % 3)
        out = []
        for T in range(n):
            off = upos[t // 4] + ((t % 4) * n + T) * 1024
            want = (off // 65536) * 65536
            if want != rdbase[0]:
                d = want - rdbase[0]
                out.append(lambda d=d: a(f"v_add_u32 v{vRd}, {d & 0xffffffff}, v{vRd}"))
                rdbase[0] = want
            out.append(lambda T=T, off=off, want=want: w.ilg(
                f"ds_read_b128 a[{fs+4*T}:{fs+4*T+3}], v{vRd} offset:{off - want}", (t, T)))
        return out

    def sync(tn):
        u = tn // 4
        ensure(tn)
        w.wvm(("U", u))
        a("s_barrier")
        st["done"] = u - 2

    ensure(INIT)
    pf.stamp()
    vQt, vKVt, vKm = 12, 14, 15
    a(f"""
    s_mov_b32 s40, {fbits(GC1)}
    v_mov_b32 v{vGC2}, {fbits(GC2)}
    v_mov_b32 v{vSum}, 0
    v_mov_b32 v{vSq}, 0
    s_mul_i32 s42, s33, 144
    s_mul_i32 s41, s31, 9
    s_add_u32 s42, s42, s41
    s_lshl_b32 s42, s42, 10
    s_add_u32 s42, s42, {UF}
    s_add_u32 s43, s42, 4096
    s_add_u32 s44, s42, 8192
    s_lshl_b32 s45, s33, 12
    s_add_u32 s45, s45, {STT}
    s_lshl_b32 s46, s31, 8
    s_add_u32 s46, s46, s45
    v_and_b32 v{TMP+1}, 31, v1              ; s
    v_lshrrev_b32 v{TMP}, 5, v1             ; h
    v_lshlrev_b32 v10, 3, v{TMP+1}
    v_lshl_add_u32 v11, v{TMP}, 11, v10
    s_lshl_b32 s47, s31, 7
    s_add_u32 s47, s47, s33           ; 2g*64 + rt
    s_mul_i32 s48, s47, 1152
    s_add_u32 s48, s48, {QF}
    s_add_u32 s59, s48, {64*1152}
    s_mul_i32 s49, s47, 2560
    s_add_u32 s49, s49, {KV}
    s_add_u32 s50, s49, {64*2560}
    s_mov_b32 s51, {fbits(QSCALE)}
    v_mul_u32_u24 v{vQt}, {64*1152}, v{TMP}
    v_lshl_add_u32 v{vQt}, v{TMP+1}, 2, v{vQt}
    v_mul_u32_u24 v{vKVt}, {64*2560}, v{TMP}
    v_lshl_add_u32 v{vKVt}, v{TMP+1}, 4, v{vKVt}
    v_lshlrev_b32 v{vKm}, 8, v{TMP}
    s_lshl_b32 s52, s47, 2
    s_add_u32 s52, s52, {KMX}
    v_lshlrev_b32 v{TMP+2}, 2, v{TMP}
    v_xor_b32 v{TMP+2}, v{TMP+2}, v{TMP+1}
    v_lshl_add_u32 v{TMP+2}, v{TMP}, 5, v{TMP+2}
    v_lshlrev_b32 v{vZa}, 4, v{TMP+2}
    s_and_b32 s53, s31, 1
    s_mul_i32 s53, s53, 1152
    v_xor_b32 v{vZa}, s53, v{vZa}
    v_xor_b32 v{vZb}, 1152, v{vZa}
    s_lshl_b32 s54, s33, 11
    s_add_u32 s54, s54, {Z2N}
    """)

    def gelu8(base, ti):
        return gelu_group(list(range(base, base + 8)), [TMP + 8 * (ti % 2) + i for i in range(8)], 40, vGC2)

    epiB, epiC = [], []
    E = lambda lst, s: lst.append(lambda s=s: a(s))
    ST = lambda lst, s, tag="st": lst.append(lambda s=s: w.ivm(s, tag))
    for gi in range(9):
        base = ACC0 + 8 * gi
        for s in gelu8(base, gi):
            E(epiB, s)
        for i in range(4):
            E(epiB, f"v_cvt_pk_bf16_f32 v{Z2P+4*gi+i}, v{base+2*i}, v{base+2*i+1}")
        for i in range(8):
            E(epiB, f"v_add_f32 v{vSum}, v{vSum}, v{base+i}")
            E(epiB, f"v_fmac_f32 v{vSq}, v{base+i}, v{base+i}")

    def pub1():
        reduce_x32(a, vSum, TMP + 16)
        reduce_x32(a, vSq, TMP + 16)
        a("s_mov_b32 exec_hi, 0")
        w.ivm(f"buffer_store_dwordx2 v[{vSum}:{vSq}], v10, s[20:23], s46 offen sc1", "STAT")
        a("s_mov_b32 exec_hi, -1")
    epiB.append(pub1)

    SR = TMP
    PK = TMP + 16
    Q, K, V, M = ACC1, ACC1 + 16, ACC1 + 32, ACC1 + 48
    base = ACC0 + 72
    for s in gelu8(base, 0):
        E(epiC, s)
    for i in range(4):
        E(epiC, f"v_cvt_pk_bf16_f32 v{PK+i}, v{base+2*i}, v{base+2*i+1}")
    for i in range(16):
        E(epiC, f"v_mul_f32 v{Q+i}, s51, v{Q+i}")
    for j, X in enumerate((Q, K, V)):
        for i in range(8):
            E(epiC, f"v_cvt_pk_bf16_f32 v{PK+4+8*j+i}, v{X+2*i}, v{X+2*i+1}")
    kk = PK + 33
    for s in f"""v_mul_f32 v{M}, s51, v{M}
    v_mul_f32 v{M+1}, s51, v{M+1}
    v_cvt_pk_bf16_f32 v{PK+32}, v{M}, v{M+1}
    v_cvt_pk_bf16_f32 v{PK+28}, v{M+2}, v{M+3}
    v_mov_b32 v{PK+29}, 0x3f803f80
    v_cvt_pk_bf16_f32 v{PK+30}, v{M+4}, v{M+5}
    v_mov_b32 v{PK+31}, 0x00003f80
    v_mul_f32 v{kk}, v{K}, v{K}
    v_mul_f32 v{kk+1}, v{K+8}, v{K+8}""".split("\n"):
        E(epiC, s.strip())
    for i in range(1, 8):
        E(epiC, f"v_fmac_f32 v{kk}, v{K+i}, v{K+i}")
        E(epiC, f"v_fmac_f32 v{kk+1}, v{K+8+i}, v{K+8+i}")
    for s in [f"v_permlane32_swap_b32 v{kk}, v{kk+1}", f"v_add_f32 v{kk}, v{kk}, v{kk+1}",
              f"v_fmac_f32 v{kk}, v{M+2}, v{M+2}", f"v_fmac_f32 v{kk}, v{M+3}, v{M+3}"]:
        E(epiC, s)
    for mod in ("quad_perm:[1,0,3,2]", "quad_perm:[2,3,0,1]", "row_half_mirror", "row_mirror"):
        E(epiC, f"v_max_f32_dpp v{kk}, v{kk}, v{kk} {mod} row_mask:0xf bank_mask:0xf")
    for s in [f"v_mov_b32 v{kk+1}, v{kk}", f"v_permlane16_swap_b32 v{kk}, v{kk+1}", f"v_max_f32 v{kk}, v{kk}, v{kk+1}"]:
        E(epiC, s)
    ZU = [ACC1 + 8 * gi for gi in range(8)] + [ACC0 + 72]
    for gi in range(4):
        for i in range(4):
            E(epiC, f"v_lshlrev_b32 v{ZU[gi]+2*i}, 16, v{Z2P+4*gi+i}")
            E(epiC, f"v_and_b32 v{ZU[gi]+2*i+1}, 0xffff0000, v{Z2P+4*gi+i}")
    sl_ = [f"buffer_load_dwordx2 v[{SR+2*i}:{SR+2*i+1}], v11, s[20:23], s45 offen offset:{256*i} sc1" for i in range(8)]
    for s in sl_:
        ST(epiC, s, "SL")
    ST(epiC, f"buffer_store_dwordx4 v[{PK}:{PK+3}], v{vL16}, s[20:23], s44 offen{SC}")
    ST(epiC, f"buffer_store_dwordx4 v[{PK+4}:{PK+7}], v{vL16}, s[20:23], s48 offen{SC}")
    ST(epiC, f"buffer_store_dwordx4 v[{PK+8}:{PK+11}], v{vL16}, s[20:23], s59 offen{SC}")
    ST(epiC, f"buffer_store_dwordx4 v[{PK+12}:{PK+15}], v{vL16}, s[20:23], s49 offen{SC}")
    ST(epiC, f"buffer_store_dwordx4 v[{PK+16}:{PK+19}], v{vL16}, s[20:23], s50 offen{SC}")
    ST(epiC, f"buffer_store_dwordx4 v[{PK+20}:{PK+23}], v{vL16}, s[20:23], s49 offen offset:1024{SC}")
    ST(epiC, f"buffer_store_dwordx4 v[{PK+24}:{PK+27}], v{vL16}, s[20:23], s50 offen offset:1024{SC}")
    ST(epiC, f"buffer_store_dwordx4 v[{PK+28}:{PK+31}], v{vKVt}, s[20:23], s49 offen offset:2048{SC}")
    ST(epiC, f"buffer_store_dword v{PK+32}, v{vQt}, s[20:23], s48 offen offset:1024{SC}")
    def kst():
        a("s_mov_b32 exec_lo, 1\ns_mov_b32 exec_hi, 1")
        w.ivm(f"buffer_store_dword v{kk}, v{vKm}, s[20:23], s52 offen", "st")
        a("s_mov_b64 exec, -1")
    epiC.append(kst)
    def pfetch():
        a(f"""
        v_lshlrev_b32 v{vQt}, 7, v0
        s_lshl_b32 s53, s2, 15
        """)
        w.ivm(f"buffer_load_dword v{vKm}, v{vQt}, s[12:15], s53 offen", "pf")
        a(f"""
        v_lshlrev_b32 v{vQt}, 7, v1
        s_lshl_b32 s53, s2, 2
        s_add_u32 s53, s53, s32
        s_mul_i32 s60, s53, {6*128}
        s_mul_i32 s53, s53, {21*128}
        s_mov_b32 exec_hi, 0
        s_mov_b32 exec_lo, 0x1fffff
        """)
        w.ivm(f"buffer_load_dword v{vKVt}, v{vQt}, s[8:11], s53 offen", "pf")
        a("s_mov_b32 exec_lo, 0x3f")
        w.ivm(f"buffer_load_dword v10, v{vQt}, s[16:19], s60 offen", "pf")
        a("s_mov_b64 exec, -1")
    if PFK1:
        epiC.append(pfetch)
    for gi in range(4, 9):
        for i in range(4):
            E(epiC, f"v_lshlrev_b32 v{ZU[gi]+2*i}, 16, v{Z2P+4*gi+i}")
            E(epiC, f"v_and_b32 v{ZU[gi]+2*i+1}, 0xffff0000, v{Z2P+4*gi+i}")
    for _ in range(SLGAP):
        epiC.append(lambda: None)
    vm, vv = SR, SR + 1
    def stats():
        w.wvm("SL")
        a(f"""
        s_mov_b32 s53, 0
        K1_POLL:
        v_min3_f32 v{vSum}, v{SR+1}, v{SR+3}, v{SR+5}
        v_min3_f32 v{vSum}, v{vSum}, v{SR+7}, v{SR+9}
        v_min3_f32 v{vSum}, v{vSum}, v{SR+11}, v{SR+13}
        v_min_f32 v{vSum}, v{vSum}, v{SR+15}
        v_cmp_gt_f32 vcc, 0, v{vSum}
        s_cmp_lg_u64 vcc, 0
        s_cbranch_scc1 K1_RETRY
        K1_GOT:
        """)
    epiC.append(stats)
    for i in range(1, 8):
        E(epiC, f"v_add_f32 v{SR}, v{SR}, v{SR+2*i}")
        E(epiC, f"v_add_f32 v{SR+1}, v{SR+1}, v{SR+2*i+1}")
    for s in f"""v_mov_b32 v{SR+2}, v{SR}
    v_mov_b32 v{SR+3}, v{SR+1}
    v_permlane32_swap_b32 v{SR}, v{SR+2}
    v_permlane32_swap_b32 v{SR+1}, v{SR+3}
    v_add_f32 v{SR}, v{SR}, v{SR+2}
    v_add_f32 v{SR+1}, v{SR+1}, v{SR+3}
    v_mul_f32 v{vm}, {fbits(1.0/FH)}, v{vm}
    v_mul_f32 v{vv}, {fbits(1.0/FH)}, v{vv}
    v_fma_f32 v{vv}, -v{vm}, v{vm}, v{vv}
    v_max_f32 v{vv}, 0, v{vv}
    v_cvt_pk_bf16_f32 v{vm}, v{vm}, v{vm}
    v_cvt_pk_bf16_f32 v{vv}, v{vv}, v{vv}
    v_lshlrev_b32 v{vm}, 16, v{vm}
    v_lshlrev_b32 v{vv}, 16, v{vv}
    v_add_f32 v{vv}, {fbits(1e-5)}, v{vv}
    v_cvt_pk_bf16_f32 v{vv}, v{vv}, v{vv}
    v_lshlrev_b32 v{vv}, 16, v{vv}
    v_sqrt_f32 v{vv}, v{vv}
    v_cvt_pk_bf16_f32 v{vv}, v{vv}, v{vv}
    v_lshlrev_b32 v{vv}, 16, v{vv}
    v_rcp_f32 v{vv}, v{vv}
    v_mul_f32 v{vm}, -v{vm}, v{vv}""".split("\n"):
        E(epiC, s.strip())
    for gi in range(9):
        b = ZU[gi]
        for i in range(8):
            E(epiC, f"v_fma_f32 v{b+i}, v{b+i}, v{vv}, v{vm}")
        for i in range(4):
            E(epiC, f"v_cvt_pk_bf16_f32 v{Z2P+4*gi+i}, v{b+2*i}, v{b+2*i+1}")
        def zst(gi=gi):
            a(f"""
            s_add_u32 s53, s41, {gi}
            s_lshr_b32 s53, s53, 1
            s_lshl_b32 s53, s53, 17
            s_add_u32 s53, s53, s54
            """)
            w.ivm(f"buffer_store_dwordx4 v[{Z2P+4*gi}:{Z2P+4*gi+3}], v{vZa if gi % 2 == 0 else vZb}, s[20:23], s53 offen{SC}", "st")
        epiC.append(zst)
    pos = {1: 0, 2: 0}

    sync(0)
    pf.stamp()
    for f in reads(0) + reads(1):
        f()
    slot = {1: 0, 2: 0}
    for t in range(NT):
        g, ks, n = steps[t]
        if t in (12, 36, 72):
            pf.stamp()
        tn = t + 2
        if tn < NT and tn % 4 == 0:
            sync(tn)
        rd = reads(tn) if tn < NT else []
        fs = AW + 20 * (t % 3)
        acc = ACC1 if g == 1 else ACC0
        nrd = len(rd)
        for T in range(n):
            if T % 2 == 0:
                w.wlg((t, min(T + 1, n - 1)))
            c = "0" if ks == 0 else f"v[{acc+16*T}:{acc+16*T+15}]"
            a(f"v_mfma_f32_32x32x16_bf16 v[{acc+16*T}:{acc+16*T+15}], a[{fs+4*T}:{fs+4*T+3}], a[{4*ks}:{4*ks+3}], {c}")
            for f in rd[(nrd * T) // n:(nrd * (T + 1)) // n]:
                f()
            if T % 2 == 0 or g == 0:
                issue_next(t)
            if g >= 1 and ks >= 1:
                epi = epiB if g == 1 else epiC
                slot[g] += 1
                tot = 35 * 4 - (4 if g == 1 else 0)
                tgt = min(len(epi), (len(epi) * slot[g] + tot - 1) // tot)
                while pos[g] < tgt:
                    epi[pos[g]]()
                    pos[g] += 1
    assert pos[1] == len(epiB) and pos[2] == len(epiC) and st["i"] == len(order) and not cur
    pf.stamp()
    for gi in range(8):
        base = ACC0 + 8 * gi
        for s in gelu8(base, gi):
            a(s)
        pk = ACC1 + 4 * gi
        for i in range(4):
            a(f"v_cvt_pk_bf16_f32 v{pk+i}, v{base+2*i}, v{base+2*i+1}")
        a(f"buffer_store_dwordx4 v[{pk}:{pk+3}], v{vL16}, s[20:23], s{42 + gi // 4} offen offset:{(gi % 4) * 1024}{SC}")
    pf.stamp()
    pf.dump(20, 4)
    a(f"""
    K1_END:
    s_endpgm
    K1_RETRY:
    s_add_u32 s53, s53, 1
    s_cmp_ge_u32 s53, 0x40000
    s_cbranch_scc1 K1_GOT
    s_sleep 1
    """)
    for s in sl_:
        a(s)
    a("""
    s_waitcnt vmcnt(0)
    s_branch K1_POLL
    """)
    return k
```

```python
from common import *
from k2a import attn_body
from k2b import gemm2_body

def build_k2(prio_attn=1, prio_gemm=0, kidx=2):
    k = Kernel("k2_mix_kernel", 512, 256, 81920, 232)
    a = k.a
    pf = Prof(a, bool(PROF), kidx)
    pf.stamp()
    a(f"""
    s_cmp_ge_u32 s2, 512
    s_cbranch_scc1 K2_END
    s_load_dwordx4 s[4:7], s[0:1], {KA_WSP}
    s_load_dwordx2 s[24:25], s[0:1], {KA_WOUT}
    s_load_dwordx2 s[26:27], s[0:1], {KA_WS}
    s_load_dwordx2 s[60:61], s[0:1], {KA_WO}
    s_waitcnt lgkmcnt(0)
    """)
    srd(a, 12, 4, SZ_WSP)
    srd(a, 16, 6, SZ_BSP)
    srd(a, 20, 26, WS_USED)
    a("""
    s_cmp_lt_u32 s2, 256
    s_cbranch_scc1 K2_ATT
    """)
    if prio_gemm:
        a(f"s_setprio {prio_gemm}")
    n0 = pf.n
    a("s_sub_u32 s3, s2, 256")
    gemm2_body(a, pf, "s3", 20, 12, 16)
    pf.dump(20, 4)
    a("s_endpgm")
    a.label("K2_ATT")
    pf.n = n0
    if prio_attn:
        a(f"s_setprio {prio_attn}")
    attn_body(a, pf, "s2", 20)
    pf.dump(20, 4)
    a("K2_END:\ns_endpgm")
    return k
```

```python
from common import *

SC = " sc1" if os.environ.get("SC1", "1") == "1" else ""
CH = 20480
NSL = 4

def attn_body(a, pf, sid, sws, L="AT", swout=None, swo=None, swsp=None):
    SA, SB, OA, OB = 16, 32, 48, 64
    PA, PB = 80, 88
    QMA, QMB, QTA, QTB = 96, 100, 104, 108
    KM = [112, 116]; KT = [120, 124]
    VV = [128, 136]
    vK, vKt, vV, vL16 = 2, 3, 4, 5
    T0 = 144
    a(f"""
    v_and_b32 v1, 63, v0
    v_lshrrev_b32 v6, 6, v0
    s_and_b32 s28, {sid}, 7
    s_lshr_b32 s29, {sid}, 3
    s_lshl_b32 s30, s28, 2
    s_lshr_b32 s31, s29, 3
    s_add_u32 s30, s30, s31           ; head
    s_and_b32 s31, s29, 7             ; qb
    v_readfirstlane_b32 s32, v6       ; wave
    v_lshlrev_b32 v{vL16}, 4, v1
    s_mul_i32 s33, s30, {64*2560}
    s_add_u32 s33, s33, {KV}
    s_mul_i32 s35, s32, 5120
    s_lshl_b32 s36, s31, 3
    s_lshl_b32 s37, s32, 1
    s_add_u32 s36, s36, s37           ; qt
    s_lshl_b32 s37, s30, 6
    s_add_u32 s37, s37, s36
    s_mul_i32 s37, s37, 1152
    s_add_u32 s37, s37, {QF}
    s_lshl_b32 s38, s30, 8
    s_add_u32 s38, s38, {KMX}
    v_lshlrev_b32 v7, 2, v1           ; lane*4
    v_mov_b32 v{QTA}, 0
    v_mov_b32 v{QTB}, 0
    buffer_load_dwordx4 v[{QMA}:{QMA+3}], v{vL16}, s[{sws}:{sws+3}], s37 offen
    buffer_load_dwordx4 v[{QMB}:{QMB+3}], v{vL16}, s[{sws}:{sws+3}], s37 offen offset:1152
    buffer_load_dword v{T0}, v7, s[{sws}:{sws+3}], s38 offen
    s_mov_b32 exec_hi, 0
    buffer_load_dword v{QTA}, v7, s[{sws}:{sws+3}], s37 offen offset:1024
    buffer_load_dword v{QTB}, v7, s[{sws}:{sws+3}], s37 offen offset:{1152+1024}
    s_mov_b32 exec_hi, -1
    s_mov_b32 s39, 0
    """)

    def dma_chunk():
        a(f"""
        s_mov_b32 m0, s40
        s_add_u32 s41, s34, 4096
        buffer_load_dwordx4 v{vL16}, s[{sws}:{sws+3}], s34 offen lds
        buffer_load_dwordx4 v{vL16}, s[{sws}:{sws+3}], s34 offen offset:1024 lds
        buffer_load_dwordx4 v{vL16}, s[{sws}:{sws+3}], s34 offen offset:2048 lds
        buffer_load_dwordx4 v{vL16}, s[{sws}:{sws+3}], s34 offen offset:3072 lds
        s_add_u32 m0, s40, 4096
        s_add_u32 s34, s34, {CH}
        buffer_load_dwordx4 v{vL16}, s[{sws}:{sws+3}], s41 offen lds
        s_add_u32 s40, s40, {CH}
        s_sub_u32 s41, s40, {NSL*CH}
        s_cmp_ge_u32 s40, {NSL*CH}
        s_cselect_b32 s40, s41, s40
        """)

    a.label(f"{L}_PASS")
    a(f"""
    s_add_u32 s34, s33, s35
    s_mov_b32 s40, s35
    """)
    for c in range(3):
        dma_chunk()
    a(f"""
    v_mov_b32 v{vK}, v{vL16}
    v_and_b32 v8, 31, v1
    v_lshrrev_b32 v9, 5, v1           ; h
    v_lshlrev_b32 v{vKt}, 4, v8
    v_lshl_add_u32 v{vKt}, v9, 2, v{vKt}
    v_add_u32 v{vKt}, 2048, v{vKt}
    v_bfe_u32 v10, v1, 2, 2           ; r
    v_lshl_add_u32 v10, v9, 2, v10    ; key = 4h + r
    v_lshlrev_b32 v10, 4, v10
    v_and_b32 v11, 1, v1
    v_lshlrev_b32 v11, 9, v11
    v_bfe_u32 v12, v1, 1, 1
    v_lshl_add_u32 v11, v12, 3, v11
    v_add_u32 v11, 1024, v11
    v_mov_b32 v12, {2048+8}
    v_and_b32 v13, 16, v1
    v_cmp_ne_u32 vcc, 0, v13
    v_cndmask_b32 v11, v11, v12, vcc
    v_add_u32 v{vV}, v10, v11
    """)
    for r in list(range(OA, OA + 32)) + list(range(PB + 4, PB + 8)) + list(range(VV[1], VV[1] + 8)) \
            + [QTA + 1, QTA + 2, QTA + 3, QTB + 1, QTB + 2, QTB + 3] + [KT[0] + i for i in (1, 2, 3)] + [KT[1] + i for i in (1, 2, 3)]:
        a(f"v_mov_b32 v{r}, 0")
    a(f"""
    s_cmp_lg_u32 s39, 0
    s_cbranch_scc1 {L}_GO
    s_waitcnt vmcnt(15)
    """)
    reduce16(a, T0, T0 + 1, "v_max_f32")
    reduce_x16(a, T0, T0 + 1, "v_max_f32")
    reduce_x32(a, T0, T0 + 1, "v_max_f32")
    for (QM, QT, t) in ((QMA, QTA, T0 + 2), (QMB, QTB, T0 + 3)):
        a(f"v_dot2_f32_bf16 v{t}, v{QT}, v{QT}, 0")
        for i in range(4):
            a(f"v_dot2_f32_bf16 v{t}, v{QM+i}, v{QM+i}, v{t}")
    a("s_nop 2")
    for (QT, t) in ((QTA, T0 + 2), (QTB, T0 + 3)):
        reduce_x32(a, t, T0 + 1)
        a(f"""
        v_mul_f32 v{t}, v{t}, v{T0}
        v_sqrt_f32 v{t}, v{t}
        v_mul_f32 v{t}, {fbits(-1.02)}, v{t}
        v_mov_b32 v{T0+1}, 0
        v_cvt_pk_bf16_f32 v{t}, v{t}, v{T0+1}
        s_mov_b32 exec_lo, 0
        v_mov_b32 v{QT}, v{t}
        s_mov_b32 exec_lo, -1
        """)
    a.label(f"{L}_GO")
    pf.stamp()
    a(f"""
    s_waitcnt vmcnt(10)
    s_barrier
    ds_read_b128 v[{KM[0]}:{KM[0]+3}], v{vK}
    ds_read_b32 v{KT[0]}, v{vKt}
    ds_read_b128 v[{KM[1]}:{KM[1]+3}], v{vK} offset:2560
    ds_read_b32 v{KT[1]}, v{vKt} offset:2560
    """)
    for p in range(2):
        for i in range(2):
            a(f"ds_read_b64_tr_b16 v[{VV[0]+4*p+2*i}:{VV[0]+4*p+2*i+1}], v{vV} offset:{16*(16*p+8*i)}")
    mf = lambda d, x, y, c: f"v_mfma_f32_32x32x16_bf16 v[{d}:{d+15}], v[{x}:{x+3}], v[{y}:{y+3}], " + (f"v[{d}:{d+15}]" if c else "0")
    PFW, PFZ, PFD = T0 + 8, T0 + 9, T0 + 10

    def touch():
        a(f"""
        buffer_load_dword v{PFD}, v{PFW}, s[{swsp}:{swsp+3}], s50 offen
        buffer_load_dword v{PFD+1}, v{PFZ}, s[{sws}:{sws+3}], s51 offen
        s_add_u32 s50, s50, 512
        s_add_u32 s51, s51, 16384
        """)
    if swout is not None:
        a(f"""
        s_lshl_b32 s52, s29, 2
        s_add_u32 s52, s52, s32           ; wave index within this id%8 class
        s_and_b32 s50, s28, 1
        s_lshl_b32 s50, s50, 10
        s_lshl_b32 s51, s52, 3
        s_add_u32 s50, s50, s51
        s_lshl_b32 s50, s50, 12
        v_lshrrev_b32 v{PFW}, 2, v1
        v_lshlrev_b32 v{PFW}, 12, v{PFW}
        v_and_b32 v{PFZ}, 3, v1
        v_lshl_add_u32 v{PFW}, v{PFZ}, 7, v{PFW}
        v_mov_b32 v{PFD}, 0x40000000
        v_cmp_gt_u32 vcc, 32, v1
        v_cndmask_b32 v{PFW}, v{PFD}, v{PFW}, vcc
        v_lshlrev_b32 v{PFZ}, 17, v1
        v_cmp_gt_u32 vcc, 18, v1
        v_cndmask_b32 v{PFZ}, v{PFD}, v{PFZ}, vcc
        s_lshr_b32 s51, s28, 1
        s_mul_i32 s51, s51, {18*131072}
        s_lshl_b32 s53, s52, 7
        s_add_u32 s51, s51, s53
        s_add_u32 s51, s51, {Z2N}
        s_mul_i32 s54, s52, {162*128}
        s_mul_i32 s55, s52, {41*128}
        """)
        touch()
        touch()
    a(f"""
    s_waitcnt lgkmcnt(0)
    {mf(SA, KT[0], QTA, False)}
    {mf(SA, KM[0], QMA, True)}
    s_mov_b32 s42, 0
    s_mov_b32 s43, 0
    s_nop 9
    """)
    pf.stamp()
    a.label(f"{L}_LOOP")
    PAIR = int(os.environ.get("PAIR", "0"))

    def chunk_sync():
        a(f"""
        s_cmp_ge_u32 s42, 5
        s_cbranch_scc1 {L}_NODMA
        s_waitcnt vmcnt(5)
        s_barrier
        """)
        if swout is not None:
            touch()
        dma_chunk()
        a(f"""
        s_branch {L}_DMADONE
        {L}_NODMA:
        s_waitcnt vmcnt(0)
        s_barrier
        """)
        if swout is not None:
            a(f"""
            s_cmp_lg_u32 s42, 5
            s_cbranch_scc1 {L}_PFW
            """)
            touch()
            a(f"""
            v_lshlrev_b32 v{PFW}, 7, v1
            buffer_load_dword v{PFD}, v{PFW}, s[{swo}:{swo+3}], s55 offen
            {L}_PFW:
            buffer_load_dword v{PFD+1}, v{PFW}, s[{swout}:{swout+3}], s54 offen
            s_add_u32 s54, s54, {54*128}
            """)
        a(f"""
        {L}_DMADONE:
        s_add_u32 s43, s43, {CH}
        s_mov_b32 s44, {CH}
        s_cmp_ge_u32 s43, {NSL*CH}
        s_cselect_b32 s44, {-(NSL-1)*CH & 0xffffffff}, s44
        s_cselect_b32 s43, 0, s43
        v_add_u32 v{vK}, s44, v{vK}
        v_add_u32 v{vKt}, s44, v{vKt}
        """)

    for t in range(8):
        b, nb = t % 2, (t + 1) % 2
        ko = ((t + 2) % 8) * 2560
        vo = ((t + 1) % 8) * 2560
        kr = [f"ds_read_b128 v[{KM[b]}:{KM[b]+3}], v{vK} offset:{ko}", f"ds_read_b32 v{KT[b]}, v{vKt} offset:{ko}"]
        vr = [f"ds_read_b64_tr_b16 v[{VV[nb]+4*p+2*i}:{VV[nb]+4*p+2*i+1}], v{vV} offset:{vo + 16*(16*p+8*i)}" for p in range(2) for i in range(2)]
        if PAIR:
            grp = [[mf(SB, KT[b], QTB, False), mf(SB, KM[b], QMB, True)],
                   [mf(OB, VV[nb] + 4, PB + 4, True), mf(OA, VV[b], PA, True)],
                   [mf(SA, KT[nb], QTA, False), mf(SA, KM[nb], QMA, True)],
                   [mf(OA, VV[b] + 4, PA + 4, True), mf(OB, VV[b], PB, True)]]
            for g in range(4):
                if g == 1:
                    a("s_waitcnt lgkmcnt(0)")
                a(grp[g][0])
                a(grp[g][1])
                if g == 1:
                    if t == 6:
                        chunk_sync()
                    if t == 7:
                        a(f"v_add_u32 v{vV}, s44, v{vV}")
                    a.ext(kr + vr)
                S_, P_ = (SA, PA) if g < 2 else (SB, PB)
                o = 8 * (g % 2)
                for i in range(8):
                    a(f"v_exp_f32 v{S_+o+i}, v{S_+o+i}")
                for i in range(4):
                    a(f"v_cvt_pk_bf16_f32 v{P_+o//2+i}, v{S_+o+2*i}, v{S_+o+2*i+1}")
        else:
            mfs = [mf(SB, KT[b], QTB, False), mf(OB, VV[nb] + 4, PB + 4, True), mf(SB, KM[b], QMB, True), mf(OA, VV[b], PA, True),
                   mf(SA, KT[nb], QTA, False), mf(OA, VV[b] + 4, PA + 4, True), mf(SA, KM[nb], QMA, True), mf(OB, VV[b], PB, True)]
            for sl in range(8):
                if sl == 3:
                    a("s_waitcnt lgkmcnt(0)")
                a(mfs[sl])
                if sl == 3:
                    if t == 6:
                        chunk_sync()
                    if t == 7:
                        a(f"v_add_u32 v{vV}, s44, v{vV}")
                    a.ext(kr)
                if sl in (4, 5):
                    a.ext(vr[2 * (sl - 4):2 * (sl - 4) + 2])
                S_, P_ = (SA, PA) if sl < 4 else (SB, PB)
                o = 4 * (sl % 4)
                for i in range(4):
                    a(f"v_exp_f32 v{S_+o+i}, v{S_+o+i}")
                a(f"v_cvt_pk_bf16_f32 v{P_+o//2}, v{S_+o}, v{S_+o+1}")
                a(f"v_cvt_pk_bf16_f32 v{P_+o//2+1}, v{S_+o+2}, v{S_+o+3}")
    a(f"""
    s_add_u32 s42, s42, 1
    s_cmp_lt_u32 s42, 8
    s_cbranch_scc1 {L}_LOOP
    {mf(OB, VV[1] + 4, PB + 4, True)}
    """)
    pf.stamp()
    a(f"""
    s_waitcnt lgkmcnt(0)
    s_cmp_lg_u32 s39, 0
    s_cbranch_scc1 {L}_OUT
    s_mov_b32 s44, {fbits(2.0**-70)}
    v_min_f32 v{T0}, v{OA+10}, v{OB+10}
    v_cmp_nle_f32 vcc, s44, v{T0}
    s_cmp_lg_u64 vcc, 0
    s_cselect_b32 s44, 1, 0
    s_barrier
    v_mov_b32 v{T0}, s44
    v_lshlrev_b32 v{T0+1}, 2, v6
    ds_write_b32 v{T0+1}, v{T0}
    v_mov_b32 v{T0+1}, 0
    s_waitcnt lgkmcnt(0)
    s_barrier
    ds_read_b128 v[{T0+2}:{T0+5}], v{T0+1}
    s_waitcnt lgkmcnt(0)
    v_or_b32 v{T0+2}, v{T0+2}, v{T0+3}
    v_or3_b32 v{T0+2}, v{T0+2}, v{T0+4}, v{T0+5}
    v_readfirstlane_b32 s44, v{T0+2}
    s_cmp_eq_u32 s44, 0
    s_cbranch_scc1 {L}_OUT
    s_barrier
    s_mov_b32 s39, 1
    s_mov_b32 exec_lo, 0
    v_mov_b32 v{QTA}, 0
    v_mov_b32 v{QTB}, 0
    s_mov_b32 exec_lo, -1
    v_mov_b32 v{T0}, 0xff800000
    v_mov_b32 v{T0+1}, 0xff800000
    v_and_b32 v8, 31, v1
    v_lshrrev_b32 v9, 5, v1
    v_lshlrev_b32 v8, 4, v8
    v_lshl_add_u32 v8, v9, 2, v8
    s_mov_b32 s44, s33
    s_mov_b32 s45, 0
    {L}_MAXL:
    buffer_load_dwordx4 v[{KM[0]}:{KM[0]+3}], v{vL16}, s[{sws}:{sws+3}], s44 offen
    buffer_load_dword v{KT[0]}, v8, s[{sws}:{sws+3}], s44 offen offset:2048
    s_waitcnt vmcnt(0)
    {mf(SA, KT[0], QTA, False)}
    {mf(SB, KT[0], QTB, False)}
    {mf(SA, KM[0], QMA, True)}
    {mf(SB, KM[0], QMB, True)}
    """)
    for i in range(8):
        a(f"v_max3_f32 v{T0}, v{SA+2*i}, v{SA+2*i+1}, v{T0}")
    for i in range(8):
        a(f"v_max3_f32 v{T0+1}, v{SB+2*i}, v{SB+2*i+1}, v{T0+1}")
    a(f"""
    s_add_u32 s44, s44, 2560
    s_add_u32 s45, s45, 1
    s_cmp_lt_u32 s45, 64
    s_cbranch_scc1 {L}_MAXL
    """)
    for (QT, t) in ((QTA, T0), (QTB, T0 + 1)):
        reduce_x32(a, t, T0 + 2, "v_max_f32")
        a(f"""
        v_sub_f32 v{t}, 0, v{t}
        v_cvt_pk_bf16_f32 v{T0+2}, v{t}, v{t}
        v_lshlrev_b32 v{T0+2}, 16, v{T0+2}
        v_sub_f32 v{T0+3}, v{t}, v{T0+2}
        v_cvt_pk_bf16_f32 v{T0+2}, v{T0+2}, v{T0+3}
        s_mov_b32 exec_lo, 0
        v_mov_b32 v{QT}, v{T0+2}
        s_mov_b32 exec_lo, -1
        """)
    a(f"s_branch {L}_PASS")
    a.label(f"{L}_OUT")
    a(f"""
    s_mul_i32 s44, s36, {36*1024}
    s_add_u32 s44, s44, {OF}
    s_lshl_b32 s45, s30, 10
    s_add_u32 s45, s45, s44
    s_add_u32 s46, s45, {36*1024}
    s_lshr_b32 s47, s30, 2
    s_lshl_b32 s47, s47, 9
    s_and_b32 s48, s30, 3
    s_lshl_b32 s48, s48, 2
    s_add_u32 s47, s47, s48
    s_add_u32 s47, s47, s44
    s_add_u32 s47, s47, {32*1024}
    s_add_u32 s48, s47, {36*1024}
    v_rcp_f32 v{T0}, v{OA+10}
    v_rcp_f32 v{T0+1}, v{OB+10}
    """)
    for (O, t, P_, so, st) in ((OA, T0, PA, 45, 47), (OB, T0 + 1, PB, 46, 48)):
        for i in range(10):
            a(f"v_mul_f32 v{O+i}, v{O+i}, v{t}")
        for i in range(5):
            a(f"v_cvt_pk_bf16_f32 v{P_+i}, v{O+2*i}, v{O+2*i+1}")
        a(f"buffer_store_dwordx4 v[{P_}:{P_+3}], v{vL16}, s[{sws}:{sws+3}], s{so} offen{SC}")
    a(f"""
    s_mov_b32 exec_hi, 0
    buffer_store_dword v{PA+4}, v{vL16}, s[{sws}:{sws+3}], s47 offen{SC}
    buffer_store_dword v{PB+4}, v{vL16}, s[{sws}:{sws+3}], s48 offen{SC}
    s_mov_b32 exec_hi, -1
    """)
```

```python
from common import *

STG = 18432
XCH = 4 * STG

SC = " sc1" if os.environ.get("SC1", "1") == "1" else ""

def gemm2_body(a, pf, sid, sws, swsp, sbsp, L="G2"):
    ACC = 16
    FR = [96, 132]
    Z1 = 168
    TMP = 204
    vL16 = 2
    rB = [3, 4, 5, 6]
    rA = [7, 8, 9, 10]
    rX = [11, 12]
    dT, dT2 = 13, 14
    a(f"""
    v_and_b32 v1, 63, v0
    v_lshrrev_b32 v{TMP}, 6, v0
    s_and_b32 s28, {sid}, 7
    s_lshr_b32 s29, {sid}, 3
    s_and_b32 s30, s28, 1
    s_lshl_b32 s30, s30, 3
    s_and_b32 s31, s29, 7
    s_add_u32 s30, s30, s31           ; tb
    s_lshr_b32 s31, s28, 1
    s_lshl_b32 s31, s31, 2
    s_lshr_b32 s32, s29, 3
    s_add_u32 s31, s31, s32           ; fb
    s_and_b32 s33, s31, 1             ; e
    s_lshr_b32 s31, s31, 1            ; fp
    v_readfirstlane_b32 s32, v{TMP}   ; wave
    v_lshlrev_b32 v{vL16}, 4, v1
    s_lshr_b32 s34, s32, 1            ; i
    s_and_b32 s35, s32, 1             ; j
    s_mul_i32 s36, s31, 9
    s_add_u32 s37, s36, 8
    s_lshl_b32 s38, s33, 2
    s_add_u32 s36, s36, s38
    s_lshl_b32 s38, s32, 11           ; w*2048
    s_add_u32 s39, s38, 8192
    s_lshl_b32 s40, s32, 9
    s_add_u32 s40, s40, 16384
    s_lshl_b32 s41, s34, 1
    s_add_u32 s41, s41, s33
    v_lshrrev_b32 v{TMP+1}, 2, v1
    v_and_b32 v{TMP+2}, 3, v1
    v_lshrrev_b32 v{TMP+3}, 4, v1
    v_xor_b32 v{TMP+2}, v{TMP+2}, v{TMP+3}
    s_lshl_b32 s44, s30, 7
    s_lshl_b32 s45, s32, 5
    s_add_u32 s44, s44, s45
    v_add_u32 v{TMP+1}, s44, v{TMP+1}
    v_lshlrev_b32 v{dT}, 12, v{TMP+1}
    v_lshl_add_u32 v{dT}, v{TMP+2}, 4, v{dT}
    v_add_u32 v{dT2}, {16*4096 - 1024}, v{dT}
    s_mov_b32 s42, 0
    s_add_u32 s43, s36, s32
    s_lshl_b32 s43, s43, 17
    s_add_u32 s43, s43, {Z2N}
    s_lshl_b32 s46, s37, 17
    s_lshl_b32 s44, s32, 9
    s_add_u32 s46, s46, s44
    s_add_u32 s46, s46, {Z2N}
    """)

    def dma_sp(sl):
        o = sl * STG
        return [f"s_add_u32 m0, s38, {o}\nbuffer_load_dwordx4 v{dT}, s[{swsp}:{swsp+3}], s42 offen lds",
                f"buffer_load_dwordx4 v{dT2}, s[{swsp}:{swsp+3}], s42 offen offset:1024 lds\ns_add_u32 s42, s42, 64",
                f"s_add_u32 m0, s39, {o}\nbuffer_load_dwordx4 v{vL16}, s[{sws}:{sws+3}], s43 offen lds",
                f"buffer_load_dwordx4 v{vL16}, s[{sws}:{sws+3}], s43 offen offset:1024 lds\ns_add_u32 s43, s43, 2048",
                f"s_add_u32 m0, s40, {o}\ns_mov_b32 exec_hi, 0\nbuffer_load_dwordx4 v{vL16}, s[{sws}:{sws+3}], s46 offen lds\n"
                f"s_mov_b32 exec_hi, -1\ns_add_u32 s46, s46, 2048"]

    for st in range(4):
        for d in dma_sp(st):
            a(d)
    a(f"""
    s_lshl_b32 s44, s30, 2
    s_add_u32 s44, s44, s41
    s_xor_b32 s45, s44, 1             ; B1
    v_and_b32 v{TMP+2}, 15, v1
    v_bfe_u32 v{TMP+3}, v1, 2, 2
    v_lshrrev_b32 v{TMP+4}, 5, v1
    s_lshl_b32 s50, s35, 1
    v_add_u32 v{TMP+4}, s50, v{TMP+4}
    v_xor_b32 v{TMP+4}, v{TMP+4}, v{TMP+3}
    v_lshl_add_u32 v{TMP+4}, v{TMP+2}, 2, v{TMP+4}
    v_lshlrev_b32 v{TMP+4}, 4, v{TMP+4}
    v_bfe_u32 v{TMP+3}, v1, 4, 1
    v_lshl_add_u32 v{TMP+4}, v{TMP+3}, 10, v{TMP+4}
    s_lshl_b32 s50, s41, 11
    v_add_u32 v{rB[0]}, s50, v{TMP+4}
    v_xor_b32 v{rB[1]}, 2048, v{rB[0]}
    v_xor_b32 v{rB[2]}, 32, v{rB[0]}
    v_xor_b32 v{rB[3]}, 32, v{rB[1]}
    v_lshrrev_b32 v{TMP+1}, 5, v1
    v_bfe_u32 v{TMP+2}, v1, 2, 2
    v_lshl_add_u32 v{TMP+1}, v{TMP+1}, 3, v{TMP+2}
    s_lshl_b32 s50, s35, 4
    v_add_u32 v{TMP+1}, s50, v{TMP+1}
    v_bfe_u32 v{TMP+2}, v1, 4, 1
    v_and_b32 v{TMP+3}, 1, v1
    v_lshl_add_u32 v{TMP+2}, v{TMP+2}, 1, v{TMP+3}   ; c8
    v_lshlrev_b32 v{TMP+3}, 2, v{TMP+2}
    v_xor_b32 v{TMP+1}, v{TMP+1}, v{TMP+3}
    v_lshl_add_u32 v{TMP+1}, v{TMP+2}, 5, v{TMP+1}
    v_lshlrev_b32 v{TMP+1}, 4, v{TMP+1}
    v_bfe_u32 v{TMP+2}, v1, 1, 1
    v_lshl_add_u32 v{TMP+1}, v{TMP+2}, 3, v{TMP+1}
    s_lshl_b32 s50, s35, 12
    s_add_u32 s50, s50, 8192
    v_add_u32 v{rA[0]}, s50, v{TMP+1}
    v_xor_b32 v{rA[1]}, 64, v{rA[0]}
    v_xor_b32 v{rA[2]}, 256, v{rA[0]}
    v_xor_b32 v{rA[3]}, 256, v{rA[1]}
    s_mul_i32 s50, s35, 1152
    v_xor_b32 v{rX[0]}, s50, v{TMP+1}
    v_add_u32 v{rX[0]}, 16384, v{rX[0]}
    v_xor_b32 v{rX[1]}, 64, v{rX[0]}
    s_mul_i32 s48, s44, {144*1024}
    s_add_u32 s48, s48, {UF}
    s_mul_i32 s49, s45, {144*1024}
    s_add_u32 s49, s49, {UF}
    s_lshl_b32 s50, s37, 1
    s_add_u32 s50, s50, s35
    s_lshl_b32 s50, s50, 10
    s_add_u32 s50, s50, s48
    s_lshl_b32 s52, s35, 1
    s_add_u32 s52, s52, s36
    s_lshl_b32 s52, s52, 11
    s_add_u32 s48, s48, s52
    s_add_u32 s49, s49, s52
    s_lshl_b32 s44, s44, 6
    s_lshl_b32 s45, s45, 6
    v_and_b32 v{TMP+21}, 31, v1
    v_lshlrev_b32 v{TMP+21}, 1, v{TMP+21}
    """)

    A0f, A1f, A4, B0f, B1f, A0s, A1s, B0s, B1s = [4 * i for i in range(9)]

    def rd128(dst, reg, off):
        return f"ds_read_b128 v[{dst}:{dst+3}], v{reg} offset:{off}"

    def rdtr(dst, r0, r1, off):
        return (f"ds_read_b64_tr_b16 v[{dst}:{dst+1}], v{r0} offset:{off}\n"
                f"ds_read_b64_tr_b16 v[{dst+2}:{dst+3}], v{r1} offset:{off}")

    def reads(sl, fs):
        o = sl * STG
        return [rdtr(fs + A0f, rA[0], rA[1], o), rd128(fs + B0f, rB[0], o), rd128(fs + B1f, rB[1], o),
                rdtr(fs + A1f, rA[0], rA[1], o + 2048), rdtr(fs + A4, rX[0], rX[1], o), rdtr(fs + A0s, rA[2], rA[3], o),
                rd128(fs + B0s, rB[2], o), rd128(fs + B1s, rB[3], o), rdtr(fs + A1s, rA[2], rA[3], o + 2048)]

    def mfmas(fs):
        m = lambda t, x, y: f"v_mfma_f32_32x32x16_bf16 v[{ACC+16*t}:{ACC+16*t+15}], v[{fs+x}:{fs+x+3}], v[{fs+y}:{fs+y+3}], v[{ACC+16*t}:{ACC+16*t+15}]"
        return [m(0, A0f, B0f), m(1, A0f, B1f), m(2, A1f, B0f), m(3, A1f, B1f), m(4, A4, B0f),
                m(0, A0s, B0s), m(1, A0s, B1s), m(2, A1s, B0s), m(3, A1s, B1s)]

    def uaddr(gi):
        t, hf = gi // 2, gi % 2
        return f"s{48 + t % 2} offen offset:{(t//2)*2048 + hf*1024}" if gi < 8 else "s50 offen"

    for i in range(80):
        a(f"v_mov_b32 v{ACC+i}, 0")
    pf.stamp()
    a(f"s_waitcnt vmcnt(15)\ns_barrier")
    for r in reads(0, FR[0]):
        a(r)
    a(f"s_mov_b32 s47, 15\ns_setprio 0")
    pf.stamp()
    a.label(f"{L}_LOOP")
    for sl in range(4):
        a(f"""
        s_waitcnt vmcnt(10) lgkmcnt(0)
        s_barrier
        """)
        ms = mfmas(FR[sl % 2]); rd = reads((sl + 1) % 4, FR[(sl + 1) % 2]); dm = dma_sp(sl)
        for q in range(9):
            a(ms[q])
            if q < 5:
                a(rd[2 * q])
                if 2 * q + 1 < 9:
                    a(rd[2 * q + 1])
            if q >= 4:
                a(dm[q - 4])
    a(f"""
    s_sub_u32 s47, s47, 1
    s_cmp_lg_u32 s47, 0
    s_cbranch_scc1 {L}_LOOP
    """)
    for sl in range(4):
        n = max(0, 10 - 5 * sl) + (11 if sl > 0 else 0)
        a(f"""
        s_waitcnt vmcnt({n}) lgkmcnt(0)
        s_barrier
        """)
        ms = mfmas(FR[sl % 2]); rd = reads((sl + 1) % 4, FR[(sl + 1) % 2]) if sl < 3 else []
        for q in range(9):
            a(ms[q])
            if q < 5 and rd:
                a(rd[2 * q])
                if 2 * q + 1 < 9:
                    a(rd[2 * q + 1])
            if sl == 0:
                a(f"buffer_load_dwordx4 v[{Z1+4*q}:{Z1+4*q+3}], v{vL16}, s[{sws}:{sws+3}], {uaddr(q)}")
        if sl == 0:
            a(f"buffer_load_ushort v{TMP+18}, v{TMP+21}, s[{sbsp}:{sbsp+3}], s44 offen")
            a(f"buffer_load_ushort v{TMP+19}, v{TMP+21}, s[{sbsp}:{sbsp+3}], s45 offen")
    pf.stamp()
    a("s_setprio 3")
    X = ACC + 64
    a(f"""
    s_lshl_b32 s53, s32, 11
    s_add_u32 s53, s53, {XCH}
    v_add_u32 v{TMP}, s53, v{vL16}
    v_xor_b32 v{TMP+1}, 2048, v{TMP}
    ds_write_b128 v{TMP}, v[{X+8}:{X+11}]
    ds_write_b128 v{TMP}, v[{X+12}:{X+15}] offset:1024
    s_waitcnt lgkmcnt(0)
    s_barrier
    ds_read_b128 v[{X+8}:{X+11}], v{TMP+1}
    ds_read_b128 v[{X+12}:{X+15}], v{TMP+1} offset:1024
    s_waitcnt vmcnt(0)
    v_lshlrev_b32 v{TMP+18}, 16, v{TMP+18}
    v_lshlrev_b32 v{TMP+19}, 16, v{TMP+19}
    """)
    for gi in range(9):
        if gi == 8:
            a("s_waitcnt lgkmcnt(0)")
            for i in range(8):
                a(f"v_add_f32 v{X+i}, v{X+i}, v{X+8+i}")
        base = ACC + 8 * gi
        t, hf = gi // 2, gi % 2
        bias = TMP + 18 + (t % 2 if gi < 8 else 0)
        for i in range(8):
            a(f"v_add_f32 v{base+i}, v{base+i}, v{bias}")
        for i in range(4):
            a(f"v_lshlrev_b32 v{TMP+2+2*i}, 16, v{Z1+4*gi+i}")
            a(f"v_and_b32 v{TMP+3+2*i}, 0xffff0000, v{Z1+4*gi+i}")
        for i in range(8):
            a(f"v_mul_f32 v{base+i}, v{base+i}, v{TMP+2+i}")
        for i in range(4):
            a(f"v_cvt_pk_bf16_f32 v{Z1+4*gi+i}, v{base+2*i}, v{base+2*i+1}")
        a(f"buffer_store_dwordx4 v[{Z1+4*gi}:{Z1+4*gi+3}], v{vL16}, s[{sws}:{sws+3}], {uaddr(gi)}{SC}")
```

```python
from common import *

WSL = 4096
PART = 80 * 256

def build_k3(DEPTH=int(os.environ.get("K3D", "4")), ROT=int(os.environ.get("ROT", "0"))):
    RING = DEPTH + 1
    NWG = 240
    RED = 0
    lds = max(8 * PART, 4 * RING * WSL)
    k = Kernel("k3_out_kernel", NWG, 256, lds, 40 + 20 * RING + 16 + 12 + 8, nagpr=160)
    a = k.a
    w = Waits(a)
    pf = Prof(a, bool(PROF), 3)
    pf.stamp()
    TOK = 32
    WFR = TOK + 20 * RING
    XR = WFR + 16
    TMP = XR + 12
    dW, dO, dO2 = 2, 3, 5
    vTok, vOut = 6, 7
    vTr = [8, 9, 10, 11]
    a(f"""
    s_cmp_ge_u32 s2, {NWG}
    s_cbranch_scc1 K3_END
    s_load_dwordx2 s[4:5], s[0:1], {KA_X}
    s_load_dwordx2 s[6:7], s[0:1], {KA_WO}
    s_load_dwordx4 s[24:27], s[0:1], {KA_WOUT}
    s_load_dwordx2 s[28:29], s[0:1], {KA_WS}
    ; L = (id&7)*30 + (id>>3) ; rb = L/9 ; cb = L%9
    s_and_b32 s36, s2, 7
    s_lshr_b32 s37, s2, 3
    s_mul_i32 s36, s36, 30
    s_add_u32 s36, s36, s37
    s_cmp_ge_u32 s36, 234
    s_cbranch_scc1 K3_END
    s_mul_i32 s38, s36, 7282
    s_lshr_b32 s38, s38, 16           ; rb
    s_mul_i32 s39, s38, 9
    s_sub_u32 s39, s36, s39           ; cb
    v_and_b32 v1, 63, v0
    v_lshrrev_b32 v{TMP}, 6, v0
    s_lshl_b32 s41, s39, 7
    v_lshrrev_b32 v{TMP+1}, 3, v1
    v_readfirstlane_b32 s40, v{TMP}   ; wave
    v_and_b32 v{TMP+2}, 7, v1
    v_and_b32 v{TMP+3}, 2, v{TMP+1}
    v_xor_b32 v{TMP+2}, v{TMP+2}, v{TMP+3}
    v_lshlrev_b32 v{TMP+2}, 4, v{TMP+2}
    v_add_u32 v{TMP+2}, s41, v{TMP+2}
    v_mul_u32_u24 v{TMP+3}, 1152, v{TMP+1}
    v_add_u32 v12, v{TMP+3}, v{TMP+2}             ; i = 0
    v_xor_b32 v13, 64, v12
    v_add_u32 v13, {8*1152 - 1024}, v13           ; i = 1 (imm 1024)
    v_add_u32 v14, {16*1152 - 2048}, v12          ; i = 2
    v_add_u32 v15, {16*1152 - 2048}, v13          ; i = 3
    v_add_u32 v16, 2304, v14
    v_add_u32 v17, 2304, v15
    v_lshrrev_b32 v{TMP+3}, 1, v{TMP+1}
    v_mul_u32_u24 v{TMP+3}, 18, v{TMP+3}
    v_and_b32 v{TMP+4}, 1, v{TMP+1}
    v_add3_u32 v{TMP+3}, v{TMP+3}, v{TMP+4}, 16
    v_mul_u32_u24 v{TMP+3}, 1152, v{TMP+3}
    v_add_u32 v18, v{TMP+3}, v{TMP+2}
    v_xor_b32 v19, 64, v18
    v_add_u32 v19, {72*1152 - 1024}, v19
    v_and_b32 v{TMP+2}, 7, v1
    v_mul_u32_u24 v{vOut}, 1152, v{TMP+1}
    v_lshl_add_u32 v{vOut}, v{TMP+2}, 4, v{vOut}
    v_lshrrev_b32 v{TMP+1}, 4, v1
    v_and_b32 v{TMP+2}, 15, v1
    v_lshlrev_b32 v{vTok}, 9, v{TMP+1}
    v_lshl_add_u32 v{vTok}, v{TMP+2}, 4, v{vTok}
    v_bfe_u32 v{TMP+2}, v1, 2, 2
    v_lshl_add_u32 v{TMP+3}, v{TMP+1}, 3, v{TMP+2}
    v_lshlrev_b32 v{TMP+3}, 7, v{TMP+3}
    v_and_b32 v{TMP+4}, 3, v1
    v_lshl_add_u32 v{TMP+3}, v{TMP+4}, 3, v{TMP+3}
    v_bfe_u32 v{TMP+4}, v1, 3, 2                  ; bits: (r>>1) | (g&1)<<1
    v_lshl_add_u32 v{TMP+3}, v{TMP+4}, 5, v{TMP+3}
    s_mul_i32 s42, s40, {RING*WSL}
    v_add_u32 v{vTr[0]}, s42, v{TMP+3}
    v_xor_b32 v{vTr[1]}, 32, v{vTr[0]}
    v_xor_b32 v{vTr[2]}, 64, v{vTr[0]}
    v_xor_b32 v{vTr[3]}, 96, v{vTr[0]}
    ; sources
    s_mul_i32 s30, s40, {576*1152}
    s_add_u32 s31, s30, {576*1152}
    s_mul_i32 s43, s38, 21846
    s_lshr_b32 s43, s43, 16
    s_mul_i32 s43, s43, 3
    s_sub_u32 s43, s38, s43
    s_mul_i32 s43, s43, 3
    s_add_u32 s43, s43, s39
    s_sub_u32 s44, s43, 9
    s_cmp_ge_u32 s43, 9
    s_cselect_b32 s43, s44, s43
    s_mul_i32 s3, s43, {2*ROT}        ; r (even)
    s_mul_i32 s43, s3, {32*1152}
    s_add_u32 s43, s43, s30
    s_mul_i32 s44, s40, {144*1152}
    s_mov_b32 s45, s44
    s_mul_i32 s46, s38, 5
    """)
    for i in range(5):
        a(f"""
        s_add_u32 s47, s46, {i}
        s_and_b32 s58, s47, 1
        s_lshl_b32 s58, s58, 8
        s_lshr_b32 s47, s47, 1
        s_mul_i32 s{48+i}, s47, {144*1024}
        s_add_u32 s{48+i}, s{48+i}, s58
        s_mul_i32 s{53+i}, s47, {36*1024}
        s_add_u32 s{53+i}, s{53+i}, s58
        """)
    a(f"""
    s_mul_i32 s58, s40, {36*1024}
    s_add_u32 s58, s58, {UF}
    s_lshl_b32 s3, s3, 11
    s_add_u32 s58, s58, s3
    v_add_u32 v20, s58, v{vTok}
    s_lshl_b32 s58, s40, 13
    s_add_u32 s58, s58, {OF}
    v_add_u32 v21, s58, v{vTok}       ; o mains
    s_lshl_b32 s58, s40, 10
    s_add_u32 s58, s58, {OF + 32*1024}
    v_add_u32 v22, s58, v{vTok}       ; o tails
    s_mul_i32 s59, s38, 80
    s_mul_i32 s58, s40, 20
    s_add_u32 s59, s59, s58
    s_mul_i32 s59, s59, 1152
    s_add_u32 s59, s59, s41
    s_add_u32 s60, s59, {8*1152}
    s_add_u32 s61, s59, {16*1152}
    s_waitcnt lgkmcnt(0)
    """)
    a("s_mov_b32 s36, 4096")
    srd(a, 8, 4, SZ_X)
    srd(a, 12, 6, SZ_WO)
    srd(a, 16, 24, SZ_WOUT)
    srd(a, 20, 28, WS_USED)
    srd(a, 32, 26, SZ_X)

    NS = 23

    def issue(n):
        sl = n % RING
        ops = []
        tk = TOK + 20 * sl
        if n < 22:
            sr, soff, dr = (16, 43, [12, 13, 14, 15]) if n < 18 else (12, 44, [12, 13, 16, 17])
            for i in range(4):
                def f(i=i):
                    if i == 0:
                        a(f"s_add_u32 m0, s42, {sl*WSL}")
                    w.ivm(f"buffer_load_dwordx4 v{dr[i]}, s[{sr}:{sr+3}], s{soff} offen offset:{1024*i} lds", ("W", n))
                    if i == 3:
                        a(f"s_add_u32 s{soff}, s{soff}, {(32 if n < 18 else 36)*1152}")
                        if n < 18 and n % 2 == 1:
                            a(f"""
                            s_cmp_eq_u32 s43, s31
                            s_cselect_b32 s43, s30, s43
                            s_cselect_b32 s3, {(4096 - 18*2048) & 0xffffffff}, s36
                            """)
                ops.append(f)
            vt, sb, m = (20, 48, n) if n < 18 else (21, 53, n - 18)
            for i in range(5):
                def f(i=i):
                    w.ivm(f"buffer_load_dwordx4 v[{tk+4*i}:{tk+4*i+3}], v{vt}, s[20:23], s{sb + i} offen offset:{(m%2)*2048}", ("T", n))
                    if i == 4 and m % 2 == 1:
                        a(f"v_add_u32 v{vt}, {'s3' if n < 18 else 4096}, v{vt}")
                ops.append(f)
        else:
            def f():
                a(f"s_add_u32 m0, s42, {sl*WSL}")
                w.ivm(f"buffer_load_dwordx4 v18, s[12:15], s45 offen lds", ("W", n))
                w.ivm(f"buffer_load_dwordx4 v19, s[12:15], s45 offen offset:1024 lds", ("W", n))
            ops.append(f)
            def f():
                for i in range(20):
                    a(f"v_mov_b32 v{tk+i}, 0")
                a("s_mov_b32 exec_hi, 0")
                for i in range(5):
                    w.ivm(f"buffer_load_dwordx4 v[{tk+4*i}:{tk+4*i+3}], v22, s[20:23], s{53 + i} offen", ("T", n))
                a("s_mov_b32 exec_hi, -1")
            ops.append(f)
        return ops

    def wreads(n, nt):
        o = (n % RING) * WSL
        w.ilg(f"ds_read_b64_tr_b16 v[{WFR+4*nt}:{WFR+4*nt+1}], v{vTr[nt]} offset:{o}", (n, nt))
        w.ilg(f"ds_read_b64_tr_b16 v[{WFR+4*nt+2}:{WFR+4*nt+3}], v{vTr[nt]} offset:{o + 512}", (n, nt))

    for n in range(DEPTH):
        for f in issue(n):
            f()
    pf.stamp()
    w.wvm(("W", 0))
    for nt in range(4):
        wreads(0, nt)
    for n in range(NS):
        if n + 1 < NS:
            w.wvm(("W", n + 1))
        w.wvm(("T", n))
        pend = issue(n + DEPTH) if n + DEPTH < NS else []
        if n == NS - DEPTH:
            def fx():
                for i in range(3):
                    if i == 2:
                        a("s_mov_b32 exec_hi, 0")
                    w.ivm(f"buffer_load_dwordx4 v[{XR+4*i}:{XR+4*i+3}], v{vOut}, s[8:11], s{59+i} offen", "X")
                a("s_mov_b32 exec_hi, -1")
            pend = [fx]
        acc = 0 if n < 18 else 80
        first = n in (0, 18)
        tk = TOK + 20 * (n % RING)
        q = 0
        for nt in range(4):
            w.wlg((n, nt))
            for i in range(5):
                d = acc + 20 * nt + 4 * i
                c = "0" if first else f"a[{d}:{d+3}]"
                a(f"v_mfma_f32_16x16x32_bf16 a[{d}:{d+3}], v[{WFR+4*nt}:{WFR+4*nt+3}], v[{tk+4*i}:{tk+4*i+3}], {c}")
                q += 1
                if q % 2 == 0 and pend:
                    pend.pop(0)()
            if n + 1 < NS:
                wreads(n + 1, nt)
        for f in pend:
            f()
    pf.stamp()
    a(f"""
    s_barrier
    v_and_b32 v{TMP+1}, 15, v1
    v_lshlrev_b32 v{TMP+1}, 8, v{TMP+1}
    v_lshrrev_b32 v{TMP+2}, 4, v1
    v_and_b32 v{TMP+3}, 7, v1
    v_xor_b32 v{TMP+2}, v{TMP+2}, v{TMP+3}
    v_lshl_add_u32 v{TMP+1}, v{TMP+2}, 4, v{TMP+1}
    s_mul_i32 s58, s40, {PART}
    v_add_u32 v12, s58, v{TMP+1}
    v_xor_b32 v13, 64, v12
    v_add_u32 v14, {4*PART}, v12
    v_add_u32 v15, {4*PART}, v13
    """)
    for arr in range(2):
        for nt in range(4):
            for i in range(5):
                d = 80 * arr + 20 * nt + 4 * i
                a(f"ds_write_b128 v{12 + 2*arr + nt % 2}, a[{d}:{d+3}] offset:{i*4096 + (nt//2)*128}")
    a(f"""
    v_lshrrev_b32 v{TMP+1}, 3, v1
    s_mul_i32 s58, s40, 20
    v_add_u32 v{TMP+1}, s58, v{TMP+1}
    v_and_b32 v{TMP+2}, 7, v{TMP+1}
    v_and_b32 v{TMP+3}, 7, v1
    v_lshlrev_b32 v{TMP+3}, 1, v{TMP+3}
    v_xor_b32 v{TMP+3}, v{TMP+3}, v{TMP+2}
    v_lshlrev_b32 v{TMP+1}, 8, v{TMP+1}
    v_lshl_add_u32 v16, v{TMP+3}, 4, v{TMP+1}
    v_xor_b32 v17, 16, v16
    v_add_u32 v18, {4*PART}, v16
    v_add_u32 v19, {4*PART}, v17
    s_mov_b32 s56, {fbits(-math.log2(math.e))}
    s_waitcnt lgkmcnt(0)
    s_barrier
    """)
    pf.stamp()
    R = TOK
    for rd in range(3):
        if rd == 2:
            a("s_mov_b32 exec_hi, 0")
            for r in (16, 17, 18, 19):
                a(f"v_add_u32 v{r}, 4096, v{r}")
        for arr in range(2):
            for p in range(4):
                for hf in range(2):
                    d = R + 32 * arr + 8 * p + 4 * hf
                    a(f"ds_read_b128 v[{d}:{d+3}], v{16 + 2*arr + hf} offset:{p*PART + (rd % 2)*2048}")
        a("s_waitcnt lgkmcnt(8)")
        for e in range(8):
            a(f"v_add_f32 v{R+e}, v{R+e}, v{R+8+e}")
            a(f"v_add_f32 v{R+16+e}, v{R+16+e}, v{R+24+e}")
        for e in range(8):
            a(f"v_add_f32 v{R+e}, v{R+e}, v{R+16+e}")
        for e in range(8):
            a(f"v_mul_f32 v{R+8+e}, s56, v{R+e}")
        for e in range(8):
            a(f"v_exp_f32 v{R+8+e}, v{R+8+e}")
        for e in range(8):
            a(f"v_add_f32 v{R+8+e}, 1.0, v{R+8+e}")
        for e in range(8):
            a(f"v_rcp_f32 v{R+8+e}, v{R+8+e}")
        a("s_waitcnt lgkmcnt(0)")
        for e in range(8):
            a(f"v_add_f32 v{R+32+e}, v{R+32+e}, v{R+40+e}")
            a(f"v_add_f32 v{R+48+e}, v{R+48+e}, v{R+56+e}")
        for e in range(8):
            a(f"v_mul_f32 v{R+e}, v{R+e}, v{R+8+e}")
            a(f"v_add_f32 v{R+32+e}, v{R+32+e}, v{R+48+e}")
        if rd == 0:
            a("s_waitcnt vmcnt(0)")
        for e in range(4):
            a(f"v_lshlrev_b32 v{R+16+2*e}, 16, v{XR+4*rd+e}")
            a(f"v_and_b32 v{R+17+2*e}, 0xffff0000, v{XR+4*rd+e}")
        for e in range(8):
            a(f"v_fmac_f32 v{R+16+e}, v{R+e}, v{R+32+e}")
        for e in range(4):
            a(f"v_cvt_pk_bf16_f32 v{XR+4*rd+e}, v{R+16+2*e}, v{R+17+2*e}")
        a(f"buffer_store_dwordx4 v[{XR+4*rd}:{XR+4*rd+3}], v{vOut}, s[32:35], s{59+rd} offen")
    pf.dump(20, 4)
    a("K3_END:\ns_endpgm")
    return k
```

```python
import sys
from common import *
from k0 import build_k0
from k1 import build_k1

HEADER = open("recurrent_scan__mha_block__mixer_gmlp__prompt.s.ref").read().split("; Override launch")[0]

def build(kernels, path):
    out = HEADER
    for k in kernels:
        out += f"; @launch kernel={k.name} grid=({k.grid},1,1) block=({k.block},1,1) lds={k.lds}\n"
    out += '.amdgcn_target "amdgcn-amd-amdhsa--gfx950"\n.text\n'
    seen = []
    for k in kernels:
        if k.name in seen:
            continue
        seen.append(k.name)
        out += k.text()
    out += '.section .rodata,"a"\n'
    seen = []
    for k in kernels:
        if k.name in seen:
            continue
        seen.append(k.name)
        out += k.desc()
    open(path, "w").write(out)
    for k in kernels:
        print(k.name, "instrs", len(k.a.lines), "nops inserted", k.a.n_nops)

if __name__ == "__main__":
    import os
    from k2 import build_k2
    from k3 import build_k3
    pa = int(os.environ.get("PA", "1")); pg = int(os.environ.get("PG", "3"))
    ks = [build_k0(), build_k1(), build_k2(pa, pg), build_k3()]
    build(ks, sys.argv[1] if len(sys.argv) > 1 else "recurrent_scan__mha_block__mixer_gmlp__prompt.s")
```

```python
from asmlib import Asm

S, D, H, DH, FH = 2048, 576, 32, 18, 2304
KA_X, KA_WQKV, KA_WO, KA_BX, KA_WIN, KA_WSP, KA_BSP, KA_WOUT, KA_OUT, KA_DBG, KA_WS = [8 * i for i in range(11)]
SZ_X = S * D * 2
SZ_WQKV = D * 3 * D * 2
SZ_WO = D * D * 2
SZ_WIN = D * 2 * FH * 2
SZ_WSP = S * S * 2
SZ_BSP = S * 2
SZ_WOUT = FH * D * 2
SZ_WS = 268435456
XF = 0x0000000
QF = 0x0240000
OF = 0x0480000
KV = 0x06C0000
KMX = 0x0BC0000
FLG = 0x0C04000
STT = 0x0BC4000
WF = 0x0C10000
Z2N = 0x1380000
UF = 0x1D00000
GF = 0x2800000
WS_USED = 0x2B00000
import os
ZST = 131072 + int(os.environ.get('ZPAD', '0'))
WFG = 468 * 1024
WFB = 180 * 1024
WFC = 324 * 1024


def swap23(m):
    return (m & ~12) | ((m & 4) << 1) | ((m & 8) >> 1)


def srd(a, dst, ptr, nbytes):
    a(f"""
    s_mov_b32 s{dst}, s{ptr}
    s_and_b32 s{dst+1}, s{ptr+1}, 0xffff
    s_mov_b32 s{dst+2}, {nbytes}
    s_mov_b32 s{dst+3}, 0x00020000
    """)


class Kernel:
    def __init__(self, name, grid, block, lds, nvgpr, nagpr=0, nsgpr=96):
        self.name, self.grid, self.block, self.lds = name, grid, block, lds
        self.nvgpr, self.nagpr, self.nsgpr = nvgpr, nagpr, nsgpr
        self.a = Asm()

    def text(self):
        body = self.a.finish()
        return (f".globl {self.name}\n.p2align 8\n.type {self.name},@function\n{self.name}:\n"
                + "\n".join(body) + "\n")

    def desc(self):
        acc = (self.nvgpr + 3) // 4 * 4
        nfv = acc + self.nagpr if self.nagpr else self.nvgpr
        return f""".p2align 6
.amdhsa_kernel {self.name}
  .amdhsa_next_free_vgpr {nfv}
  .amdhsa_next_free_sgpr {self.nsgpr}
  .amdhsa_accum_offset {acc}
  .amdhsa_group_segment_fixed_size 0
  .amdhsa_kernarg_size 88
  .amdhsa_user_sgpr_count 2
  .amdhsa_user_sgpr_kernarg_segment_ptr 1
  .amdhsa_system_sgpr_workgroup_id_x 1
.end_amdhsa_kernel
"""


def reduce16(a, v, t, op="v_add_f32"):
    for mod in ("quad_perm:[1,0,3,2]", "quad_perm:[2,3,0,1]", "row_half_mirror", "row_mirror"):
        a(f"{op}_dpp v{v}, v{v}, v{v} {mod} row_mask:0xf bank_mask:0xf")


def reduce_x16(a, v, t, op="v_add_f32"):
    a(f"v_mov_b32 v{t}, v{v}")
    a(f"v_permlane16_swap_b32 v{v}, v{t}")
    a(f"{op} v{v}, v{v}, v{t}")


def reduce_x32(a, v, t, op="v_add_f32"):
    a(f"v_mov_b32 v{t}, v{v}")
    a(f"v_permlane32_swap_b32 v{v}, v{t}")
    a(f"{op} v{v}, v{v}, v{t}")


def round_bf16(a, v):
    a(f"v_cvt_pk_bf16_f32 v{v}, v{v}, v{v}")
    a(f"v_lshlrev_b32 v{v}, 16, v{v}")


def fbits(x):
    import struct
    return "0x%08x" % struct.unpack("<I", struct.pack("<f", x))[0]


class Waits:
    def __init__(self, a):
        self.a = a
        self.vm = []
        self.lg = []

    def ivm(self, text, tag=None):
        self.a(text); self.vm.append(tag)

    def ilg(self, text, tag=None):
        self.a(text); self.lg.append(tag)

    def _n(self, lst, tag):
        idx = [i for i, t in enumerate(lst) if t == tag]
        if not idx:
            return None
        return len(lst) - 1 - idx[-1]

    def wvm(self, tag):
        n = self._n(self.vm, tag)
        if n is None:
            return
        n = min(n, 63)
        self.a(f"s_waitcnt vmcnt({n})")
        self.vm = self.vm[len(self.vm) - n:] if n else []

    def wlg(self, tag):
        n = self._n(self.lg, tag)
        if n is None:
            return
        n = min(n, 15)
        self.a(f"s_waitcnt lgkmcnt({n})")
        self.lg = self.lg[len(self.lg) - n:] if n else []


import math
GC1 = -2.0 * math.log2(math.e) * math.sqrt(2.0 / math.pi)
GC2 = GC1 * 0.044715
QSCALE = math.log2(math.e) / math.sqrt(18.0)


def gelu_ops(x, t, sc1, sc2v):
    return [f"v_mul_f32 v{t}, v{x}, v{x}",
            f"v_fma_f32 v{t}, v{t}, v{sc2v}, s{sc1}",
            f"v_mul_f32 v{t}, v{t}, v{x}",
            f"v_exp_f32 v{t}, v{t}",
            f"v_add_f32 v{t}, 1.0, v{t}",
            f"v_rcp_f32 v{t}, v{t}",
            f"v_mul_f32 v{x}, v{x}, v{t}"]


def gelu_group(xs, temps, sc1, sc2v):
    seqs = [gelu_ops(x, t, sc1, sc2v) for x, t in zip(xs, temps)]
    out = []
    for step in range(7):
        for s in seqs:
            out.append(s[step])
    return out


import os
PROF = os.environ.get("PROF", "")
PROFOFF = 0x2600000


class Prof:
    def __init__(self, a, on, kidx=0, base=64):
        self.a, self.on, self.n, self.base, self.kidx = a, on, 2, base, kidx
        if on:
            a(f"s_memrealtime s[{base}:{base+1}]")

    def stamp(self):
        if not self.on:
            return
        self.a(f"s_memtime s[{self.base+2*self.n}:{self.base+2*self.n+1}]")
        self.n += 1

    def dump(self, sws, waves, swg="s2", vt=1):
        if not self.on:
            return
        a = self.a
        a("s_mov_b64 exec, -1")
        a("s_waitcnt vmcnt(0)")
        self.stamp()
        a(f"s_memrealtime s[{self.base+2}:{self.base+3}]")
        a(f"v_lshrrev_b32 v{vt}, 6, v0")
        a(f"v_lshlrev_b32 v{vt}, 6, v{vt}")
        a("s_waitcnt lgkmcnt(0)")
        a("s_mov_b64 exec, 1")
        a(f"s_mul_i32 s{self.base-2}, {swg}, {waves*64}")
        a(f"s_add_u32 s{self.base-2}, s{self.base-2}, {PROFOFF + self.kidx*0x40000}")
        for i in range(self.n):
            a(f"v_mov_b32 v{vt+1}, s{self.base+2*i}")
            a(f"buffer_store_dword v{vt+1}, v{vt}, s[{sws}:{sws+3}], s{self.base-2} offen offset:{4*i}")
            a("s_nop 1")
```

```python
from common import *

NT = " nt" if os.environ.get("NT0", "1") == "1" else ""
SC = " sc1" if os.environ.get("SC1", "1") == "1" else ""

def ln_finish(a, f, n, vmean, vvar, t, pk):
    round_bf16(a, vmean)
    round_bf16(a, vvar)
    a(f"v_add_f32 v{vvar}, {fbits(1e-5)}, v{vvar}")
    round_bf16(a, vvar)
    a(f"v_sqrt_f32 v{vvar}, v{vvar}")
    round_bf16(a, vvar)
    a(f"v_rcp_f32 v{vvar}, v{vvar}")
    for i in range(n):
        a(f"v_sub_f32 v{f+i}, v{f+i}, v{vmean}")
    for i in range(n // 2):
        a(f"v_cvt_pk_bf16_f32 v{pk+i}, v{f+2*i}, v{f+2*i+1}")
    for i in range(n // 2):
        a(f"v_lshlrev_b32 v{f+2*i}, 16, v{pk+i}")
        a(f"v_and_b32 v{f+2*i+1}, 0xffff0000, v{pk+i}")
    for i in range(n):
        a(f"v_mul_f32 v{f+i}, v{f+i}, v{vvar}")
    for i in range(n // 2):
        a(f"v_cvt_pk_bf16_f32 v{pk+i}, v{f+2*i}, v{f+2*i+1}")


def build_k0():
    NCV, NLN, NWB, NPF = 144, 256, 288, (16 if os.environ.get('CPF', '1') == '1' else 0)
    k = Kernel("k0_prep_kernel", NCV + NLN + NWB + NPF, 256, 36864, 64)
    a = k.a
    pf = Prof(a, bool(PROF), 0)
    pf.stamp()
    a(f"""
    s_cmp_lt_u32 s2, {NPF}
    s_cbranch_scc1 K0_CPF
    s_sub_u32 s2, s2, {NPF}
    s_cmp_ge_u32 s2, {NCV+NLN+NWB}
    s_cbranch_scc1 K0_END
    s_load_dwordx4 s[4:7], s[0:1], {KA_X}
    s_load_dwordx2 s[24:25], s[0:1], {KA_WIN}
    s_load_dwordx2 s[26:27], s[0:1], {KA_WS}
    v_and_b32 v1, 63, v0
    v_lshrrev_b32 v2, 6, v0
    s_waitcnt lgkmcnt(0)
    """)
    pf.stamp()
    srd(a, 8, 4, SZ_X)
    srd(a, 12, 6, SZ_WQKV)
    srd(a, 16, 24, SZ_WIN)
    srd(a, 20, 26, WS_USED)
    a(f"""
    s_cmp_ge_u32 s2, {NCV}
    s_cbranch_scc1 K0_NOTCV
    s_lshr_b32 s28, s2, 3             ; kp
    s_and_b32 s29, s2, 7              ; q
    v_readfirstlane_b32 s30, v2       ; wave
    s_mul_i32 s31, s28, {32*4*FH}
    s_mul_i32 s32, s29, 576
    s_add_u32 s31, s31, s32
    s_mul_i32 s33, s30, 9216
    s_mul_i32 s34, s30, {8*4*FH}
    s_add_u32 s31, s31, s34
    """)
    for i in range(9):
        a(f"""
        v_add_u32 v3, {64*i}, v1
        v_mul_u32_u24 v4, 1821, v3
        v_lshrrev_b32 v4, 16, v4
        v_mul_u32_u24 v5, 36, v4
        v_sub_u32 v5, v3, v5              ; chunk
        v_mul_u32_u24 v4, {2*FH}, v4
        v_lshl_add_u32 v4, v5, 4, v4
        s_add_u32 m0, s33, {1024*i}
        buffer_load_dwordx4 v4, s[16:19], s31 offen{NT} lds
        """)
    a(f"""
    s_lshr_b32 s35, s30, 1
    s_and_b32 s36, s30, 1
    v_lshrrev_b32 v3, 5, v1
    v_bfe_u32 v4, v1, 2, 2
    v_lshl_add_u32 v3, v3, 3, v4
    s_lshl_b32 s37, s36, 4
    v_add_u32 v3, s37, v3
    v_mul_u32_u24 v3, 1152, v3
    s_mul_i32 s37, s35, 288
    v_add_u32 v3, s37, v3
    v_and_b32 v4, 1, v1
    v_lshl_add_u32 v3, v4, 4, v3
    v_bfe_u32 v4, v1, 1, 1
    v_lshl_add_u32 v3, v4, 3, v3
    v_bfe_u32 v4, v1, 4, 1
    v_lshl_add_u32 v5, v4, 5, v3
    v_xor_b32 v4, 1, v4
    v_mul_u32_u24 v4, 576, v4
    v_add_u32 v6, v3, v4
    s_lshl_b32 s37, s29, 1
    s_add_u32 s37, s37, s35           ; g
    s_mul_i32 s37, s37, {WFG}
    s_add_u32 s37, s37, {WF}
    s_lshl_b32 s38, s28, 1
    s_add_u32 s38, s38, s36           ; ks
    s_mul_i32 s39, s38, 5120
    s_add_u32 s39, s39, s37
    s_add_u32 s40, s39, 4096
    s_lshl_b32 s41, s38, 12
    s_add_u32 s41, s41, s37
    s_add_u32 s41, s41, {WFB}
    v_lshlrev_b32 v7, 4, v1
    s_waitcnt vmcnt(0)
    s_barrier
    """)
    pf.stamp()
    for t in range(9):
        reg, off = (5, 576 + 64 * t) if t < 4 else ((6, 256) if t == 4 else (5, 64 * (t - 5)))
        a(f"ds_read_b64_tr_b16 v[{8+4*t}:{9+4*t}], v{reg} offset:{off}")
        a(f"ds_read_b64_tr_b16 v[{10+4*t}:{11+4*t}], v{reg} offset:{off + 4*1152}")
    for t in range(9):
        a(f"s_waitcnt lgkmcnt({min(15, 2*(8-t))})")
        so, off = (39, 1024 * t) if t < 4 else ((40, 0) if t == 4 else (41, 1024 * (t - 5)))
        a(f"buffer_store_dwordx4 v[{8+4*t}:{11+4*t}], v7, s[20:23], s{so} offen offset:{off}{SC}")
    pf.dump(20, 4)
    pf.n -= 2
    a(f"""
    s_endpgm
    K0_NOTCV:
    s_cmp_ge_u32 s2, {NCV+NLN}
    s_cbranch_scc1 K0_WB
    v_lshrrev_b32 v3, 5, v1
    v_lshl_add_u32 v3, v2, 1, v3
    s_sub_u32 s28, s2, {NCV}
    s_lshl_b32 s28, s28, 3
    v_add_u32 v3, s28, v3            ; row
    v_and_b32 v4, 31, v1             ; c0
    v_mul_u32_u24 v5, 1152, v3
    v_lshl_add_u32 v5, v4, 4, v5
    """)
    for i in range(12):
        a(f"v_mov_b32 v{8+i}, 0")
    a(f"""
    s_mov_b32 s30, 0x00ffffff
    s_mov_b32 s31, 0x00ffffff
    s_mov_b64 exec, s[30:31]
    buffer_load_dwordx4 v[8:11], v5, s[8:11], 0 offen
    buffer_load_dwordx4 v[12:15], v5, s[8:11], 0 offen offset:384
    buffer_load_dwordx4 v[16:19], v5, s[8:11], 0 offen offset:768
    s_mov_b64 exec, -1
    v_lshlrev_b32 v6, 2, v0
    v_mov_b32 v7, -1.0
    s_lshl_b32 s29, s28, 7
    s_add_u32 s29, s29, {STT}
    buffer_store_dword v7, v6, s[20:23], s29 offen
    s_cmp_ge_u32 s28, {36*8}
    s_cbranch_scc1 K0_NOFLG
    v_mov_b32 v7, 0
    s_add_u32 s29, s29, {FLG - STT}
    buffer_store_dword v7, v6, s[20:23], s29 offen
    s_waitcnt vmcnt(0)
    K0_NOFLG:
    v_lshrrev_b32 v6, 5, v3
    v_mul_u32_u24 v6, 36, v6
    v_lshrrev_b32 v7, 1, v4
    v_add_u32 v6, v6, v7
    v_lshlrev_b32 v6, 10, v6
    v_and_b32 v7, 1, v4
    v_lshlrev_b32 v7, 5, v7
    v_and_b32 v20, 31, v3
    v_add_u32 v7, v7, v20
    v_lshl_add_u32 v6, v7, 4, v6
    s_waitcnt vmcnt(1)
    """)
    F = 24
    pf.stamp()
    for i in range(12):
        a(f"v_lshlrev_b32 v{F+2*i}, 16, v{8+i}")
        a(f"v_and_b32 v{F+2*i+1}, 0xffff0000, v{8+i}")
    a(f"v_add_f32 v50, v{F}, v{F+1}")
    a(f"v_add_f32 v51, v{F+2}, v{F+3}")
    for i in range(4, 24, 2):
        a(f"v_add_f32 v50, v50, v{F+i}")
        a(f"v_add_f32 v51, v51, v{F+i+1}")
    a("v_add_f32 v50, v50, v51")
    reduce16(a, 50, 52)
    reduce_x16(a, 50, 52)
    a(f"v_mul_f32 v50, {fbits(1.0/576)}, v50")
    a("v_mov_b32 v51, 0\nv_mov_b32 v53, 0\ns_mov_b64 exec, s[30:31]")
    for i in range(24):
        a(f"v_sub_f32 v52, v{F+i}, v50")
        a(f"v_fmac_f32 v{51 if i % 2 == 0 else 53}, v52, v52")
    a("s_mov_b64 exec, -1\nv_add_f32 v51, v51, v53")
    reduce16(a, 51, 52)
    reduce_x16(a, 51, 52)
    a(f"v_mul_f32 v51, {fbits(1.0/576)}, v51")
    ln_finish(a, F, 24, 50, 51, 52, 8)
    a(f"""
    s_mov_b64 exec, s[30:31]
    s_mov_b32 s32, {XF}
    s_mov_b32 s33, {XF + 12*1024}
    s_mov_b32 s34, {XF + 24*1024}
    buffer_store_dwordx4 v[8:11], v6, s[20:23], s32 offen
    buffer_store_dwordx4 v[12:15], v6, s[20:23], s33 offen
    buffer_store_dwordx4 v[16:19], v6, s[20:23], s34 offen
    """)
    pf.dump(20, 4)
    pf.n -= 2
    a("s_endpgm")
    a.label("K0_WB")
    a(f"""
    s_sub_u32 s28, s2, {NCV+NLN}      ; j in 0..287
    s_mul_i32 s29, s28, 3641          ; j/18 = (j*3641)>>16 for j<288
    s_lshr_b32 s29, s29, 16           ; g
    s_mul_i32 s30, s29, 18
    s_sub_u32 s30, s28, s30
    v_readfirstlane_b32 s31, v2       ; T = wave
    v_and_b32 v3, 31, v1              ; m
    v_lshrrev_b32 v4, 5, v1           ; h
    v_and_b32 v5, 19, v3
    v_and_b32 v6, 4, v3
    v_lshlrev_b32 v6, 1, v6
    v_or_b32 v5, v5, v6
    v_and_b32 v6, 8, v3
    v_lshrrev_b32 v6, 1, v6
    v_or_b32 v5, v5, v6               ; phi
    s_lshl_b32 s32, s30, 5
    v_lshlrev_b32 v6, 3, v4
    v_add_u32 v6, s32, v6             ; k row
    s_mul_i32 s33, s29, 36            ; 36 g
    """)
    for i in range(16):
        a(f"v_mov_b32 v{16+i}, 0")
    a(f"""
    s_cmp_eq_u32 s31, 3
    s_cbranch_scc1 K0_WB3
    s_mul_i32 s34, s31, 576
    s_add_u32 s34, s34, s33
    v_lshrrev_b32 v7, 4, v5
    v_mul_u32_u24 v7, 18, v7
    v_and_b32 v8, 15, v5
    v_add3_u32 v7, v7, v8, s34
    s_branch K0_WBQ
    K0_WB3:
    v_lshrrev_b32 v10, 3, v5
    v_bfe_u32 v11, v5, 1, 2
    v_and_b32 v12, 1, v5
    v_mul_u32_u24 v7, 576, v11
    v_mul_u32_u24 v10, 18, v10
    v_add3_u32 v7, v7, v10, v12
    v_add3_u32 v7, v7, s33, 16
    v_cmp_gt_u32 vcc, 16, v5
    v_cmp_ne_u32 s[38:39], 3, v11
    s_and_b64 vcc, vcc, s[38:39]
    s_mov_b64 exec, vcc
    K0_WBQ:
    v_mul_u32_u24 v9, {3*D}, v6
    v_add_lshl_u32 v9, v9, v7, 1
    """)
    for ks in range(2):
        for j in range(8):
            r = 16 * ks + j
            a(f"s_mov_b32 s38, {r * 3 * D * 2}")
            a(f"buffer_load_ushort v{(24 if j % 2 else 16)+4*ks+j//2}, v9, s[12:15], s38 offen")
    a(f"""
    s_mov_b64 exec, -1
    s_mul_i32 s34, s29, {WFG}
    s_lshl_b32 s35, s30, 3
    s_add_u32 s35, s35, s31
    s_lshl_b32 s35, s35, 10
    s_add_u32 s34, s34, s35
    s_add_u32 s34, s34, {WF + WFC}
    s_add_u32 s35, s34, 4096
    v_lshlrev_b32 v9, 4, v1
    s_waitcnt vmcnt(0)
    """)
    pf.stamp()
    for i in range(8):
        a(f"v_lshl_or_b32 v{16+i}, v{24+i}, 16, v{16+i}")
    a(f"""
    buffer_store_dwordx4 v[16:19], v9, s[20:23], s34 offen{SC}
    buffer_store_dwordx4 v[20:23], v9, s[20:23], s35 offen{SC}
    """)
    pf.dump(20, 4)
    a("""
    K0_END:
    s_endpgm
    K0_CPF:
    s_getpc_b64 s[4:5]
    K0_PC:
    s_lshr_b32 s6, s2, 3
    s_lshl_b32 s6, s6, 15
    v_lshlrev_b32 v1, 7, v0
    v_add_u32 v1, s6, v1
    v_min_u32 v1, ALL_CODE_END-K0_PC-4, v1
    global_load_dword v2, v1, s[4:5]
    s_endpgm
    """)
    return k
```

```python
from common import *

SC = " sc1" if os.environ.get("SC1", "1") == "1" else ""

def build_k1(LA_A=int(os.environ.get('LAA', '10')), LA_B=40, INIT=4, ROT=int(os.environ.get('ROT', '0')), PFK1=int(os.environ.get('PFK1', '1')), SLGAP=int(os.environ.get('SLGAP', '40')), PFT0=int(os.environ.get('PFT0', '40')), PFDT=int(os.environ.get('PFDT', '4'))):
    RINGB = 160 * 1024
    k = Kernel("k1_gemm1_kernel", 256, 256, RINGB, 256, nagpr=144 + 60)
    a = k.a
    w = Waits(a)
    pf = Prof(a, bool(PROF), 1)
    ACC0, ACC1, Z2P, TMP = 16, 96, 160, 196
    AW = 144
    vL16, vRd, vZa, vZb, vGC2, vSum, vSq, vL1k = 3, 4, 5, 6, 7, 8, 9, 13
    a(f"""
    s_cmp_ge_u32 s2, 256
    s_cbranch_scc1 K1_END
    s_load_dwordx2 s[26:27], s[0:1], {KA_WS}
    s_load_dwordx2 s[4:5], s[0:1], {KA_WSP}
    s_load_dwordx2 s[6:7], s[0:1], {KA_WOUT}
    s_load_dwordx2 s[24:25], s[0:1], {KA_WO}
    v_and_b32 v1, 63, v0              ; lane
    v_lshrrev_b32 v2, 6, v0           ; wave
    s_and_b32 s28, s2, 7
    s_lshr_b32 s29, s2, 3
    s_and_b32 s30, s28, 1
    s_lshl_b32 s30, s30, 3
    s_and_b32 s31, s29, 7
    s_add_u32 s30, s30, s31           ; rb
    s_lshr_b32 s31, s28, 1
    s_lshl_b32 s31, s31, 2
    s_lshr_b32 s32, s29, 3
    s_add_u32 s31, s31, s32           ; g
    v_readfirstlane_b32 s32, v2       ; wave
    s_lshl_b32 s33, s30, 2
    s_add_u32 s33, s33, s32
    v_lshlrev_b32 v{vL16}, 4, v1
    s_and_b32 s53, s29, 7
    s_lshr_b32 s54, s29, 3
    s_lshl_b32 s54, s54, 1
    s_add_u32 s53, s53, s54
    s_sub_u32 s54, s53, 9
    s_cmp_ge_u32 s53, 9
    s_cselect_b32 s53, s54, s53
    s_mul_i32 s53, s53, {ROT}
    s_mul_i32 s38, s33, {36*1024}
    s_add_u32 s38, s38, {XF}
    s_add_u32 s35, s38, {36*1024}
    s_lshl_b32 s54, s53, 12
    s_add_u32 s34, s38, s54
    s_mul_i32 s36, s32, 5120
    s_lshl_b32 s39, s32, 12
    s_mul_i32 s54, s31, {WFG}
    s_add_u32 s54, s54, {WF}
    s_add_u32 s55, s54, s39
    s_add_u32 s57, s54, s36
    s_add_u32 s56, s57, {9*20480}
    s_mul_i32 s58, s53, 20480
    s_add_u32 s37, s57, s58
    s_lshl_b32 s58, s53, 14           ; rot*16K
    v_add_u32 v{vL1k}, 1024, v{vL16}
    v_mov_b32 v{vRd}, v{vL16}
    s_waitcnt lgkmcnt(0)
    """)
    srd(a, 16, 24, SZ_WO)
    srd(a, 8, 6, SZ_WOUT)
    srd(a, 20, 26, WS_USED)
    srd(a, 12, 4, SZ_WSP)
    pf.stamp()

    steps = []
    for g_, n_ in ((0, 5), (1, 4), (2, 4)):
        for ks in range(36):
            steps.append((g_, ks, n_))
    NT = len(steps)
    NUN = NT // 4
    usize = [steps[4 * u][2] * 4096 for u in range(NUN)]
    upos = []
    uwait = []
    pos_ = 0
    for u in range(NUN):
        if pos_ + usize[u] > RINGB:
            pos_ = 0
        upos.append(pos_)
        conf = [v for v in range(u) if upos[v] < pos_ + usize[u] and pos_ < upos[v] + usize[v]]
        uwait.append(max(conf) if conf else -1)
        pos_ += usize[u]
    order = []
    for u in range(NUN):
        if u < 9:
            order.append((4 * u, "x", u))
        order.append((4 * u, "u", u))
    st = dict(i=0, sub=0, done=-1)

    def item_ops(kind, u):
        ops = []
        if kind == "x":
            for i in range(4):
                ks = 4 * u + i
                ops.append(lambda ks=ks, i=i: w.ivm(
                    f"buffer_load_dwordx4 a[{4*ks}:{4*ks+3}], v{vL16}, s[20:23], s34 offen offset:{1024*i}", ("X", u)))
            def adv():
                a(f"""
                s_add_u32 s34, s34, 4096
                s_cmp_eq_u32 s34, s35
                s_cselect_b32 s34, s38, s34
                """)
            last = ops[-1]
            ops[-1] = lambda: (last(), adv())
        else:
            g_ = u // 9
            n_ = 5 if g_ == 0 else 4
            sw = 36 if g_ == 0 else 39
            def first():
                if u % 9 == 0 and u > 0:
                    a(f"""
                    s_add_u32 s57, s55, {WFC if g_ == 1 else WFB}
                    s_add_u32 s56, s57, {9*16384}
                    s_add_u32 s37, s57, s58
                    """)
                a(f"s_add_u32 m0, s{sw}, {upos[u]}")
                w.ivm(f"buffer_load_dwordx4 v{vL16}, s[20:23], s37 offen lds", ("U", u))
            ops.append(first)
            for i in range(1, 4):
                ops.append(lambda i=i: w.ivm(f"buffer_load_dwordx4 v{vL16}, s[20:23], s37 offen offset:{1024*i} lds", ("U", u)))
            if n_ == 5:
                def fifth():
                    a(f"s_add_u32 m0, s{sw}, {upos[u] + 1024}")
                    w.ivm(f"buffer_load_dwordx4 v{vL1k}, s[20:23], s37 offen offset:3072 lds", ("U", u))
                ops.append(fifth)
            def adv():
                a(f"""
                s_add_u32 s37, s37, {n_*4096}
                s_cmp_eq_u32 s37, s56
                s_cselect_b32 s37, s57, s37
                """)
            last = ops[-1]
            ops[-1] = lambda: (last(), adv())
        return ops

    cur = []

    def issue_next(t, force_upto=None):
        if not cur:
            if st["i"] >= len(order):
                return False
            nt_, kind, idx = order[st["i"]]
            if force_upto is not None:
                if nt_ > force_upto:
                    return False
                assert kind == "x" or uwait[idx] <= st["done"]
            else:
                la = LA_A if t < 30 else LA_B
                if nt_ > t + la or (kind == "u" and uwait[idx] > st["done"]):
                    return False
            cur.extend(item_ops(kind, idx))
            st["i"] += 1
        cur.pop(0)()
        return True

    def ensure(t_end):
        while issue_next(0, force_upto=t_end):
            pass

    rdbase = [0]

    def reads(t):
        g, ks, n = steps[t]
        fs = AW + 20 * (t % 3)
        out = []
        for T in range(n):
            off = upos[t // 4] + ((t % 4) * n + T) * 1024
            want = (off // 65536) * 65536
            if want != rdbase[0]:
                d = want - rdbase[0]
                out.append(lambda d=d: a(f"v_add_u32 v{vRd}, {d & 0xffffffff}, v{vRd}"))
                rdbase[0] = want
            out.append(lambda T=T, off=off, want=want: w.ilg(
                f"ds_read_b128 a[{fs+4*T}:{fs+4*T+3}], v{vRd} offset:{off - want}", (t, T)))
        return out

    def sync(tn):
        u = tn // 4
        ensure(tn)
        w.wvm(("U", u))
        a("s_barrier")
        st["done"] = u - 2

    ensure(INIT)
    pf.stamp()
    vQt, vKVt, vKm = 12, 14, 15
    a(f"""
    s_mov_b32 s40, {fbits(GC1)}
    v_mov_b32 v{vGC2}, {fbits(GC2)}
    v_mov_b32 v{vSum}, 0
    v_mov_b32 v{vSq}, 0
    s_mul_i32 s42, s33, 144
    s_mul_i32 s41, s31, 9
    s_add_u32 s42, s42, s41
    s_lshl_b32 s42, s42, 10
    s_add_u32 s42, s42, {UF}
    s_add_u32 s43, s42, 4096
    s_add_u32 s44, s42, 8192
    s_lshl_b32 s45, s33, 12
    s_add_u32 s45, s45, {STT}
    s_lshl_b32 s46, s31, 8
    s_add_u32 s46, s46, s45
    v_and_b32 v{TMP+1}, 31, v1              ; s
    v_lshrrev_b32 v{TMP}, 5, v1             ; h
    v_lshlrev_b32 v10, 3, v{TMP+1}
    v_lshl_add_u32 v11, v{TMP}, 11, v10
    s_lshl_b32 s47, s31, 7
    s_add_u32 s47, s47, s33           ; 2g*64 + rt
    s_mul_i32 s48, s47, 1152
    s_add_u32 s48, s48, {QF}
    s_add_u32 s59, s48, {64*1152}
    s_mul_i32 s49, s47, 2560
    s_add_u32 s49, s49, {KV}
    s_add_u32 s50, s49, {64*2560}
    s_mov_b32 s51, {fbits(QSCALE)}
    v_mul_u32_u24 v{vQt}, {64*1152}, v{TMP}
    v_lshl_add_u32 v{vQt}, v{TMP+1}, 2, v{vQt}
    v_mul_u32_u24 v{vKVt}, {64*2560}, v{TMP}
    v_lshl_add_u32 v{vKVt}, v{TMP+1}, 4, v{vKVt}
    v_lshlrev_b32 v{vKm}, 8, v{TMP}
    s_lshl_b32 s52, s47, 2
    s_add_u32 s52, s52, {KMX}
    v_lshlrev_b32 v{TMP+2}, 2, v{TMP}
    v_xor_b32 v{TMP+2}, v{TMP+2}, v{TMP+1}
    v_lshl_add_u32 v{TMP+2}, v{TMP}, 5, v{TMP+2}
    v_lshlrev_b32 v{vZa}, 4, v{TMP+2}
    s_and_b32 s53, s31, 1
    s_mul_i32 s53, s53, 1152
    v_xor_b32 v{vZa}, s53, v{vZa}
    v_xor_b32 v{vZb}, 1152, v{vZa}
    s_lshl_b32 s54, s33, 11
    s_add_u32 s54, s54, {Z2N}
    """)

    def gelu8(base, ti):
        return gelu_group(list(range(base, base + 8)), [TMP + 8 * (ti % 2) + i for i in range(8)], 40, vGC2)

    epiB, epiC = [], []
    E = lambda lst, s: lst.append(lambda s=s: a(s))
    ST = lambda lst, s, tag="st": lst.append(lambda s=s: w.ivm(s, tag))
    for gi in range(9):
        base = ACC0 + 8 * gi
        for s in gelu8(base, gi):
            E(epiB, s)
        for i in range(4):
            E(epiB, f"v_cvt_pk_bf16_f32 v{Z2P+4*gi+i}, v{base+2*i}, v{base+2*i+1}")
        for i in range(8):
            E(epiB, f"v_add_f32 v{vSum}, v{vSum}, v{base+i}")
            E(epiB, f"v_fmac_f32 v{vSq}, v{base+i}, v{base+i}")

    def pub1():
        reduce_x32(a, vSum, TMP + 16)
        reduce_x32(a, vSq, TMP + 16)
        a("s_mov_b32 exec_hi, 0")
        w.ivm(f"buffer_store_dwordx2 v[{vSum}:{vSq}], v10, s[20:23], s46 offen sc1", "STAT")
        a("s_mov_b32 exec_hi, -1")
    epiB.append(pub1)

    SR = TMP
    PK = TMP + 16
    Q, K, V, M = ACC1, ACC1 + 16, ACC1 + 32, ACC1 + 48
    base = ACC0 + 72
    for s in gelu8(base, 0):
        E(epiC, s)
    for i in range(4):
        E(epiC, f"v_cvt_pk_bf16_f32 v{PK+i}, v{base+2*i}, v{base+2*i+1}")
    for i in range(16):
        E(epiC, f"v_mul_f32 v{Q+i}, s51, v{Q+i}")
    for j, X in enumerate((Q, K, V)):
        for i in range(8):
            E(epiC, f"v_cvt_pk_bf16_f32 v{PK+4+8*j+i}, v{X+2*i}, v{X+2*i+1}")
    kk = PK + 33
    for s in f"""v_mul_f32 v{M}, s51, v{M}
    v_mul_f32 v{M+1}, s51, v{M+1}
    v_cvt_pk_bf16_f32 v{PK+32}, v{M}, v{M+1}
    v_cvt_pk_bf16_f32 v{PK+28}, v{M+2}, v{M+3}
    v_mov_b32 v{PK+29}, 0x3f803f80
    v_cvt_pk_bf16_f32 v{PK+30}, v{M+4}, v{M+5}
    v_mov_b32 v{PK+31}, 0x00003f80
    v_mul_f32 v{kk}, v{K}, v{K}
    v_mul_f32 v{kk+1}, v{K+8}, v{K+8}""".split("\n"):
        E(epiC, s.strip())
    for i in range(1, 8):
        E(epiC, f"v_fmac_f32 v{kk}, v{K+i}, v{K+i}")
        E(epiC, f"v_fmac_f32 v{kk+1}, v{K+8+i}, v{K+8+i}")
    for s in [f"v_permlane32_swap_b32 v{kk}, v{kk+1}", f"v_add_f32 v{kk}, v{kk}, v{kk+1}",
              f"v_fmac_f32 v{kk}, v{M+2}, v{M+2}", f"v_fmac_f32 v{kk}, v{M+3}, v{M+3}"]:
        E(epiC, s)
    for mod in ("quad_perm:[1,0,3,2]", "quad_perm:[2,3,0,1]", "row_half_mirror", "row_mirror"):
        E(epiC, f"v_max_f32_dpp v{kk}, v{kk}, v{kk} {mod} row_mask:0xf bank_mask:0xf")
    for s in [f"v_mov_b32 v{kk+1}, v{kk}", f"v_permlane16_swap_b32 v{kk}, v{kk+1}", f"v_max_f32 v{kk}, v{kk}, v{kk+1}"]:
        E(epiC, s)
    ZU = [ACC1 + 8 * gi for gi in range(8)] + [ACC0 + 72]
    for gi in range(4):
        for i in range(4):
            E(epiC, f"v_lshlrev_b32 v{ZU[gi]+2*i}, 16, v{Z2P+4*gi+i}")
            E(epiC, f"v_and_b32 v{ZU[gi]+2*i+1}, 0xffff0000, v{Z2P+4*gi+i}")
    sl_ = [f"buffer_load_dwordx2 v[{SR+2*i}:{SR+2*i+1}], v11, s[20:23], s45 offen offset:{256*i} sc1" for i in range(8)]
    for s in sl_:
        ST(epiC, s, "SL")
    ST(epiC, f"buffer_store_dwordx4 v[{PK}:{PK+3}], v{vL16}, s[20:23], s44 offen{SC}")
    ST(epiC, f"buffer_store_dwordx4 v[{PK+4}:{PK+7}], v{vL16}, s[20:23], s48 offen{SC}")
    ST(epiC, f"buffer_store_dwordx4 v[{PK+8}:{PK+11}], v{vL16}, s[20:23], s59 offen{SC}")
    ST(epiC, f"buffer_store_dwordx4 v[{PK+12}:{PK+15}], v{vL16}, s[20:23], s49 offen{SC}")
    ST(epiC, f"buffer_store_dwordx4 v[{PK+16}:{PK+19}], v{vL16}, s[20:23], s50 offen{SC}")
    ST(epiC, f"buffer_store_dwordx4 v[{PK+20}:{PK+23}], v{vL16}, s[20:23], s49 offen offset:1024{SC}")
    ST(epiC, f"buffer_store_dwordx4 v[{PK+24}:{PK+27}], v{vL16}, s[20:23], s50 offen offset:1024{SC}")
    ST(epiC, f"buffer_store_dwordx4 v[{PK+28}:{PK+31}], v{vKVt}, s[20:23], s49 offen offset:2048{SC}")
    ST(epiC, f"buffer_store_dword v{PK+32}, v{vQt}, s[20:23], s48 offen offset:1024{SC}")
    def kst():
        a("s_mov_b32 exec_lo, 1\ns_mov_b32 exec_hi, 1")
        w.ivm(f"buffer_store_dword v{kk}, v{vKm}, s[20:23], s52 offen", "st")
        a("s_mov_b64 exec, -1")
    epiC.append(kst)
    vPf, vPd = TMP + 58, TMP + 59
    a(f"""
    v_lshlrev_b32 v{vPf}, 7, v1
    v_mov_b32 v{vPd}, 0x40000000
    v_cmp_gt_u32 vcc, 16, v1
    v_cndmask_b32 v{vPf}, v{vPd}, v{vPf}, vcc
    s_lshl_b32 s60, s2, 2
    s_add_u32 s60, s60, s32
    s_mul_i32 s61, s60, {21*128}
    s_mul_i32 s3, s60, {6*128}
    s_lshl_b32 s60, s60, 13
    """)
    pfl = {}
    if PFK1:
        t0, dt = PFT0, PFDT
        pfl[t0] = f"buffer_load_dword v{vPd}, v{vPf}, s[12:15], s60 offen"
        pfl[t0 + dt] = f"buffer_load_dword v{vPd}, v{vPf}, s[12:15], s60 offen offset:2048\ns_add_u32 s60, s60, 4096"
        pfl[t0 + 2 * dt] = pfl[t0]
        pfl[t0 + 3 * dt] = pfl[t0 + dt]
        pfl[t0 + 4 * dt] = f"buffer_load_dword v{vPd}, v{vPf}, s[8:11], s61 offen"
        pfl[t0 + 5 * dt] = f"buffer_load_dword v{vPd}, v{vPf}, s[8:11], s61 offen offset:640"
        pfl[t0 + 6 * dt] = f"buffer_load_dword v{vPd}, v{vPf}, s[16:19], s3 offen"
    for gi in range(4, 9):
        for i in range(4):
            E(epiC, f"v_lshlrev_b32 v{ZU[gi]+2*i}, 16, v{Z2P+4*gi+i}")
            E(epiC, f"v_and_b32 v{ZU[gi]+2*i+1}, 0xffff0000, v{Z2P+4*gi+i}")
    for _ in range(SLGAP):
        epiC.append(lambda: None)
    vm, vv = SR, SR + 1
    def stats():
        w.wvm("SL")
        a(f"""
        s_mov_b32 s53, 0
        K1_POLL:
        v_min3_f32 v{vSum}, v{SR+1}, v{SR+3}, v{SR+5}
        v_min3_f32 v{vSum}, v{vSum}, v{SR+7}, v{SR+9}
        v_min3_f32 v{vSum}, v{vSum}, v{SR+11}, v{SR+13}
        v_min_f32 v{vSum}, v{vSum}, v{SR+15}
        v_cmp_gt_f32 vcc, 0, v{vSum}
        s_cmp_lg_u64 vcc, 0
        s_cbranch_scc1 K1_RETRY
        K1_GOT:
        """)
    epiC.append(stats)
    for i in range(1, 8):
        E(epiC, f"v_add_f32 v{SR}, v{SR}, v{SR+2*i}")
        E(epiC, f"v_add_f32 v{SR+1}, v{SR+1}, v{SR+2*i+1}")
    for s in f"""v_mov_b32 v{SR+2}, v{SR}
    v_mov_b32 v{SR+3}, v{SR+1}
    v_permlane32_swap_b32 v{SR}, v{SR+2}
    v_permlane32_swap_b32 v{SR+1}, v{SR+3}
    v_add_f32 v{SR}, v{SR}, v{SR+2}
    v_add_f32 v{SR+1}, v{SR+1}, v{SR+3}
    v_mul_f32 v{vm}, {fbits(1.0/FH)}, v{vm}
    v_mul_f32 v{vv}, {fbits(1.0/FH)}, v{vv}
    v_fma_f32 v{vv}, -v{vm}, v{vm}, v{vv}
    v_max_f32 v{vv}, 0, v{vv}
    v_cvt_pk_bf16_f32 v{vm}, v{vm}, v{vm}
    v_cvt_pk_bf16_f32 v{vv}, v{vv}, v{vv}
    v_lshlrev_b32 v{vm}, 16, v{vm}
    v_lshlrev_b32 v{vv}, 16, v{vv}
    v_add_f32 v{vv}, {fbits(1e-5)}, v{vv}
    v_cvt_pk_bf16_f32 v{vv}, v{vv}, v{vv}
    v_lshlrev_b32 v{vv}, 16, v{vv}
    v_sqrt_f32 v{vv}, v{vv}
    v_cvt_pk_bf16_f32 v{vv}, v{vv}, v{vv}
    v_lshlrev_b32 v{vv}, 16, v{vv}
    v_rcp_f32 v{vv}, v{vv}
    v_mul_f32 v{vm}, -v{vm}, v{vv}""".split("\n"):
        E(epiC, s.strip())
    for gi in range(9):
        b = ZU[gi]
        for i in range(8):
            E(epiC, f"v_fma_f32 v{b+i}, v{b+i}, v{vv}, v{vm}")
        for i in range(4):
            E(epiC, f"v_cvt_pk_bf16_f32 v{Z2P+4*gi+i}, v{b+2*i}, v{b+2*i+1}")
        def zst(gi=gi):
            a(f"""
            s_add_u32 s53, s41, {gi}
            s_lshr_b32 s53, s53, 1
            s_mul_i32 s53, s53, {ZST}
            s_add_u32 s53, s53, s54
            """)
            w.ivm(f"buffer_store_dwordx4 v[{Z2P+4*gi}:{Z2P+4*gi+3}], v{vZa if gi % 2 == 0 else vZb}, s[20:23], s53 offen{SC}", "st")
        epiC.append(zst)
    pos = {1: 0, 2: 0}

    sync(0)
    pf.stamp()
    for f in reads(0) + reads(1):
        f()
    slot = {1: 0, 2: 0}
    for t in range(NT):
        g, ks, n = steps[t]
        if t in (12, 36, 72):
            pf.stamp()
        tn = t + 2
        if tn < NT and tn % 4 == 0:
            sync(tn)
        if t in pfl:
            w.ivm(pfl[t], "pf")
        rd = reads(tn) if tn < NT else []
        fs = AW + 20 * (t % 3)
        acc = ACC1 if g == 1 else ACC0
        nrd = len(rd)
        for T in range(n):
            if T % 2 == 0:
                w.wlg((t, min(T + 1, n - 1)))
            c = "0" if ks == 0 else f"v[{acc+16*T}:{acc+16*T+15}]"
            a(f"v_mfma_f32_32x32x16_bf16 v[{acc+16*T}:{acc+16*T+15}], a[{fs+4*T}:{fs+4*T+3}], a[{4*ks}:{4*ks+3}], {c}")
            for f in rd[(nrd * T) // n:(nrd * (T + 1)) // n]:
                f()
            if T % 2 == 0 or g == 0:
                issue_next(t)
            if g >= 1 and ks >= 1:
                epi = epiB if g == 1 else epiC
                slot[g] += 1
                tot = 35 * 4 - (4 if g == 1 else 0)
                tgt = min(len(epi), (len(epi) * slot[g] + tot - 1) // tot)
                while pos[g] < tgt:
                    epi[pos[g]]()
                    pos[g] += 1
    assert pos[1] == len(epiB) and pos[2] == len(epiC) and st["i"] == len(order) and not cur
    pf.stamp()
    for gi in range(8):
        base = ACC0 + 8 * gi
        for s in gelu8(base, gi):
            a(s)
        pk = ACC1 + 4 * gi
        for i in range(4):
            a(f"v_cvt_pk_bf16_f32 v{pk+i}, v{base+2*i}, v{base+2*i+1}")
        a(f"buffer_store_dwordx4 v[{pk}:{pk+3}], v{vL16}, s[20:23], s{42 + gi // 4} offen offset:{(gi % 4) * 1024}{SC}")
    pf.stamp()
    pf.dump(20, 4)
    a(f"""
    K1_END:
    s_endpgm
    K1_RETRY:
    s_add_u32 s53, s53, 1
    s_cmp_ge_u32 s53, 0x40000
    s_cbranch_scc1 K1_GOT
    s_sleep 1
    """)
    for s in sl_:
        a(s)
    a("""
    s_waitcnt vmcnt(0)
    s_branch K1_POLL
    """)
    return k
```

```python
from common import *
from k2a import attn_body
from k2b import gemm2_body
from k3 import outproj_body

def build_k2(prio_attn=1, prio_gemm=0, kidx=2):
    k = Kernel("k2_mix_kernel", 512, 256, 81920, 232)
    a = k.a
    pf = Prof(a, bool(PROF), kidx)
    pf.stamp()
    a(f"""
    s_cmp_ge_u32 s2, 512
    s_cbranch_scc1 K2_END
    s_load_dwordx4 s[4:7], s[0:1], {KA_WSP}
    s_load_dwordx2 s[24:25], s[0:1], {KA_WOUT}
    s_load_dwordx2 s[26:27], s[0:1], {KA_WS}
    s_waitcnt lgkmcnt(0)
    """)
    srd(a, 12, 4, SZ_WSP)
    srd(a, 16, 6, SZ_BSP)
    srd(a, 20, 26, WS_USED)
    a("""
    s_cmp_lt_u32 s2, 256
    s_cbranch_scc1 K2_ATT
    """)
    if prio_gemm:
        a(f"s_setprio {prio_gemm}")
    n0 = pf.n
    a("s_sub_u32 s3, s2, 256")
    srd(a, 8, 24, SZ_WOUT)
    gemm2_body(a, pf, "s3", 20, 12, 16, loop_prio=int(os.environ.get("GLP", "2")))
    a(f"""
    s_waitcnt vmcnt(0)
    s_barrier
    s_cmp_lg_u32 s32, 0
    s_cbranch_scc1 K2_NOSIG
    s_lshl_b32 s30, s30, 7
    s_lshl_b32 s31, s31, 3
    s_lshl_b32 s33, s33, 2
    s_add_u32 s30, s30, s31
    s_add_u32 s30, s30, s33
    s_add_u32 s30, s30, {FLG}
    v_mov_b32 v1, 0
    v_mov_b32 v2, 1
    s_mov_b64 exec, 1
    buffer_store_dword v2, v1, s[20:23], s30 offen sc1
    s_mov_b64 exec, -1
    K2_NOSIG:
    """)
    pf.stamp()
    outproj_body(a, pf, "s3", 20, 8, "K2_END", prio=int(os.environ.get("OPP", "0")))
    pf.dump(20, 4)
    a("s_endpgm")
    a.label("K2_ATT")
    if os.environ.get("NOATT"):
        a("s_endpgm")
    pf.n = n0
    if prio_attn:
        a(f"s_setprio {prio_attn}")
    attn_body(a, pf, "s2", 20)
    pf.dump(20, 4)
    a("K2_END:\ns_endpgm")
    return k
```

```python
from common import *

SC = " sc1"
CH = 20480
NSL = 4

def attn_body(a, pf, sid, sws, L="AT", swout=None, swo=None, swsp=None):
    SA, SB, OA, OB = 16, 32, 48, 64
    PA, PB = 80, 88
    QMA, QMB, QTA, QTB = 96, 100, 104, 108
    KM = [112, 116]; KT = [120, 124]
    VV = [128, 136]
    vK, vKt, vV, vL16 = 2, 3, 4, 5
    T0 = 144
    a(f"""
    v_and_b32 v1, 63, v0
    v_lshrrev_b32 v6, 6, v0
    s_and_b32 s28, {sid}, 7
    s_lshr_b32 s29, {sid}, 3
    s_lshl_b32 s30, s28, 2
    s_lshr_b32 s31, s29, 3
    s_add_u32 s30, s30, s31           ; head
    s_and_b32 s31, s29, 7             ; qb
    v_readfirstlane_b32 s32, v6       ; wave
    v_lshlrev_b32 v{vL16}, 4, v1
    s_mul_i32 s33, s30, {64*2560}
    s_add_u32 s33, s33, {KV}
    s_mul_i32 s35, s32, 5120
    s_lshl_b32 s36, s31, 3
    s_lshl_b32 s37, s32, 1
    s_add_u32 s36, s36, s37           ; qt
    s_lshl_b32 s37, s30, 6
    s_add_u32 s37, s37, s36
    s_mul_i32 s37, s37, 1152
    s_add_u32 s37, s37, {QF}
    s_lshl_b32 s38, s30, 8
    s_add_u32 s38, s38, {KMX}
    v_lshlrev_b32 v7, 2, v1           ; lane*4
    v_mov_b32 v{QTA}, 0
    v_mov_b32 v{QTB}, 0
    buffer_load_dwordx4 v[{QMA}:{QMA+3}], v{vL16}, s[{sws}:{sws+3}], s37 offen
    buffer_load_dwordx4 v[{QMB}:{QMB+3}], v{vL16}, s[{sws}:{sws+3}], s37 offen offset:1152
    buffer_load_dword v{T0}, v7, s[{sws}:{sws+3}], s38 offen
    s_mov_b32 exec_hi, 0
    buffer_load_dword v{QTA}, v7, s[{sws}:{sws+3}], s37 offen offset:1024
    buffer_load_dword v{QTB}, v7, s[{sws}:{sws+3}], s37 offen offset:{1152+1024}
    s_mov_b32 exec_hi, -1
    s_mov_b32 s39, 0
    """)

    def dma_chunk():
        a(f"""
        s_mov_b32 m0, s40
        s_add_u32 s41, s34, 4096
        buffer_load_dwordx4 v{vL16}, s[{sws}:{sws+3}], s34 offen lds
        buffer_load_dwordx4 v{vL16}, s[{sws}:{sws+3}], s34 offen offset:1024 lds
        buffer_load_dwordx4 v{vL16}, s[{sws}:{sws+3}], s34 offen offset:2048 lds
        buffer_load_dwordx4 v{vL16}, s[{sws}:{sws+3}], s34 offen offset:3072 lds
        s_add_u32 m0, s40, 4096
        s_add_u32 s34, s34, {CH}
        buffer_load_dwordx4 v{vL16}, s[{sws}:{sws+3}], s41 offen lds
        s_add_u32 s40, s40, {CH}
        s_sub_u32 s41, s40, {NSL*CH}
        s_cmp_ge_u32 s40, {NSL*CH}
        s_cselect_b32 s40, s41, s40
        """)

    a.label(f"{L}_PASS")
    a(f"""
    s_add_u32 s34, s33, s35
    s_mov_b32 s40, s35
    """)
    for c in range(3):
        dma_chunk()
    a(f"""
    v_mov_b32 v{vK}, v{vL16}
    v_and_b32 v8, 31, v1
    v_lshrrev_b32 v9, 5, v1           ; h
    v_lshlrev_b32 v{vKt}, 4, v8
    v_lshl_add_u32 v{vKt}, v9, 2, v{vKt}
    v_add_u32 v{vKt}, 2048, v{vKt}
    v_bfe_u32 v10, v1, 2, 2           ; r
    v_lshl_add_u32 v10, v9, 2, v10    ; key = 4h + r
    v_lshlrev_b32 v10, 4, v10
    v_and_b32 v11, 1, v1
    v_lshlrev_b32 v11, 9, v11
    v_bfe_u32 v12, v1, 1, 1
    v_lshl_add_u32 v11, v12, 3, v11
    v_add_u32 v11, 1024, v11
    v_mov_b32 v12, {2048+8}
    v_and_b32 v13, 16, v1
    v_cmp_ne_u32 vcc, 0, v13
    v_cndmask_b32 v11, v11, v12, vcc
    v_add_u32 v{vV}, v10, v11
    """)
    for r in list(range(OA, OA + 32)) + list(range(PB + 4, PB + 8)) + list(range(VV[1], VV[1] + 8)) \
            + [QTA + 1, QTA + 2, QTA + 3, QTB + 1, QTB + 2, QTB + 3] + [KT[0] + i for i in (1, 2, 3)] + [KT[1] + i for i in (1, 2, 3)]:
        a(f"v_mov_b32 v{r}, 0")
    a(f"""
    s_cmp_lg_u32 s39, 0
    s_cbranch_scc1 {L}_GO
    s_waitcnt vmcnt(15)
    """)
    reduce16(a, T0, T0 + 1, "v_max_f32")
    reduce_x16(a, T0, T0 + 1, "v_max_f32")
    reduce_x32(a, T0, T0 + 1, "v_max_f32")
    for (QM, QT, t) in ((QMA, QTA, T0 + 2), (QMB, QTB, T0 + 3)):
        a(f"v_dot2_f32_bf16 v{t}, v{QT}, v{QT}, 0")
        for i in range(4):
            a(f"v_dot2_f32_bf16 v{t}, v{QM+i}, v{QM+i}, v{t}")
    a("s_nop 2")
    for (QT, t) in ((QTA, T0 + 2), (QTB, T0 + 3)):
        reduce_x32(a, t, T0 + 1)
        a(f"""
        v_mul_f32 v{t}, v{t}, v{T0}
        v_sqrt_f32 v{t}, v{t}
        v_mul_f32 v{t}, {fbits(-1.02)}, v{t}
        v_mov_b32 v{T0+1}, 0
        v_cvt_pk_bf16_f32 v{t}, v{t}, v{T0+1}
        s_mov_b32 exec_lo, 0
        v_mov_b32 v{QT}, v{t}
        s_mov_b32 exec_lo, -1
        """)
    a.label(f"{L}_GO")
    pf.stamp()
    a(f"""
    s_waitcnt vmcnt(10)
    s_barrier
    ds_read_b128 v[{KM[0]}:{KM[0]+3}], v{vK}
    ds_read_b32 v{KT[0]}, v{vKt}
    ds_read_b128 v[{KM[1]}:{KM[1]+3}], v{vK} offset:2560
    ds_read_b32 v{KT[1]}, v{vKt} offset:2560
    """)
    for p in range(2):
        for i in range(2):
            a(f"ds_read_b64_tr_b16 v[{VV[0]+4*p+2*i}:{VV[0]+4*p+2*i+1}], v{vV} offset:{16*(16*p+8*i)}")
    mf = lambda d, x, y, c: f"v_mfma_f32_32x32x16_bf16 v[{d}:{d+15}], v[{x}:{x+3}], v[{y}:{y+3}], " + (f"v[{d}:{d+15}]" if c else "0")
    PFW, PFZ, PFD = T0 + 8, T0 + 9, T0 + 10

    def touch():
        a(f"""
        buffer_load_dword v{PFD}, v{PFW}, s[{swsp}:{swsp+3}], s50 offen
        buffer_load_dword v{PFD+1}, v{PFZ}, s[{sws}:{sws+3}], s51 offen
        s_add_u32 s50, s50, 512
        s_add_u32 s51, s51, 16384
        """)
    if swout is not None:
        a(f"""
        s_lshl_b32 s52, s29, 2
        s_add_u32 s52, s52, s32           ; wave index within this id%8 class
        s_and_b32 s50, s28, 1
        s_lshl_b32 s50, s50, 10
        s_lshl_b32 s51, s52, 3
        s_add_u32 s50, s50, s51
        s_lshl_b32 s50, s50, 12
        v_lshrrev_b32 v{PFW}, 2, v1
        v_lshlrev_b32 v{PFW}, 12, v{PFW}
        v_and_b32 v{PFZ}, 3, v1
        v_lshl_add_u32 v{PFW}, v{PFZ}, 7, v{PFW}
        v_mov_b32 v{PFD}, 0x40000000
        v_cmp_gt_u32 vcc, 32, v1
        v_cndmask_b32 v{PFW}, v{PFD}, v{PFW}, vcc
        v_lshlrev_b32 v{PFZ}, 17, v1
        v_cmp_gt_u32 vcc, 18, v1
        v_cndmask_b32 v{PFZ}, v{PFD}, v{PFZ}, vcc
        s_lshr_b32 s51, s28, 1
        s_mul_i32 s51, s51, {18*131072}
        s_lshl_b32 s53, s52, 7
        s_add_u32 s51, s51, s53
        s_add_u32 s51, s51, {Z2N}
        s_mul_i32 s54, s52, {162*128}
        s_mul_i32 s55, s52, {41*128}
        """)
        touch()
        touch()
    a(f"""
    s_waitcnt lgkmcnt(0)
    {mf(SA, KT[0], QTA, False)}
    {mf(SA, KM[0], QMA, True)}
    s_mov_b32 s42, 0
    s_mov_b32 s43, 0
    s_nop 9
    """)
    pf.stamp()
    a.label(f"{L}_LOOP")
    NHI = int(os.environ.get("NHI", "1"))
    a(f"""
    s_cmp_lg_u32 s42, {NHI}
    s_cbranch_scc1 {L}_KEEP
    s_setprio 1
    {L}_KEEP:
    """)
    PAIR = int(os.environ.get("PAIR", "0"))

    def chunk_sync():
        a(f"""
        s_cmp_ge_u32 s42, 5
        s_cbranch_scc1 {L}_NODMA
        s_waitcnt vmcnt(5)
        s_barrier
        """)
        if swout is not None:
            touch()
        dma_chunk()
        a(f"""
        s_branch {L}_DMADONE
        {L}_NODMA:
        s_waitcnt vmcnt(0)
        s_barrier
        """)
        if swout is not None:
            a(f"""
            s_cmp_lg_u32 s42, 5
            s_cbranch_scc1 {L}_PFW
            """)
            touch()
            a(f"""
            v_lshlrev_b32 v{PFW}, 7, v1
            buffer_load_dword v{PFD}, v{PFW}, s[{swo}:{swo+3}], s55 offen
            {L}_PFW:
            buffer_load_dword v{PFD+1}, v{PFW}, s[{swout}:{swout+3}], s54 offen
            s_add_u32 s54, s54, {54*128}
            """)
        a(f"""
        {L}_DMADONE:
        s_add_u32 s43, s43, {CH}
        s_mov_b32 s44, {CH}
        s_cmp_ge_u32 s43, {NSL*CH}
        s_cselect_b32 s44, {-(NSL-1)*CH & 0xffffffff}, s44
        s_cselect_b32 s43, 0, s43
        v_add_u32 v{vK}, s44, v{vK}
        v_add_u32 v{vKt}, s44, v{vKt}
        """)

    for t in range(8):
        b, nb = t % 2, (t + 1) % 2
        ko = ((t + 2) % 8) * 2560
        vo = ((t + 1) % 8) * 2560
        kr = [f"ds_read_b128 v[{KM[b]}:{KM[b]+3}], v{vK} offset:{ko}", f"ds_read_b32 v{KT[b]}, v{vKt} offset:{ko}"]
        vr = [f"ds_read_b64_tr_b16 v[{VV[nb]+4*p+2*i}:{VV[nb]+4*p+2*i+1}], v{vV} offset:{vo + 16*(16*p+8*i)}" for p in range(2) for i in range(2)]
        if PAIR:
            grp = [[mf(SB, KT[b], QTB, False), mf(SB, KM[b], QMB, True)],
                   [mf(OB, VV[nb] + 4, PB + 4, True), mf(OA, VV[b], PA, True)],
                   [mf(SA, KT[nb], QTA, False), mf(SA, KM[nb], QMA, True)],
                   [mf(OA, VV[b] + 4, PA + 4, True), mf(OB, VV[b], PB, True)]]
            for g in range(4):
                if g == 1:
                    a("s_waitcnt lgkmcnt(0)")
                a(grp[g][0])
                a(grp[g][1])
                if g == 1:
                    if t == 6:
                        chunk_sync()
                    if t == 7:
                        a(f"v_add_u32 v{vV}, s44, v{vV}")
                    a.ext(kr + vr)
                S_, P_ = (SA, PA) if g < 2 else (SB, PB)
                o = 8 * (g % 2)
                for i in range(8):
                    a(f"v_exp_f32 v{S_+o+i}, v{S_+o+i}")
                for i in range(4):
                    a(f"v_cvt_pk_bf16_f32 v{P_+o//2+i}, v{S_+o+2*i}, v{S_+o+2*i+1}")
        else:
            mfs = [mf(SB, KT[b], QTB, False), mf(OB, VV[nb] + 4, PB + 4, True), mf(SB, KM[b], QMB, True), mf(OA, VV[b], PA, True),
                   mf(SA, KT[nb], QTA, False), mf(OA, VV[b] + 4, PA + 4, True), mf(SA, KM[nb], QMA, True), mf(OB, VV[b], PB, True)]
            for sl in range(8):
                if sl == 3:
                    a("s_waitcnt lgkmcnt(0)")
                a(mfs[sl])
                if sl == 3:
                    if t == 6:
                        chunk_sync()
                    if t == 7:
                        a(f"v_add_u32 v{vV}, s44, v{vV}")
                    a.ext(kr)
                if sl in (4, 5):
                    a.ext(vr[2 * (sl - 4):2 * (sl - 4) + 2])
                S_, P_ = (SA, PA) if sl < 4 else (SB, PB)
                o = 4 * (sl % 4)
                for i in range(4):
                    a(f"v_exp_f32 v{S_+o+i}, v{S_+o+i}")
                a(f"v_cvt_pk_bf16_f32 v{P_+o//2}, v{S_+o}, v{S_+o+1}")
                a(f"v_cvt_pk_bf16_f32 v{P_+o//2+1}, v{S_+o+2}, v{S_+o+3}")
    a(f"""
    s_add_u32 s42, s42, 1
    s_cmp_lt_u32 s42, 8
    s_cbranch_scc1 {L}_LOOP
    {mf(OB, VV[1] + 4, PB + 4, True)}
    """)
    pf.stamp()
    a(f"""
    s_waitcnt lgkmcnt(0)
    s_cmp_lg_u32 s39, 0
    s_cbranch_scc1 {L}_OUT
    s_mov_b32 s44, {fbits(2.0**-70)}
    v_min_f32 v{T0}, v{OA+10}, v{OB+10}
    v_cmp_nle_f32 vcc, s44, v{T0}
    s_cmp_lg_u64 vcc, 0
    s_cselect_b32 s44, 1, 0
    s_barrier
    v_mov_b32 v{T0}, s44
    v_lshlrev_b32 v{T0+1}, 2, v6
    ds_write_b32 v{T0+1}, v{T0}
    v_mov_b32 v{T0+1}, 0
    s_waitcnt lgkmcnt(0)
    s_barrier
    ds_read_b128 v[{T0+2}:{T0+5}], v{T0+1}
    s_waitcnt lgkmcnt(0)
    v_or_b32 v{T0+2}, v{T0+2}, v{T0+3}
    v_or3_b32 v{T0+2}, v{T0+2}, v{T0+4}, v{T0+5}
    v_readfirstlane_b32 s44, v{T0+2}
    s_cmp_eq_u32 s44, 0
    s_cbranch_scc1 {L}_OUT
    s_barrier
    s_mov_b32 s39, 1
    s_mov_b32 exec_lo, 0
    v_mov_b32 v{QTA}, 0
    v_mov_b32 v{QTB}, 0
    s_mov_b32 exec_lo, -1
    v_mov_b32 v{T0}, 0xff800000
    v_mov_b32 v{T0+1}, 0xff800000
    v_and_b32 v8, 31, v1
    v_lshrrev_b32 v9, 5, v1
    v_lshlrev_b32 v8, 4, v8
    v_lshl_add_u32 v8, v9, 2, v8
    s_mov_b32 s44, s33
    s_mov_b32 s45, 0
    {L}_MAXL:
    buffer_load_dwordx4 v[{KM[0]}:{KM[0]+3}], v{vL16}, s[{sws}:{sws+3}], s44 offen
    buffer_load_dword v{KT[0]}, v8, s[{sws}:{sws+3}], s44 offen offset:2048
    s_waitcnt vmcnt(0)
    {mf(SA, KT[0], QTA, False)}
    {mf(SB, KT[0], QTB, False)}
    {mf(SA, KM[0], QMA, True)}
    {mf(SB, KM[0], QMB, True)}
    """)
    for i in range(8):
        a(f"v_max3_f32 v{T0}, v{SA+2*i}, v{SA+2*i+1}, v{T0}")
    for i in range(8):
        a(f"v_max3_f32 v{T0+1}, v{SB+2*i}, v{SB+2*i+1}, v{T0+1}")
    a(f"""
    s_add_u32 s44, s44, 2560
    s_add_u32 s45, s45, 1
    s_cmp_lt_u32 s45, 64
    s_cbranch_scc1 {L}_MAXL
    """)
    for (QT, t) in ((QTA, T0), (QTB, T0 + 1)):
        reduce_x32(a, t, T0 + 2, "v_max_f32")
        a(f"""
        v_sub_f32 v{t}, 0, v{t}
        v_cvt_pk_bf16_f32 v{T0+2}, v{t}, v{t}
        v_lshlrev_b32 v{T0+2}, 16, v{T0+2}
        v_sub_f32 v{T0+3}, v{t}, v{T0+2}
        v_cvt_pk_bf16_f32 v{T0+2}, v{T0+2}, v{T0+3}
        s_mov_b32 exec_lo, 0
        v_mov_b32 v{QT}, v{T0+2}
        s_mov_b32 exec_lo, -1
        """)
    a(f"s_branch {L}_PASS")
    a.label(f"{L}_OUT")
    a(f"""
    s_mul_i32 s44, s36, {36*1024}
    s_add_u32 s44, s44, {OF}
    s_lshl_b32 s45, s30, 10
    s_add_u32 s45, s45, s44
    s_add_u32 s46, s45, {36*1024}
    s_lshr_b32 s47, s30, 2
    s_lshl_b32 s47, s47, 9
    s_and_b32 s48, s30, 3
    s_lshl_b32 s48, s48, 2
    s_add_u32 s47, s47, s48
    s_add_u32 s47, s47, s44
    s_add_u32 s47, s47, {32*1024}
    s_add_u32 s48, s47, {36*1024}
    v_rcp_f32 v{T0}, v{OA+10}
    v_rcp_f32 v{T0+1}, v{OB+10}
    """)
    for (O, t, P_, so, st) in ((OA, T0, PA, 45, 47), (OB, T0 + 1, PB, 46, 48)):
        for i in range(10):
            a(f"v_mul_f32 v{O+i}, v{O+i}, v{t}")
        for i in range(5):
            a(f"v_cvt_pk_bf16_f32 v{P_+i}, v{O+2*i}, v{O+2*i+1}")
        a(f"buffer_store_dwordx4 v[{P_}:{P_+3}], v{vL16}, s[{sws}:{sws+3}], s{so} offen{SC}")
    a(f"""
    s_mov_b32 exec_hi, 0
    buffer_store_dword v{PA+4}, v{vL16}, s[{sws}:{sws+3}], s47 offen{SC}
    buffer_store_dword v{PB+4}, v{vL16}, s[{sws}:{sws+3}], s48 offen{SC}
    s_mov_b32 exec_hi, -1
    """)
```

```python
from common import *

STG = 18432
XCH = 4 * STG

SC = " sc1" if os.environ.get("SC1", "1") == "1" else ""

def gemm2_body(a, pf, sid, sws, swsp, sbsp, L="G2", loop_prio=0):
    ACC = 16
    FR = [96, 132]
    Z1 = 168
    TMP = 204
    vL16 = 2
    rB = [3, 4, 5, 6]
    rA = [7, 8, 9, 10]
    rX = [11, 12]
    dT, dT2 = 13, 14
    a(f"""
    v_and_b32 v1, 63, v0
    v_lshrrev_b32 v{TMP}, 6, v0
    s_and_b32 s28, {sid}, 7
    s_lshr_b32 s29, {sid}, 3
    s_and_b32 s30, s28, 1
    s_lshl_b32 s30, s30, 3
    s_and_b32 s31, s29, 7
    s_add_u32 s30, s30, s31           ; tb
    s_lshr_b32 s31, s28, 1
    s_lshl_b32 s31, s31, 2
    s_lshr_b32 s32, s29, 3
    s_add_u32 s31, s31, s32           ; fb
    s_and_b32 s33, s31, 1             ; e
    s_lshr_b32 s31, s31, 1            ; fp
    v_readfirstlane_b32 s32, v{TMP}   ; wave
    v_lshlrev_b32 v{vL16}, 4, v1
    s_lshr_b32 s34, s32, 1            ; i
    s_and_b32 s35, s32, 1             ; j
    s_mul_i32 s36, s31, 9
    s_add_u32 s37, s36, 8
    s_lshl_b32 s38, s33, 2
    s_add_u32 s36, s36, s38
    s_lshl_b32 s38, s32, 11           ; w*2048
    s_add_u32 s39, s38, 8192
    s_lshl_b32 s40, s32, 9
    s_add_u32 s40, s40, 16384
    s_lshl_b32 s41, s34, 1
    s_add_u32 s41, s41, s33
    v_lshrrev_b32 v{TMP+1}, 2, v1
    v_and_b32 v{TMP+2}, 3, v1
    v_lshrrev_b32 v{TMP+3}, 4, v1
    v_xor_b32 v{TMP+2}, v{TMP+2}, v{TMP+3}
    s_lshl_b32 s44, s30, 7
    s_lshl_b32 s45, s32, 5
    s_add_u32 s44, s44, s45
    v_add_u32 v{TMP+1}, s44, v{TMP+1}
    v_lshlrev_b32 v{dT}, 12, v{TMP+1}
    v_lshl_add_u32 v{dT}, v{TMP+2}, 4, v{dT}
    v_add_u32 v{dT2}, {16*4096 - 1024}, v{dT}
    s_mul_i32 s42, s28, {int(os.environ.get("RX", "0"))}
    s_mul_i32 s43, s29, {int(os.environ.get("RS", "0"))}
    s_add_u32 s42, s42, s43
    s_and_b32 s42, s42, 63
    s_lshl_b32 s42, s42, 6
    s_add_u32 s54, s36, s32
    s_mul_i32 s54, s54, {ZST}
    s_add_u32 s54, s54, {Z2N}
    s_mul_i32 s55, s37, {ZST}
    s_lshl_b32 s44, s32, 9
    s_add_u32 s55, s55, s44
    s_add_u32 s55, s55, {Z2N}
    s_lshl_b32 s46, s42, 5
    s_add_u32 s43, s54, s46
    s_add_u32 s46, s55, s46
    """)

    def dma_sp(sl):
        o = sl * STG
        return [f"s_add_u32 m0, s38, {o}\nbuffer_load_dwordx4 v{dT}, s[{swsp}:{swsp+3}], s42 offen lds",
                f"buffer_load_dwordx4 v{dT2}, s[{swsp}:{swsp+3}], s42 offen offset:1024 lds\ns_add_u32 s42, s42, 64\ns_and_b32 s42, s42, {int(os.environ.get('KMASK', '4095'))}",
                f"s_add_u32 m0, s39, {o}\nbuffer_load_dwordx4 v{vL16}, s[{sws}:{sws+3}], s43 offen lds",
                f"buffer_load_dwordx4 v{vL16}, s[{sws}:{sws+3}], s43 offen offset:1024 lds\ns_lshl_b32 s56, s42, 5\ns_add_u32 s43, s54, s56",
                f"s_add_u32 m0, s40, {o}\ns_mov_b32 exec_hi, 0\nbuffer_load_dwordx4 v{vL16}, s[{sws}:{sws+3}], s46 offen lds\n"
                f"s_mov_b32 exec_hi, -1\ns_add_u32 s46, s55, s56"]

    GD = int(os.environ.get("GD", "1"))
    if not GD:
        for st in range(4):
            for d in dma_sp(st):
                a(d)
    a(f"""
    s_lshl_b32 s44, s30, 2
    s_add_u32 s44, s44, s41
    s_xor_b32 s45, s44, 1             ; B1
    v_and_b32 v{TMP+2}, 15, v1
    v_bfe_u32 v{TMP+3}, v1, 2, 2
    v_lshrrev_b32 v{TMP+4}, 5, v1
    s_lshl_b32 s50, s35, 1
    v_add_u32 v{TMP+4}, s50, v{TMP+4}
    v_xor_b32 v{TMP+4}, v{TMP+4}, v{TMP+3}
    v_lshl_add_u32 v{TMP+4}, v{TMP+2}, 2, v{TMP+4}
    v_lshlrev_b32 v{TMP+4}, 4, v{TMP+4}
    v_bfe_u32 v{TMP+3}, v1, 4, 1
    v_lshl_add_u32 v{TMP+4}, v{TMP+3}, 10, v{TMP+4}
    s_lshl_b32 s50, s41, 11
    v_add_u32 v{rB[0]}, s50, v{TMP+4}
    v_xor_b32 v{rB[1]}, 2048, v{rB[0]}
    v_xor_b32 v{rB[2]}, 32, v{rB[0]}
    v_xor_b32 v{rB[3]}, 32, v{rB[1]}
    v_lshrrev_b32 v{TMP+1}, 5, v1
    v_bfe_u32 v{TMP+2}, v1, 2, 2
    v_lshl_add_u32 v{TMP+1}, v{TMP+1}, 3, v{TMP+2}
    s_lshl_b32 s50, s35, 4
    v_add_u32 v{TMP+1}, s50, v{TMP+1}
    v_bfe_u32 v{TMP+2}, v1, 4, 1
    v_and_b32 v{TMP+3}, 1, v1
    v_lshl_add_u32 v{TMP+2}, v{TMP+2}, 1, v{TMP+3}   ; c8
    v_lshlrev_b32 v{TMP+3}, 2, v{TMP+2}
    v_xor_b32 v{TMP+1}, v{TMP+1}, v{TMP+3}
    v_lshl_add_u32 v{TMP+1}, v{TMP+2}, 5, v{TMP+1}
    v_lshlrev_b32 v{TMP+1}, 4, v{TMP+1}
    v_bfe_u32 v{TMP+2}, v1, 1, 1
    v_lshl_add_u32 v{TMP+1}, v{TMP+2}, 3, v{TMP+1}
    s_lshl_b32 s50, s35, 12
    s_add_u32 s50, s50, 8192
    v_add_u32 v{rA[0]}, s50, v{TMP+1}
    v_xor_b32 v{rA[1]}, 64, v{rA[0]}
    v_xor_b32 v{rA[2]}, 256, v{rA[0]}
    v_xor_b32 v{rA[3]}, 256, v{rA[1]}
    s_mul_i32 s50, s35, 1152
    v_xor_b32 v{rX[0]}, s50, v{TMP+1}
    v_add_u32 v{rX[0]}, 16384, v{rX[0]}
    v_xor_b32 v{rX[1]}, 64, v{rX[0]}
    s_mul_i32 s48, s44, {144*1024}
    s_add_u32 s48, s48, {UF}
    s_mul_i32 s49, s45, {144*1024}
    s_add_u32 s49, s49, {UF}
    s_lshl_b32 s50, s37, 1
    s_add_u32 s50, s50, s35
    s_lshl_b32 s50, s50, 10
    s_add_u32 s50, s50, s48
    s_lshl_b32 s52, s35, 1
    s_add_u32 s52, s52, s36
    s_lshl_b32 s52, s52, 11
    s_add_u32 s48, s48, s52
    s_add_u32 s49, s49, s52
    s_lshl_b32 s44, s44, 6
    s_lshl_b32 s45, s45, 6
    v_and_b32 v{TMP+21}, 31, v1
    v_lshlrev_b32 v{TMP+21}, 1, v{TMP+21}
    """)

    A0f, A1f, A4, B0f, B1f, A0s, A1s, B0s, B1s = [4 * i for i in range(9)]

    def rd128(dst, reg, off):
        return f"ds_read_b128 v[{dst}:{dst+3}], v{reg} offset:{off}"

    def rdtr(dst, r0, r1, off):
        return (f"ds_read_b64_tr_b16 v[{dst}:{dst+1}], v{r0} offset:{off}\n"
                f"ds_read_b64_tr_b16 v[{dst+2}:{dst+3}], v{r1} offset:{off}")

    def reads(sl, fs):
        o = sl * STG
        return [rdtr(fs + A0f, rA[0], rA[1], o), rd128(fs + B0f, rB[0], o), rd128(fs + B1f, rB[1], o),
                rdtr(fs + A1f, rA[0], rA[1], o + 2048), rdtr(fs + A4, rX[0], rX[1], o), rdtr(fs + A0s, rA[2], rA[3], o),
                rd128(fs + B0s, rB[2], o), rd128(fs + B1s, rB[3], o), rdtr(fs + A1s, rA[2], rA[3], o + 2048)]

    def mfmas(fs):
        m = lambda t, x, y: f"v_mfma_f32_32x32x16_bf16 v[{ACC+16*t}:{ACC+16*t+15}], v[{fs+x}:{fs+x+3}], v[{fs+y}:{fs+y+3}], v[{ACC+16*t}:{ACC+16*t+15}]"
        return [m(0, A0f, B0f), m(1, A0f, B1f), m(2, A1f, B0f), m(3, A1f, B1f), m(4, A4, B0f),
                m(0, A0s, B0s), m(1, A0s, B1s), m(2, A1s, B0s), m(3, A1s, B1s)]

    def uaddr(gi):
        t, hf = gi // 2, gi % 2
        return f"s{48 + t % 2} offen offset:{(t//2)*2048 + hf*1024}" if gi < 8 else "s50 offen"

    for i in range(80):
        a(f"v_mov_b32 v{ACC+i}, 0")
    if GD:
        for st in range(4):
            for d in dma_sp(st):
                a(d)
    pf.stamp()
    MODE = int(os.environ.get("GMODE", "1"))
    a(f"s_waitcnt vmcnt(15)\ns_barrier")
    for r in reads(0, FR[0]):
        a(r)
    if MODE == 2:
        a("s_waitcnt lgkmcnt(0)\ns_barrier")
        for d in dma_sp(0):
            a(d)
    pf.stamp()

    def body(sl, vm, dma, rdnext, extra=None):
        ms = mfmas(FR[sl % 2])
        rd = reads((sl + 1) % 4, FR[(sl + 1) % 2]) if rdnext else []
        extra = list(extra or [])
        if MODE == 2:
            dm = dma_sp((sl + 1) % 4) if dma else []
            if rdnext:
                a(f"s_waitcnt vmcnt({vm})\ns_barrier")
            plan = {0: rd[0:3], 1: rd[3:5], 2: rd[5:8], 3: rd[8:9]}
            for q in range(9):
                a(ms[q])
                a.ext(plan.get(q, []))
                if q == 4:
                    a("s_waitcnt lgkmcnt(0)")
                    if dma:
                        a("s_barrier")
                if q >= 4 and dm:
                    a(dm[q - 4])
                if extra:
                    a(extra.pop(0))
        else:
            dm = dma_sp(sl) if dma else []
            a(f"s_waitcnt vmcnt({vm}) lgkmcnt(0)\ns_barrier")
            plan = {2: rd[0:1], 3: rd[1:3], 4: rd[3:4], 5: rd[4:6], 6: rd[6:8], 7: rd[8:9]}
            for q in range(9):
                a(ms[q])
                a.ext(plan.get(q, []))
                if q < 5 and dm:
                    a(dm[q])
                if extra:
                    a(extra.pop(0))
        a.ext(extra)

    zl = [f"buffer_load_dwordx4 v[{Z1+4*q}:{Z1+4*q+3}], v{vL16}, s[{sws}:{sws+3}], {uaddr(q)}" for q in range(9)] + \
         [f"buffer_load_ushort v{TMP+18}, v{TMP+21}, s[{sbsp}:{sbsp+3}], s44 offen",
          f"buffer_load_ushort v{TMP+19}, v{TMP+21}, s[{sbsp}:{sbsp+3}], s45 offen"]
    if MODE == 2:
        a(f"s_mov_b32 s47, 14\ns_setprio {loop_prio}")
        a.label(f"{L}_LOOP")
        for sl in range(4):
            body(sl, 15, True, True)
        a(f"""
        s_sub_u32 s47, s47, 1
        s_cmp_lg_u32 s47, 0
        s_cbranch_scc1 {L}_LOOP
        """)
        for n in range(56, 64):
            if n <= 58:
                body(n % 4, 15, True, True)
            elif n == 59:
                body(n % 4, 15, False, True, zl)
            else:
                body(n % 4, 5 * (62 - n) + 11, False, n < 63)
    else:
        a(f"s_mov_b32 s47, 15\ns_setprio {loop_prio}")
        a.label(f"{L}_LOOP")
        for sl in range(4):
            body(sl, 10, True, True)
        a(f"""
        s_sub_u32 s47, s47, 1
        s_cmp_lg_u32 s47, 0
        s_cbranch_scc1 {L}_LOOP
        """)
        for sl in range(4):
            body(sl, max(0, 10 - 5 * sl) + (11 if sl > 0 else 0), False, sl < 3, zl if sl == 0 else None)
    pf.stamp()
    a("s_setprio 3")
    X = ACC + 64
    a(f"""
    s_lshl_b32 s53, s32, 11
    s_add_u32 s53, s53, {XCH}
    v_add_u32 v{TMP}, s53, v{vL16}
    v_xor_b32 v{TMP+1}, 2048, v{TMP}
    ds_write_b128 v{TMP}, v[{X+8}:{X+11}]
    ds_write_b128 v{TMP}, v[{X+12}:{X+15}] offset:1024
    s_waitcnt lgkmcnt(0)
    s_barrier
    ds_read_b128 v[{X+8}:{X+11}], v{TMP+1}
    ds_read_b128 v[{X+12}:{X+15}], v{TMP+1} offset:1024
    s_waitcnt vmcnt(0)
    v_lshlrev_b32 v{TMP+18}, 16, v{TMP+18}
    v_lshlrev_b32 v{TMP+19}, 16, v{TMP+19}
    """)
    for gi in range(9):
        if gi == 8:
            a("s_waitcnt lgkmcnt(0)")
            for i in range(8):
                a(f"v_add_f32 v{X+i}, v{X+i}, v{X+8+i}")
        base = ACC + 8 * gi
        t, hf = gi // 2, gi % 2
        bias = TMP + 18 + (t % 2 if gi < 8 else 0)
        for i in range(8):
            a(f"v_add_f32 v{base+i}, v{base+i}, v{bias}")
        for i in range(4):
            a(f"v_lshlrev_b32 v{TMP+2+2*i}, 16, v{Z1+4*gi+i}")
            a(f"v_and_b32 v{TMP+3+2*i}, 0xffff0000, v{Z1+4*gi+i}")
        for i in range(8):
            a(f"v_mul_f32 v{base+i}, v{base+i}, v{TMP+2+i}")
        for i in range(4):
            a(f"v_cvt_pk_bf16_f32 v{Z1+4*gi+i}, v{base+2*i}, v{base+2*i+1}")
        a(f"buffer_store_dwordx4 v[{Z1+4*gi}:{Z1+4*gi+3}], v{vL16}, s[{sws}:{sws+3}], {uaddr(gi)} sc1")
```

```python
from common import *

WSL = 4096
PART = 80 * 256
NT3 = 234


def tile_setup(a, sid, Lend, TMP, ring_bytes):
    a(f"""
    ; L = (id&7)*30 + (id>>3) ; rb = L/9 ; cb = L%9
    s_and_b32 s36, {sid}, 7
    s_lshr_b32 s37, {sid}, 3
    s_cmp_ge_u32 s37, 30
    s_cbranch_scc1 {Lend}
    s_mul_i32 s36, s36, 30
    s_add_u32 s36, s36, s37
    s_cmp_ge_u32 s36, {NT3}
    s_cbranch_scc1 {Lend}
    s_mul_i32 s38, s36, 7282
    s_lshr_b32 s38, s38, 16           ; rb
    s_mul_i32 s39, s38, 9
    s_sub_u32 s39, s36, s39           ; cb
    v_and_b32 v1, 63, v0
    v_lshrrev_b32 v{TMP}, 6, v0
    s_lshl_b32 s41, s39, 7
    v_lshrrev_b32 v{TMP+1}, 3, v1
    v_readfirstlane_b32 s40, v{TMP}   ; wave
    v_and_b32 v{TMP+2}, 7, v1
    v_and_b32 v{TMP+3}, 2, v{TMP+1}
    v_xor_b32 v{TMP+2}, v{TMP+2}, v{TMP+3}
    v_lshlrev_b32 v{TMP+2}, 4, v{TMP+2}
    v_add_u32 v{TMP+2}, s41, v{TMP+2}
    v_mul_u32_u24 v{TMP+3}, 1152, v{TMP+1}
    v_add_u32 v12, v{TMP+3}, v{TMP+2}             ; i = 0
    v_xor_b32 v13, 64, v12
    v_add_u32 v13, {8*1152 - 1024}, v13           ; i = 1 (imm 1024)
    v_add_u32 v14, {16*1152 - 2048}, v12          ; i = 2
    v_add_u32 v15, {16*1152 - 2048}, v13          ; i = 3
    v_lshrrev_b32 v{TMP+3}, 1, v{TMP+1}
    v_mul_u32_u24 v{TMP+3}, 18, v{TMP+3}
    v_and_b32 v{TMP+4}, 1, v{TMP+1}
    v_add3_u32 v{TMP+3}, v{TMP+3}, v{TMP+4}, 16
    v_mul_u32_u24 v{TMP+3}, 1152, v{TMP+3}
    v_add_u32 v18, v{TMP+3}, v{TMP+2}
    v_xor_b32 v19, 64, v18
    v_add_u32 v19, {72*1152 - 1024}, v19
    v_and_b32 v{TMP+2}, 7, v1
    v_mul_u32_u24 v7, 1152, v{TMP+1}
    v_lshl_add_u32 v7, v{TMP+2}, 4, v7
    v_lshrrev_b32 v{TMP+1}, 4, v1
    v_and_b32 v{TMP+2}, 15, v1
    v_lshlrev_b32 v6, 9, v{TMP+1}
    v_lshl_add_u32 v6, v{TMP+2}, 4, v6
    v_bfe_u32 v{TMP+2}, v1, 2, 2
    v_lshl_add_u32 v{TMP+3}, v{TMP+1}, 3, v{TMP+2}
    v_lshlrev_b32 v{TMP+3}, 7, v{TMP+3}
    v_and_b32 v{TMP+4}, 3, v1
    v_lshl_add_u32 v{TMP+3}, v{TMP+4}, 3, v{TMP+3}
    v_bfe_u32 v{TMP+4}, v1, 3, 2
    v_lshl_add_u32 v{TMP+3}, v{TMP+4}, 5, v{TMP+3}
    s_mul_i32 s42, s40, {ring_bytes}
    v_add_u32 v8, s42, v{TMP+3}
    v_xor_b32 v9, 32, v8
    v_xor_b32 v10, 64, v8
    v_xor_b32 v11, 96, v8
    s_mul_i32 s46, s38, 5
    s_mul_i32 s59, s38, 80
    s_mul_i32 s58, s40, 20
    s_add_u32 s59, s59, s58
    s_mul_i32 s59, s59, 1152
    s_add_u32 s59, s59, s41
    s_add_u32 s60, s59, {8*1152}
    s_add_u32 s61, s59, {16*1152}
    """)


def tok_bases(a, tile_bytes):
    for i in range(5):
        a(f"""
        s_add_u32 s47, s46, {i}
        s_and_b32 s58, s47, 1
        s_lshl_b32 s58, s58, 8
        s_lshr_b32 s47, s47, 1
        s_mul_i32 s{48+i}, s47, {tile_bytes}
        s_add_u32 s{48+i}, s{48+i}, s58
        """)


def reduce_write(a, ACC, TMP):
    a(f"""
    s_barrier
    v_and_b32 v{TMP+1}, 15, v1
    v_lshlrev_b32 v{TMP+1}, 8, v{TMP+1}
    v_lshrrev_b32 v{TMP+2}, 4, v1
    v_and_b32 v{TMP+3}, 7, v1
    v_xor_b32 v{TMP+2}, v{TMP+2}, v{TMP+3}
    v_lshl_add_u32 v{TMP+1}, v{TMP+2}, 4, v{TMP+1}
    s_mul_i32 s58, s40, {PART}
    v_add_u32 v12, s58, v{TMP+1}
    v_xor_b32 v13, 64, v12
    """)
    for nt in range(4):
        for i in range(5):
            d = ACC + 20 * nt + 4 * i
            a(f"ds_write_b128 v{12 + nt % 2}, v[{d}:{d+3}] offset:{i*4096 + (nt//2)*128}")
    a(f"""
    v_lshrrev_b32 v{TMP+1}, 3, v1
    s_mul_i32 s58, s40, 20
    v_add_u32 v{TMP+1}, s58, v{TMP+1}
    v_and_b32 v{TMP+2}, 7, v{TMP+1}
    v_and_b32 v{TMP+3}, 7, v1
    v_lshlrev_b32 v{TMP+3}, 1, v{TMP+3}
    v_xor_b32 v{TMP+3}, v{TMP+3}, v{TMP+2}
    v_lshlrev_b32 v{TMP+1}, 8, v{TMP+1}
    v_lshl_add_u32 v16, v{TMP+3}, 4, v{TMP+1}
    v_xor_b32 v17, 16, v16
    v_add_u32 v18, 4096, v16
    v_add_u32 v19, 4096, v17
    s_waitcnt lgkmcnt(0)
    s_barrier
    """)


def reduce_read(a, R):
    for rd in range(3):
        if rd == 2:
            a("s_mov_b32 exec_hi, 0")
        for p in range(4):
            for hf in range(2):
                d = R + 32 * rd + 8 * p + 4 * hf
                a(f"ds_read_b128 v[{d}:{d+3}], v{16 + hf + (2 if rd == 2 else 0)} offset:{p*PART + (rd % 2)*2048}")
    a("s_mov_b32 exec_hi, -1")


def reduce_sum(a, R, rd):
    b = R + 32 * rd
    a(f"s_waitcnt lgkmcnt({min(15, 8*(2-rd))})" if rd > 0 else "s_waitcnt lgkmcnt(15)")
    if rd == 0:
        a("s_waitcnt lgkmcnt(14)")
    for e in range(8):
        a(f"v_add_f32 v{b+e}, v{b+e}, v{b+8+e}")
        a(f"v_add_f32 v{b+16+e}, v{b+16+e}, v{b+24+e}")
    for e in range(8):
        a(f"v_add_f32 v{b+e}, v{b+e}, v{b+16+e}")


def outproj_body(a, pf, sid, sws, swout, Lend, L="OP", DEPTH=3, prio=0):
    RING = 5
    TRING = DEPTH + 1
    w = Waits(a)
    ACC = 24
    TOK = ACC + 80
    WFR = TOK + 20 * TRING
    TMP = WFR + 16
    assert TMP + 8 <= 232
    tile_setup(a, sid, Lend, TMP, RING * WSL)
    tok_bases(a, 144 * 1024)
    a(f"""
    s_mul_i32 s43, s40, {576*1152}
    s_mul_i32 s58, s40, {36*1024}
    s_add_u32 s58, s58, {UF}
    v_add_u32 v20, s58, v6
    """)
    NS = 18

    def issue_w(n):
        sl = n % RING
        ops = []
        for i in range(4):
            def f(i=i):
                if i == 0:
                    a(f"s_add_u32 m0, s42, {sl*WSL}")
                w.ivm(f"buffer_load_dwordx4 v{12+i}, s[{swout}:{swout+3}], s43 offen offset:{1024*i} lds", ("W", n))
                if i == 3:
                    a(f"s_add_u32 s43, s43, {32*1152}")
            ops.append(f)
        return ops

    def issue_t(n):
        tk = TOK + 20 * (n % TRING)
        ops = []
        for i in range(5):
            def f(i=i):
                w.ivm(f"buffer_load_dwordx4 v[{tk+4*i}:{tk+4*i+3}], v20, s[{sws}:{sws+3}], s{48 + i} offen offset:{(n%2)*2048} sc1", ("T", n))
                if i == 4 and n % 2 == 1:
                    a(f"v_add_u32 v20, 4096, v20")
            ops.append(f)
        return ops

    def wreads(n, nt):
        o = (n % RING) * WSL
        w.ilg(f"ds_read_b64_tr_b16 v[{WFR+4*nt}:{WFR+4*nt+1}], v{8+nt} offset:{o}", (n, nt))
        w.ilg(f"ds_read_b64_tr_b16 v[{WFR+4*nt+2}:{WFR+4*nt+3}], v{8+nt} offset:{o + 512}", (n, nt))

    for n in range(RING - 1):
        for f in issue_w(n):
            f()
    a(f"""
    s_mul_i32 s44, s38, 80
    s_add_u32 s45, s44, 79
    s_min_u32 s45, s45, 2047
    s_lshr_b32 s44, s44, 7
    s_lshr_b32 s45, s45, 7
    s_cmp_lg_u32 s40, 0
    s_cbranch_scc1 {L}_GO
    s_sub_u32 s45, s45, s44
    s_lshl_b32 s45, s45, 7
    s_lshl_b32 s44, s44, 7
    s_add_u32 s44, s44, {FLG}
    v_and_b32 v21, 15, v1
    v_lshlrev_b32 v21, 2, v21
    v_bfe_u32 v22, v1, 4, 1
    v_mul_lo_u32 v22, v22, s45
    v_add_u32 v21, v21, v22
    s_mov_b32 s47, 0
    {L}_POLL:
    buffer_load_dword v22, v21, s[{sws}:{sws+3}], s44 offen sc1
    s_waitcnt vmcnt(0)
    v_cmp_eq_u32 vcc, 0, v22
    s_cmp_eq_u64 vcc, 0
    s_cbranch_scc1 {L}_GO
    s_add_u32 s47, s47, 1
    s_cmp_ge_u32 s47, 0x40000
    s_cbranch_scc1 {L}_GO
    s_sleep 6
    s_branch {L}_POLL
    {L}_GO:
    s_waitcnt vmcnt(0)
    s_barrier
    s_setprio {prio}
    """)
    w.vm = []
    pf.stamp()
    for n in range(DEPTH):
        for f in issue_t(n):
            f()
    for nt in range(4):
        wreads(0, nt)
    for n in range(NS):
        if n + 1 < NS:
            w.wvm(("W", n + 1))
        w.wvm(("T", n))
        pend = (issue_t(n + DEPTH) if n + DEPTH < NS else []) + (issue_w(n + RING - 1) if n + RING - 1 < NS else [])
        tk = TOK + 20 * (n % TRING)
        q = 0
        for nt in range(4):
            w.wlg((n, nt))
            for i in range(5):
                d = ACC + 20 * nt + 4 * i
                c = "0" if n == 0 else f"v[{d}:{d+3}]"
                a(f"v_mfma_f32_16x16x32_bf16 v[{d}:{d+3}], v[{WFR+4*nt}:{WFR+4*nt+3}], v[{tk+4*i}:{tk+4*i+3}], {c}")
                q += 1
                if q % 2 == 0 and pend:
                    pend.pop(0)()
            if n + 1 < NS:
                wreads(n + 1, nt)
        for f in pend:
            f()
    pf.stamp()
    a("s_setprio 3")
    reduce_write(a, ACC, TMP)
    R = TOK
    reduce_read(a, R)
    a(f"""
    s_mov_b32 s56, {fbits(-math.log2(math.e))}
    s_add_u32 s59, s59, {GF}
    s_add_u32 s60, s60, {GF}
    s_add_u32 s61, s61, {GF}
    """)
    for rd in range(3):
        reduce_sum(a, R, rd)
        b = R + 32 * rd
        for e in range(8):
            a(f"v_mul_f32 v{b+8+e}, s56, v{b+e}")
        for e in range(8):
            a(f"v_exp_f32 v{b+8+e}, v{b+8+e}")
        for e in range(8):
            a(f"v_add_f32 v{b+8+e}, 1.0, v{b+8+e}")
        for e in range(8):
            a(f"v_rcp_f32 v{b+8+e}, v{b+8+e}")
        for e in range(8):
            a(f"v_mul_f32 v{b+e}, v{b+e}, v{b+8+e}")
        for e in range(4):
            a(f"v_cvt_pk_bf16_f32 v{b+16+e}, v{b+2*e}, v{b+2*e+1}")
        if rd == 2:
            a("s_mov_b32 exec_hi, 0")
        a(f"buffer_store_dwordx4 v[{b+16}:{b+19}], v7, s[{sws}:{sws+3}], s{59+rd} offen sc1")
    a("s_mov_b32 exec_hi, -1")


def build_k4(kidx=3):
    k = Kernel("k4_fin_kernel", 240, 256, 81920, 256)
    a = k.a
    w = Waits(a)
    pf = Prof(a, bool(PROF), kidx)
    pf.stamp()
    ACC = 24
    TOK = ACC + 80
    WFR = TOK + 100
    XR = WFR + 16
    TMP = XR + 24
    assert TMP + 8 <= 256
    a(f"""
    s_load_dwordx2 s[4:5], s[0:1], {KA_X}
    s_load_dwordx2 s[6:7], s[0:1], {KA_WO}
    s_load_dwordx2 s[26:27], s[0:1], {KA_OUT}
    s_load_dwordx2 s[28:29], s[0:1], {KA_WS}
    """)
    tile_setup(a, "s2", "K4_END", TMP, 5 * WSL)
    tok_bases(a, 36 * 1024)
    a(f"""
    v_add_u32 v14, 2304, v14
    v_add_u32 v15, 2304, v15
    s_mul_i32 s44, s40, {144*1152}
    s_mov_b32 s45, s44
    s_lshl_b32 s58, s40, 13
    s_add_u32 s58, s58, {OF}
    v_add_u32 v21, s58, v6            ; o mains
    v_add_u32 v20, 4096, v21
    s_lshl_b32 s58, s40, 10
    s_add_u32 s58, s58, {OF + 32*1024}
    v_add_u32 v22, s58, v6            ; o tails
    s_add_u32 s53, s59, {GF}
    s_add_u32 s54, s60, {GF}
    s_add_u32 s55, s61, {GF}
    s_waitcnt lgkmcnt(0)
    """)
    srd(a, 8, 4, SZ_X)
    srd(a, 12, 6, SZ_WO)
    srd(a, 20, 28, WS_USED)
    srd(a, 32, 26, SZ_X)
    for i in range(20):
        a(f"v_mov_b32 v{TOK+80+i}, 0")
    for n in range(5):
        tk = TOK + 20 * n
        a(f"s_add_u32 m0, s42, {n*WSL}")
        if n < 4:
            for i in range(4):
                w.ivm(f"buffer_load_dwordx4 v{12+i}, s[12:15], s44 offen offset:{1024*i} lds", ("W", n))
            a(f"s_add_u32 s44, s44, {36*1152}")
            for i in range(5):
                w.ivm(f"buffer_load_dwordx4 v[{tk+4*i}:{tk+4*i+3}], v{21 if n < 2 else 20}, s[20:23], s{48 + i} offen offset:{(n%2)*2048}", ("T", n))
        else:
            w.ivm(f"buffer_load_dwordx4 v18, s[12:15], s45 offen lds", ("W", n))
            w.ivm(f"buffer_load_dwordx4 v19, s[12:15], s45 offen offset:1024 lds", ("W", n))
            w.ivm(f"buffer_load_dwordx4 v14, s[12:15], s45 offen offset:2048 lds", ("W", n))
            w.ivm(f"buffer_load_dwordx4 v15, s[12:15], s45 offen offset:3072 lds", ("W", n))
            a("s_mov_b32 exec_hi, 0")
            for i in range(5):
                w.ivm(f"buffer_load_dwordx4 v[{tk+4*i}:{tk+4*i+3}], v22, s[20:23], s{48 + i} offen", ("T", n))
            a("s_mov_b32 exec_hi, -1")
    for i in range(3):
        if i == 2:
            a("s_mov_b32 exec_hi, 0")
        w.ivm(f"buffer_load_dwordx4 v[{XR+4*i}:{XR+4*i+3}], v7, s[8:11], s{59+i} offen", "X")
        w.ivm(f"buffer_load_dwordx4 v[{XR+12+4*i}:{XR+12+4*i+3}], v7, s[20:23], s{53+i} offen", "X")
    a("s_mov_b32 exec_hi, -1")
    pf.stamp()

    def wreads(n, nt):
        o = n * WSL
        w.ilg(f"ds_read_b64_tr_b16 v[{WFR+4*nt}:{WFR+4*nt+1}], v{8+nt} offset:{o}", (n, nt))
        w.ilg(f"ds_read_b64_tr_b16 v[{WFR+4*nt+2}:{WFR+4*nt+3}], v{8+nt} offset:{o + 512}", (n, nt))
    w.wvm(("W", 0))
    for nt in range(4):
        wreads(0, nt)
    for n in range(5):
        if n + 1 < 5:
            w.wvm(("W", n + 1))
        w.wvm(("T", n))
        tk = TOK + 20 * n
        for nt in range(4):
            w.wlg((n, nt))
            for i in range(5):
                d = ACC + 20 * nt + 4 * i
                c = "0" if n == 0 else f"v[{d}:{d+3}]"
                a(f"v_mfma_f32_16x16x32_bf16 v[{d}:{d+3}], v[{WFR+4*nt}:{WFR+4*nt+3}], v[{tk+4*i}:{tk+4*i+3}], {c}")
            if n + 1 < 5:
                wreads(n + 1, nt)
    pf.stamp()
    reduce_write(a, ACC, TMP)
    R = TOK
    reduce_read(a, R)
    a("s_waitcnt vmcnt(0)")
    for rd in range(3):
        b = R + 32 * rd
        U = ACC + 16 * rd
        for e in range(4):
            a(f"v_lshlrev_b32 v{U+2*e}, 16, v{XR+4*rd+e}")
            a(f"v_and_b32 v{U+2*e+1}, 0xffff0000, v{XR+4*rd+e}")
            a(f"v_lshlrev_b32 v{U+8+2*e}, 16, v{XR+12+4*rd+e}")
            a(f"v_and_b32 v{U+8+2*e+1}, 0xffff0000, v{XR+12+4*rd+e}")
        reduce_sum(a, R, rd)
        for e in range(8):
            a(f"v_fmac_f32 v{U+e}, v{b+e}, v{U+8+e}")
        for e in range(4):
            a(f"v_cvt_pk_bf16_f32 v{XR+4*rd+e}, v{U+2*e}, v{U+2*e+1}")
        if rd == 2:
            a("s_mov_b32 exec_hi, 0")
        a(f"buffer_store_dwordx4 v[{XR+4*rd}:{XR+4*rd+3}], v7, s[32:35], s{59+rd} offen")
    pf.dump(20, 4)
    a("K4_END:\ns_endpgm")
    return k
```

```python
import sys
from common import *
from k0 import build_k0
from k1 import build_k1

HEADER = open("recurrent_scan__mha_block__mixer_gmlp__prompt.s.ref").read().split("; Override launch")[0]

def build(kernels, path):
    out = HEADER
    for k in kernels:
        out += f"; @launch kernel={k.name} grid=({k.grid},1,1) block=({k.block},1,1) lds={k.lds}\n"
    out += '.amdgcn_target "amdgcn-amd-amdhsa--gfx950"\n.text\n'
    seen = []
    for k in kernels:
        if k.name in seen:
            continue
        seen.append(k.name)
        out += k.text()
    out += 'ALL_CODE_END:\n    s_endpgm\n.section .rodata,"a"\n'
    seen = []
    for k in kernels:
        if k.name in seen:
            continue
        seen.append(k.name)
        out += k.desc()
    open(path, "w").write(out)
    for k in kernels:
        print(k.name, "instrs", len(k.a.lines), "nops inserted", k.a.n_nops)

if __name__ == "__main__":
    import os
    from k2 import build_k2
    from k3 import build_k4
    pa = int(os.environ.get("PA", "3")); pg = int(os.environ.get("PG", "3"))
    ks = [build_k0(), build_k1(), build_k2(pa, pg), build_k4()]
    build(ks, sys.argv[1] if len(sys.argv) > 1 else "recurrent_scan__mha_block__mixer_gmlp__prompt.s")
```

```python
import sys
from common import *
from k0 import build_k0
from k1 import build_k1

HEADER = open("recurrent_scan__mha_block__mixer_gmlp__prompt.s.ref").read().split("; Override launch")[0]

def build(kernels, path):
    out = HEADER
    for k in kernels:
        out += f"; @launch kernel={k.name} grid=({k.grid},1,1) block=({k.block},1,1) lds={k.lds}\n"
    out += '.amdgcn_target "amdgcn-amd-amdhsa--gfx950"\n.text\n'
    seen = []
    for k in kernels:
        if k.name in seen:
            continue
        seen.append(k.name)
        out += k.text()
    out += 'ALL_CODE_END:\n    s_endpgm\n.section .rodata,"a"\n'
    seen = []
    for k in kernels:
        if k.name in seen:
            continue
        seen.append(k.name)
        out += k.desc()
    open(path, "w").write(out)
    for k in kernels:
        print(k.name, "instrs", len(k.a.lines), "nops inserted", k.a.n_nops)

if __name__ == "__main__":
    import os
    from k2 import build_k2
    pa = int(os.environ.get("PA", "3")); pg = int(os.environ.get("PG", "3"))
    ks = [build_k0(), build_k1(), build_k2(pa, pg)]
    def empty(name):
        k = Kernel(name, 256, 64, 0, 8)
        k.a("s_endpgm")
        return k
    for i in range(int(os.environ.get("EPRE", "0"))):
        ks.insert(0, empty(f"e{i}_kernel"))
    for i in range(int(os.environ.get("EPOST", "0"))):
        ks.append(empty(f"f{i}_kernel"))
    if os.environ.get("DUP"):
        i = int(os.environ["DUP"]); ks.insert(i, ks[i])
    build(ks, sys.argv[1] if len(sys.argv) > 1 else "recurrent_scan__mha_block__mixer_gmlp__prompt.s")
```

```python
from common import *
from k2a import attn_body
from k2b import gemm2_body
from k3 import outproj_body

def build_k2(prio_attn=1, prio_gemm=0, kidx=2):
    k = Kernel("k2_mix_kernel", 512, 256, 81920, 256)
    a = k.a
    pf = Prof(a, bool(PROF), kidx)
    pf.stamp()
    a(f"""
    s_cmp_ge_u32 s2, 512
    s_cbranch_scc1 K2_END
    s_load_dwordx4 s[4:7], s[0:1], {KA_WSP}
    s_load_dwordx2 s[24:25], s[0:1], {KA_WOUT}
    s_load_dwordx2 s[26:27], s[0:1], {KA_WS}
    s_waitcnt lgkmcnt(0)
    """)
    srd(a, 12, 4, SZ_WSP)
    srd(a, 16, 6, SZ_BSP)
    srd(a, 20, 26, WS_USED)
    a("""
    s_cmp_lt_u32 s2, 256
    s_cbranch_scc1 K2_ATT
    """)
    if prio_gemm:
        a(f"s_setprio {prio_gemm}")
    n0 = pf.n
    a("s_sub_u32 s3, s2, 256")
    srd(a, 8, 24, SZ_WOUT)
    gemm2_body(a, pf, "s3", 20, 12, 16, loop_prio=int(os.environ.get("GLP", "2")))
    a(f"""
    s_waitcnt vmcnt(0)
    s_barrier
    s_cmp_lg_u32 s32, 0
    s_cbranch_scc1 K2_NOSIG
    s_lshl_b32 s30, s30, 7
    s_lshl_b32 s31, s31, 3
    s_lshl_b32 s33, s33, 2
    s_add_u32 s30, s30, s31
    s_add_u32 s30, s30, s33
    s_add_u32 s30, s30, {FLG}
    v_mov_b32 v1, 0
    v_mov_b32 v2, 1
    s_mov_b64 exec, 1
    buffer_store_dword v2, v1, s[20:23], s30 offen sc1
    s_mov_b64 exec, -1
    K2_NOSIG:
    """)
    pf.stamp()
    a(f"""
    s_load_dwordx2 s[4:5], s[0:1], {KA_X}
    s_load_dwordx2 s[6:7], s[0:1], {KA_WO}
    s_load_dwordx2 s[24:25], s[0:1], {KA_OUT}
    s_waitcnt lgkmcnt(0)
    """)
    srd(a, 12, 4, SZ_X)
    srd(a, 16, 6, SZ_WO)
    srd(a, 4, 24, SZ_X)
    outproj_body(a, pf, "s3", 20, 8, 16, 12, 4, "K2_END", prio=int(os.environ.get("OPP", "0")))
    pf.dump(20, 4)
    a("s_endpgm")
    a.label("K2_ATT")
    if os.environ.get("NOATT"):
        a("s_endpgm")
    pf.n = n0
    if prio_attn:
        a(f"s_setprio {prio_attn}")
    attn_body(a, pf, "s2", 20)
    a(f"""
    s_waitcnt vmcnt(0)
    s_barrier
    s_cmp_lg_u32 s32, 0
    s_cbranch_scc1 K2_NOSIG2
    s_lshl_b32 s31, s31, 7
    s_lshl_b32 s30, s30, 2
    s_add_u32 s30, s30, s31
    s_add_u32 s30, s30, {FLG + 2048}
    v_mov_b32 v1, 0
    v_mov_b32 v2, 1
    s_mov_b64 exec, 1
    buffer_store_dword v2, v1, s[20:23], s30 offen sc1
    s_mov_b64 exec, -1
    K2_NOSIG2:
    """)
    pf.dump(20, 4)
    a("K2_END:\ns_endpgm")
    return k
```

```python
from common import *

WSL = 4096
PART = 80 * 256
NT3 = 234


def tile_setup(a, sid, Lend, TMP, ring_bytes):
    a(f"""
    ; L = (id&7)*30 + (id>>3) ; rb = L/9 ; cb = L%9
    s_and_b32 s36, {sid}, 7
    s_lshr_b32 s37, {sid}, 3
    s_cmp_ge_u32 s37, 30
    s_cbranch_scc1 {Lend}
    s_mul_i32 s36, s36, 30
    s_add_u32 s36, s36, s37
    s_cmp_ge_u32 s36, {NT3}
    s_cbranch_scc1 {Lend}
    s_mul_i32 s38, s36, 7282
    s_lshr_b32 s38, s38, 16           ; rb
    s_mul_i32 s39, s38, 9
    s_sub_u32 s39, s36, s39           ; cb
    v_and_b32 v1, 63, v0
    v_lshrrev_b32 v{TMP}, 6, v0
    s_lshl_b32 s41, s39, 7
    v_lshrrev_b32 v{TMP+1}, 3, v1
    v_readfirstlane_b32 s40, v{TMP}   ; wave
    v_and_b32 v{TMP+2}, 7, v1
    v_and_b32 v{TMP+3}, 2, v{TMP+1}
    v_xor_b32 v{TMP+2}, v{TMP+2}, v{TMP+3}
    v_lshlrev_b32 v{TMP+2}, 4, v{TMP+2}
    v_add_u32 v{TMP+2}, s41, v{TMP+2}
    v_mul_u32_u24 v{TMP+3}, 1152, v{TMP+1}
    v_add_u32 v12, v{TMP+3}, v{TMP+2}             ; i = 0
    v_xor_b32 v13, 64, v12
    v_add_u32 v13, {8*1152 - 1024}, v13           ; i = 1 (imm 1024)
    v_add_u32 v14, {16*1152 - 2048}, v12          ; i = 2
    v_add_u32 v15, {16*1152 - 2048}, v13          ; i = 3
    v_lshrrev_b32 v{TMP+3}, 1, v{TMP+1}
    v_mul_u32_u24 v{TMP+3}, 18, v{TMP+3}
    v_and_b32 v{TMP+4}, 1, v{TMP+1}
    v_add3_u32 v{TMP+3}, v{TMP+3}, v{TMP+4}, 16
    v_mul_u32_u24 v{TMP+3}, 1152, v{TMP+3}
    v_add_u32 v18, v{TMP+3}, v{TMP+2}
    v_xor_b32 v19, 64, v18
    v_add_u32 v19, {72*1152 - 1024}, v19
    v_and_b32 v{TMP+2}, 7, v1
    v_mul_u32_u24 v7, 1152, v{TMP+1}
    v_lshl_add_u32 v7, v{TMP+2}, 4, v7
    v_lshrrev_b32 v{TMP+1}, 4, v1
    v_and_b32 v{TMP+2}, 15, v1
    v_lshlrev_b32 v6, 9, v{TMP+1}
    v_lshl_add_u32 v6, v{TMP+2}, 4, v6
    v_bfe_u32 v{TMP+2}, v1, 2, 2
    v_lshl_add_u32 v{TMP+3}, v{TMP+1}, 3, v{TMP+2}
    v_lshlrev_b32 v{TMP+3}, 7, v{TMP+3}
    v_and_b32 v{TMP+4}, 3, v1
    v_lshl_add_u32 v{TMP+3}, v{TMP+4}, 3, v{TMP+3}
    v_bfe_u32 v{TMP+4}, v1, 3, 2
    v_lshl_add_u32 v{TMP+3}, v{TMP+4}, 5, v{TMP+3}
    s_mul_i32 s42, s40, {ring_bytes}
    v_add_u32 v8, s42, v{TMP+3}
    v_xor_b32 v9, 32, v8
    v_xor_b32 v10, 64, v8
    v_xor_b32 v11, 96, v8
    s_mul_i32 s46, s38, 5
    s_mul_i32 s59, s38, 80
    s_mul_i32 s58, s40, 20
    s_add_u32 s59, s59, s58
    s_mul_i32 s59, s59, 1152
    s_add_u32 s59, s59, s41
    s_add_u32 s60, s59, {8*1152}
    s_add_u32 s61, s59, {16*1152}
    """)


def tok_bases(a, tile_bytes):
    for i in range(5):
        a(f"""
        s_add_u32 s47, s46, {i}
        s_and_b32 s58, s47, 1
        s_lshl_b32 s58, s58, 8
        s_lshr_b32 s47, s47, 1
        s_mul_i32 s{48+i}, s47, {tile_bytes}
        s_add_u32 s{48+i}, s{48+i}, s58
        """)


def reduce_write(a, ACC, TMP, mid=None, addr=True):
    if addr:
        a(f"""
        v_and_b32 v{TMP+1}, 15, v1
        v_lshlrev_b32 v{TMP+1}, 8, v{TMP+1}
        v_lshrrev_b32 v{TMP+2}, 4, v1
        v_and_b32 v{TMP+3}, 7, v1
        v_xor_b32 v{TMP+2}, v{TMP+2}, v{TMP+3}
        v_lshl_add_u32 v{TMP+1}, v{TMP+2}, 4, v{TMP+1}
        s_mul_i32 s58, s40, {PART}
        v_add_u32 v12, s58, v{TMP+1}
        v_xor_b32 v13, 64, v12
        """)
    for nt in range(4):
        for i in range(5):
            d = ACC + 20 * nt + 4 * i
            a(f"ds_write_b128 v{12 + nt % 2}, v[{d}:{d+3}] offset:{i*4096 + (nt//2)*128}")
    if addr:
        a(f"""
        v_lshrrev_b32 v{TMP+1}, 3, v1
        s_mul_i32 s58, s40, 20
        v_add_u32 v{TMP+1}, s58, v{TMP+1}
        v_and_b32 v{TMP+2}, 7, v{TMP+1}
        v_and_b32 v{TMP+3}, 7, v1
        v_lshlrev_b32 v{TMP+3}, 1, v{TMP+3}
        v_xor_b32 v{TMP+3}, v{TMP+3}, v{TMP+2}
        v_lshlrev_b32 v{TMP+1}, 8, v{TMP+1}
        v_lshl_add_u32 v16, v{TMP+3}, 4, v{TMP+1}
        v_xor_b32 v17, 16, v16
        v_add_u32 v18, 4096, v16
        v_add_u32 v19, 4096, v17
        """)
    if mid:
        mid()
    a("s_waitcnt lgkmcnt(0)\ns_barrier")


def rreg(R, rd, p):
    return R[4 * rd + p]


def reduce_read(a, R):
    for rd in range(3):
        if rd == 2:
            a("s_mov_b32 exec_hi, 0")
        for p in range(4):
            for hf in range(2):
                d = rreg(R, rd, p) + 4 * hf
                a(f"ds_read_b128 v[{d}:{d+3}], v{16 + hf + (2 if rd == 2 else 0)} offset:{p*PART + (rd % 2)*2048}")
    a("s_mov_b32 exec_hi, -1")


def reduce_sum(a, R, rd, wait=True):
    b0, b1, b2, b3 = [rreg(R, rd, p) for p in range(4)]
    if wait:
        a(f"s_waitcnt lgkmcnt({min(15, 8*(2-rd))})")
    for e in range(8):
        a(f"v_add_f32 v{b0+e}, v{b0+e}, v{b1+e}")
        a(f"v_add_f32 v{b2+e}, v{b2+e}, v{b3+e}")
    for e in range(8):
        a(f"v_add_f32 v{b0+e}, v{b0+e}, v{b2+e}")


def outproj_body(a, pf, sid, sws, swout, swo, sx, sout, Lend, L="OP", DEPTH=3, prio=0):
    RING = 5
    TRING = DEPTH + 1
    w = Waits(a)
    ACC = 24
    TOK = ACC + 80
    WFR = TOK + 100
    GS = WFR + 16
    XR = GS + 12
    TMP = XR + 12
    assert TMP + 8 <= 256
    tile_setup(a, sid, Lend, TMP, RING * WSL)
    tok_bases(a, 144 * 1024)
    a(f"""
    s_mul_i32 s43, s40, {576*1152}
    s_mul_i32 s58, s40, {36*1024}
    s_add_u32 s58, s58, {UF}
    v_add_u32 v20, s58, v6
    """)
    NS = 18

    def issue_w(n):
        sl = n % RING
        ops = []
        for i in range(4):
            def f(i=i):
                if i == 0:
                    a(f"s_add_u32 m0, s42, {sl*WSL}")
                w.ivm(f"buffer_load_dwordx4 v{12+i}, s[{swout}:{swout+3}], s43 offen offset:{1024*i} lds", ("W", n))
                if i == 3:
                    a(f"s_add_u32 s43, s43, {32*1152}")
            ops.append(f)
        return ops

    def issue_t(n):
        tk = TOK + 20 * (n % TRING)
        ops = []
        for i in range(5):
            def f(i=i):
                w.ivm(f"buffer_load_dwordx4 v[{tk+4*i}:{tk+4*i+3}], v20, s[{sws}:{sws+3}], s{48 + i} offen offset:{(n%2)*2048} sc1", ("T", n))
                if i == 4 and n % 2 == 1:
                    a(f"v_add_u32 v20, 4096, v20")
            ops.append(f)
        return ops

    def wreads(n, nt, tag=0):
        o = (n % RING) * WSL
        w.ilg(f"ds_read_b64_tr_b16 v[{WFR+4*nt}:{WFR+4*nt+1}], v{8+nt} offset:{o}", (tag, n, nt))
        w.ilg(f"ds_read_b64_tr_b16 v[{WFR+4*nt+2}:{WFR+4*nt+3}], v{8+nt} offset:{o + 512}", (tag, n, nt))

    for n in range(RING - 1):
        for f in issue_w(n):
            f()
    for i in range(3):
        if i == 2:
            a("s_mov_b32 exec_hi, 0")
        a(f"buffer_load_dwordx4 v[{XR+4*i}:{XR+4*i+3}], v7, s[{sx}:{sx+3}], s{59+i} offen")
    a("s_mov_b32 exec_hi, -1")
    for i in range(20):
        a(f"v_mov_b32 v{TOK+80+i}, 0")
    a(f"""
    s_mul_i32 s44, s38, 80
    s_add_u32 s45, s44, 79
    s_min_u32 s45, s45, 2047
    s_lshr_b32 s56, s44, 8
    s_lshr_b32 s57, s45, 8
    s_sub_u32 s57, s57, s56
    s_lshl_b32 s57, s57, 7
    s_lshl_b32 s56, s56, 7
    s_add_u32 s56, s56, {FLG + 2048}
    v_and_b32 v23, 31, v1
    v_lshlrev_b32 v23, 2, v23
    v_lshrrev_b32 v22, 5, v1
    v_mul_lo_u32 v22, v22, s57
    v_add_u32 v23, v23, v22
    s_lshr_b32 s44, s44, 7
    s_lshr_b32 s45, s45, 7
    s_cmp_lg_u32 s40, 0
    s_cbranch_scc1 {L}_GO
    s_sub_u32 s45, s45, s44
    s_lshl_b32 s45, s45, 7
    s_lshl_b32 s44, s44, 7
    s_add_u32 s44, s44, {FLG}
    v_and_b32 v21, 15, v1
    v_lshlrev_b32 v21, 2, v21
    v_bfe_u32 v22, v1, 4, 1
    v_mul_lo_u32 v22, v22, s45
    v_add_u32 v21, v21, v22
    s_mov_b32 s47, 0
    {L}_POLL:
    buffer_load_dword v22, v21, s[{sws}:{sws+3}], s44 offen sc1
    s_waitcnt vmcnt(0)
    v_cmp_eq_u32 vcc, 0, v22
    s_cmp_eq_u64 vcc, 0
    s_cbranch_scc1 {L}_GO
    s_add_u32 s47, s47, 1
    s_cmp_ge_u32 s47, 0x40000
    s_cbranch_scc1 {L}_GO
    s_sleep 6
    s_branch {L}_POLL
    {L}_GO:
    s_waitcnt vmcnt(0)
    s_barrier
    s_setprio {prio}
    """)
    w.vm = []
    pf.stamp()
    for n in range(DEPTH):
        for f in issue_t(n):
            f()
    for nt in range(4):
        wreads(0, nt)
    for n in range(NS):
        if n + 1 < NS:
            w.wvm(("W", n + 1))
        w.wvm(("T", n))
        pend = (issue_t(n + DEPTH) if n + DEPTH < NS else []) + (issue_w(n + RING - 1) if n + RING - 1 < NS else [])
        if n == NS - 1:
            pend = [lambda: w.ivm(f"buffer_load_dword v22, v23, s[{sws}:{sws+3}], s56 offen sc1", "OF")]
        tk = TOK + 20 * (n % TRING)
        q = 0
        for nt in range(4):
            w.wlg((0, n, nt))
            for i in range(5):
                d = ACC + 20 * nt + 4 * i
                c = "0" if n == 0 else f"v[{d}:{d+3}]"
                a(f"v_mfma_f32_16x16x32_bf16 v[{d}:{d+3}], v[{WFR+4*nt}:{WFR+4*nt+3}], v[{tk+4*i}:{tk+4*i+3}], {c}")
                q += 1
                if q % 2 == 0 and pend:
                    pend.pop(0)()
            if n + 1 < NS:
                wreads(n + 1, nt)
        for f in pend:
            f()
    pf.stamp()
    a("s_setprio 3")
    a(f"""
    v_mov_b32 v2, v12
    v_mov_b32 v3, v13
    v_add_u32 v4, 2304, v14
    v_add_u32 v5, 2304, v15
    v_mov_b32 v{TMP+6}, v18
    v_mov_b32 v{TMP+7}, v19
    """)
    tok_bases(a, 36 * 1024)
    a(f"""
    s_mul_i32 s44, s40, {144*1152}
    s_mov_b32 s45, s44
    s_lshl_b32 s58, s40, 13
    s_add_u32 s58, s58, {OF}
    v_add_u32 v21, s58, v6            ; o mains
    v_add_u32 v20, 4096, v21
    s_lshl_b32 s58, s40, 10
    s_add_u32 s58, s58, {OF + 32*1024}
    v_add_u32 v6, s58, v6             ; o tails
    """)

    def o_loads():
        a(f"""
        s_mov_b32 s47, 0
        {L}_POLL2:
        s_waitcnt vmcnt(0)
        v_cmp_eq_u32 vcc, 0, v22
        s_cmp_eq_u64 vcc, 0
        s_cbranch_scc1 {L}_GO2
        s_add_u32 s47, s47, 1
        s_cmp_ge_u32 s47, 0x40000
        s_cbranch_scc1 {L}_GO2
        s_sleep 8
        buffer_load_dword v22, v23, s[{sws}:{sws+3}], s56 offen sc1
        s_branch {L}_POLL2
        {L}_GO2:
        """)
        w.vm = []
        for n in range(5):
            tk = TOK + 20 * n
            if n == 4:
                a("s_mov_b32 exec_hi, 0")
            for i in range(5):
                if n < 4:
                    w.ivm(f"buffer_load_dwordx4 v[{tk+4*i}:{tk+4*i+3}], v{21 if n < 2 else 20}, s[{sws}:{sws+3}], s{48 + i} offen offset:{(n%2)*2048} sc1", ("OT", n))
                else:
                    w.ivm(f"buffer_load_dwordx4 v[{tk+4*i}:{tk+4*i+3}], v6, s[{sws}:{sws+3}], s{48 + i} offen sc1", ("OT", n))
        a("s_mov_b32 exec_hi, -1")
    reduce_write(a, ACC, TMP, mid=o_loads)
    R = [ACC + 8 * i for i in range(10)] + [WFR, WFR + 8]
    reduce_read(a, R)
    a("s_waitcnt lgkmcnt(0)\ns_barrier")
    pf.stamp()
    for n in range(5):
        a(f"s_add_u32 m0, s42, {n*WSL}")
        regs = [2, 3, 4, 5] if n < 4 else [TMP + 6, TMP + 7, 4, 5]
        for i in range(4):
            w.ivm(f"buffer_load_dwordx4 v{regs[i]}, s[{swo}:{swo+3}], s{44 if n < 4 else 45} offen offset:{1024*i} lds", ("OW", n))
        if n < 4:
            a(f"s_add_u32 s44, s44, {36*1152}")
    a(f"s_mov_b32 s56, {fbits(-math.log2(math.e))}")
    for rd in (2, 0, 1):
        reduce_sum(a, R, rd, wait=False)
        b, t = rreg(R, rd, 0), rreg(R, rd, 1)
        for e in range(8):
            a(f"v_mul_f32 v{t+e}, s56, v{b+e}")
        for e in range(8):
            a(f"v_exp_f32 v{t+e}, v{t+e}")
        for e in range(8):
            a(f"v_add_f32 v{t+e}, 1.0, v{t+e}")
        for e in range(8):
            a(f"v_rcp_f32 v{t+e}, v{t+e}")
        for e in range(8):
            a(f"v_mul_f32 v{b+e}, v{b+e}, v{t+e}")
        for e in range(4):
            a(f"v_cvt_pk_bf16_f32 v{GS+4*rd+e}, v{b+2*e}, v{b+2*e+1}")
    w.lg = []
    w.wvm(("OW", 0))
    for nt in range(4):
        wreads(0, nt, 1)
    for n in range(5):
        if n + 1 < 5:
            w.wvm(("OW", n + 1))
        tk = TOK + 20 * n
        for nt in range(4):
            w.wlg((1, n, nt))
            for i in range(5):
                d = ACC + 20 * nt + 4 * i
                c = "0" if n == 0 else f"v[{d}:{d+3}]"
                a(f"v_mfma_f32_16x16x32_bf16 v[{d}:{d+3}], v[{WFR+4*nt}:{WFR+4*nt+3}], v[{tk+4*i}:{tk+4*i+3}], {c}")
            if n + 1 < 5:
                wreads(n + 1, nt, 1)
    pf.stamp()
    reduce_write(a, ACC, TMP, addr=False)
    R = [TOK + 8 * i for i in range(12)]
    reduce_read(a, R)
    for rd in range(3):
        b = rreg(R, rd, 0)
        U = ACC + 16 * rd
        for e in range(4):
            a(f"v_lshlrev_b32 v{U+2*e}, 16, v{XR+4*rd+e}")
            a(f"v_and_b32 v{U+2*e+1}, 0xffff0000, v{XR+4*rd+e}")
            a(f"v_lshlrev_b32 v{U+8+2*e}, 16, v{GS+4*rd+e}")
            a(f"v_and_b32 v{U+8+2*e+1}, 0xffff0000, v{GS+4*rd+e}")
        reduce_sum(a, R, rd)
        for e in range(8):
            a(f"v_fmac_f32 v{U+e}, v{b+e}, v{U+8+e}")
        for e in range(4):
            a(f"v_cvt_pk_bf16_f32 v{XR+4*rd+e}, v{U+2*e}, v{U+2*e+1}")
        if rd == 2:
            a("s_mov_b32 exec_hi, 0")
        a(f"buffer_store_dwordx4 v[{XR+4*rd}:{XR+4*rd+3}], v7, s[{sout}:{sout+3}], s{59+rd} offen")
    a("s_mov_b32 exec_hi, -1")
```

```python
from common import *

SC = " sc1" if os.environ.get("SC1", "1") == "1" else ""

def build_k1(LA_A=int(os.environ.get('LAA', '10')), LA_B=40, INIT=4, ROT=int(os.environ.get('ROT', '0')), PFK1=int(os.environ.get('PFK1', '1')), SLGAP=int(os.environ.get('SLGAP', '40')), PFT0=int(os.environ.get('PFT0', '40')), PFDT=int(os.environ.get('PFDT', '4'))):
    RINGB = 160 * 1024
    k = Kernel("k1_gemm1_kernel", 256, 256, RINGB, 256, nagpr=144 + 60)
    a = k.a
    w = Waits(a)
    pf = Prof(a, bool(PROF), 1)
    ACC0, ACC1, Z2P, TMP = 16, 96, 160, 196
    AW = 144
    vL16, vRd, vZa, vZb, vGC2, vSum, vSq, vL1k = 3, 4, 5, 6, 7, 8, 9, 13
    a(f"""
    s_cmp_ge_u32 s2, 256
    s_cbranch_scc1 K1_END
    s_load_dwordx2 s[26:27], s[0:1], {KA_WS}
    s_load_dwordx2 s[4:5], s[0:1], {KA_WSP}
    s_load_dwordx2 s[6:7], s[0:1], {KA_WOUT}
    s_load_dwordx2 s[24:25], s[0:1], {KA_WO}
    v_and_b32 v1, 63, v0              ; lane
    v_lshrrev_b32 v2, 6, v0           ; wave
    s_and_b32 s28, s2, 7
    s_lshr_b32 s29, s2, 3
    s_and_b32 s30, s28, 1
    s_lshl_b32 s30, s30, 3
    s_and_b32 s31, s29, 7
    s_add_u32 s30, s30, s31           ; rb
    s_lshr_b32 s31, s28, 1
    s_lshl_b32 s31, s31, 2
    s_lshr_b32 s32, s29, 3
    s_add_u32 s31, s31, s32           ; g
    v_readfirstlane_b32 s32, v2       ; wave
    s_lshl_b32 s33, s30, 2
    s_add_u32 s33, s33, s32
    v_lshlrev_b32 v{vL16}, 4, v1
    s_and_b32 s53, s29, 7
    s_lshr_b32 s54, s29, 3
    s_lshl_b32 s54, s54, 1
    s_add_u32 s53, s53, s54
    s_sub_u32 s54, s53, 9
    s_cmp_ge_u32 s53, 9
    s_cselect_b32 s53, s54, s53
    s_mul_i32 s53, s53, {ROT}
    s_mul_i32 s38, s33, {36*1024}
    s_add_u32 s38, s38, {XF}
    s_add_u32 s35, s38, {36*1024}
    s_lshl_b32 s54, s53, 12
    s_add_u32 s34, s38, s54
    s_mul_i32 s36, s32, 5120
    s_lshl_b32 s39, s32, 12
    s_mul_i32 s54, s31, {WFG}
    s_add_u32 s54, s54, {WF}
    s_add_u32 s55, s54, s39
    s_add_u32 s57, s54, s36
    s_add_u32 s56, s57, {9*20480}
    s_mul_i32 s58, s53, 20480
    s_add_u32 s37, s57, s58
    s_lshl_b32 s58, s53, 14           ; rot*16K
    v_add_u32 v{vL1k}, 1024, v{vL16}
    v_mov_b32 v{vRd}, v{vL16}
    s_waitcnt lgkmcnt(0)
    """)
    srd(a, 16, 24, SZ_WO)
    srd(a, 8, 6, SZ_WOUT)
    srd(a, 20, 26, WS_USED)
    srd(a, 12, 4, SZ_WSP)
    pf.stamp()

    steps = []
    for g_, n_ in ((0, 5), (1, 4), (2, 4)):
        for ks in range(36):
            steps.append((g_, ks, n_))
    NT = len(steps)
    NUN = NT // 4
    usize = [steps[4 * u][2] * 4096 for u in range(NUN)]
    upos = []
    uwait = []
    pos_ = 0
    for u in range(NUN):
        if pos_ + usize[u] > RINGB:
            pos_ = 0
        upos.append(pos_)
        conf = [v for v in range(u) if upos[v] < pos_ + usize[u] and pos_ < upos[v] + usize[v]]
        uwait.append(max(conf) if conf else -1)
        pos_ += usize[u]
    order = []
    for u in range(NUN):
        if u < 9:
            order.append((4 * u, "x", u))
        order.append((4 * u, "u", u))
    st = dict(i=0, sub=0, done=-1)

    def item_ops(kind, u):
        ops = []
        if kind == "x":
            for i in range(4):
                ks = 4 * u + i
                ops.append(lambda ks=ks, i=i: w.ivm(
                    f"buffer_load_dwordx4 a[{4*ks}:{4*ks+3}], v{vL16}, s[20:23], s34 offen offset:{1024*i}", ("X", u)))
            def adv():
                a(f"""
                s_add_u32 s34, s34, 4096
                s_cmp_eq_u32 s34, s35
                s_cselect_b32 s34, s38, s34
                """)
            last = ops[-1]
            ops[-1] = lambda: (last(), adv())
        else:
            g_ = u // 9
            n_ = 5 if g_ == 0 else 4
            sw = 36 if g_ == 0 else 39
            def first():
                if u % 9 == 0 and u > 0:
                    a(f"""
                    s_add_u32 s57, s55, {WFC if g_ == 1 else WFB}
                    s_add_u32 s56, s57, {9*16384}
                    s_add_u32 s37, s57, s58
                    """)
                a(f"s_add_u32 m0, s{sw}, {upos[u]}")
                w.ivm(f"buffer_load_dwordx4 v{vL16}, s[20:23], s37 offen lds", ("U", u))
            ops.append(first)
            for i in range(1, 4):
                ops.append(lambda i=i: w.ivm(f"buffer_load_dwordx4 v{vL16}, s[20:23], s37 offen offset:{1024*i} lds", ("U", u)))
            if n_ == 5:
                def fifth():
                    a(f"s_add_u32 m0, s{sw}, {upos[u] + 1024}")
                    w.ivm(f"buffer_load_dwordx4 v{vL1k}, s[20:23], s37 offen offset:3072 lds", ("U", u))
                ops.append(fifth)
            def adv():
                a(f"""
                s_add_u32 s37, s37, {n_*4096}
                s_cmp_eq_u32 s37, s56
                s_cselect_b32 s37, s57, s37
                """)
            last = ops[-1]
            ops[-1] = lambda: (last(), adv())
        return ops

    cur = []

    def issue_next(t, force_upto=None):
        if not cur:
            if st["i"] >= len(order):
                return False
            nt_, kind, idx = order[st["i"]]
            if force_upto is not None:
                if nt_ > force_upto:
                    return False
                assert kind == "x" or uwait[idx] <= st["done"]
            else:
                la = LA_A if t < 30 else LA_B
                if nt_ > t + la or (kind == "u" and uwait[idx] > st["done"]):
                    return False
            cur.extend(item_ops(kind, idx))
            st["i"] += 1
        cur.pop(0)()
        return True

    def ensure(t_end):
        while issue_next(0, force_upto=t_end):
            pass

    rdbase = [0]

    def reads(t):
        g, ks, n = steps[t]
        fs = AW + 20 * (t % 3)
        out = []
        for T in range(n):
            off = upos[t // 4] + ((t % 4) * n + T) * 1024
            want = (off // 65536) * 65536
            if want != rdbase[0]:
                d = want - rdbase[0]
                out.append(lambda d=d: a(f"v_add_u32 v{vRd}, {d & 0xffffffff}, v{vRd}"))
                rdbase[0] = want
            out.append(lambda T=T, off=off, want=want: w.ilg(
                f"ds_read_b128 a[{fs+4*T}:{fs+4*T+3}], v{vRd} offset:{off - want}", (t, T)))
        return out

    def sync(tn):
        u = tn // 4
        ensure(tn)
        w.wvm(("U", u))
        a("s_barrier")
        st["done"] = u - 2

    ensure(INIT)
    pf.stamp()
    vQt, vKVt, vKm = 12, 14, 15
    a(f"""
    s_mov_b32 s40, {fbits(GC1)}
    v_mov_b32 v{vGC2}, {fbits(GC2)}
    v_mov_b32 v{vSum}, 0
    v_mov_b32 v{vSq}, 0
    s_mul_i32 s42, s33, 144
    s_mul_i32 s41, s31, 9
    s_add_u32 s42, s42, s41
    s_lshl_b32 s42, s42, 10
    s_add_u32 s42, s42, {UF}
    s_add_u32 s43, s42, 4096
    s_add_u32 s44, s42, 8192
    s_lshl_b32 s45, s33, 12
    s_add_u32 s45, s45, {STT}
    s_lshl_b32 s46, s31, 8
    s_add_u32 s46, s46, s45
    v_and_b32 v{TMP+1}, 31, v1              ; s
    v_lshrrev_b32 v{TMP}, 5, v1             ; h
    v_lshlrev_b32 v10, 3, v{TMP+1}
    v_lshl_add_u32 v11, v{TMP}, 11, v10
    s_lshl_b32 s47, s31, 7
    s_add_u32 s47, s47, s33           ; 2g*64 + rt
    s_mul_i32 s48, s47, 1152
    s_add_u32 s48, s48, {QF}
    s_add_u32 s59, s48, {64*1152}
    s_mul_i32 s49, s47, 2560
    s_add_u32 s49, s49, {KV}
    s_add_u32 s50, s49, {64*2560}
    s_mov_b32 s51, {fbits(QSCALE)}
    v_mul_u32_u24 v{vQt}, {64*1152}, v{TMP}
    v_lshl_add_u32 v{vQt}, v{TMP+1}, 2, v{vQt}
    v_mul_u32_u24 v{vKVt}, {64*2560}, v{TMP}
    v_lshl_add_u32 v{vKVt}, v{TMP+1}, 4, v{vKVt}
    v_lshlrev_b32 v{vKm}, 8, v{TMP}
    s_lshl_b32 s52, s47, 2
    s_add_u32 s52, s52, {KMX}
    v_lshlrev_b32 v{TMP+2}, 2, v{TMP}
    v_xor_b32 v{TMP+2}, v{TMP+2}, v{TMP+1}
    v_lshl_add_u32 v{TMP+2}, v{TMP}, 5, v{TMP+2}
    v_lshlrev_b32 v{vZa}, 4, v{TMP+2}
    s_lshl_b32 s54, s31, 6
    s_add_u32 s54, s54, s33
    s_mul_i32 s54, s54, 9216
    s_add_u32 s54, s54, {Z2N}
    """)

    def gelu8(base, ti):
        return gelu_group(list(range(base, base + 8)), [TMP + 8 * (ti % 2) + i for i in range(8)], 40, vGC2)

    epiB, epiC = [], []
    E = lambda lst, s: lst.append(lambda s=s: a(s))
    ST = lambda lst, s, tag="st": lst.append(lambda s=s: w.ivm(s, tag))
    for gi in range(9):
        base = ACC0 + 8 * gi
        for s in gelu8(base, gi):
            E(epiB, s)
        for i in range(4):
            E(epiB, f"v_cvt_pk_bf16_f32 v{Z2P+4*gi+i}, v{base+2*i}, v{base+2*i+1}")
        for i in range(8):
            E(epiB, f"v_add_f32 v{vSum}, v{vSum}, v{base+i}")
            E(epiB, f"v_fmac_f32 v{vSq}, v{base+i}, v{base+i}")

    def pub1():
        reduce_x32(a, vSum, TMP + 16)
        reduce_x32(a, vSq, TMP + 16)
        a("s_mov_b32 exec_hi, 0")
        w.ivm(f"buffer_store_dwordx2 v[{vSum}:{vSq}], v10, s[20:23], s46 offen sc1", "STAT")
        a("s_mov_b32 exec_hi, -1")
    epiB.append(pub1)

    SR = TMP
    PK = TMP + 16
    Q, K, V, M = ACC1, ACC1 + 16, ACC1 + 32, ACC1 + 48
    base = ACC0 + 72
    for s in gelu8(base, 0):
        E(epiC, s)
    for i in range(4):
        E(epiC, f"v_cvt_pk_bf16_f32 v{PK+i}, v{base+2*i}, v{base+2*i+1}")
    for i in range(16):
        E(epiC, f"v_mul_f32 v{Q+i}, s51, v{Q+i}")
    for j, X in enumerate((Q, K, V)):
        for i in range(8):
            E(epiC, f"v_cvt_pk_bf16_f32 v{PK+4+8*j+i}, v{X+2*i}, v{X+2*i+1}")
    kk = PK + 33
    for s in f"""v_mul_f32 v{M}, s51, v{M}
    v_mul_f32 v{M+1}, s51, v{M+1}
    v_cvt_pk_bf16_f32 v{PK+32}, v{M}, v{M+1}
    v_cvt_pk_bf16_f32 v{PK+28}, v{M+2}, v{M+3}
    v_mov_b32 v{PK+29}, 0x3f803f80
    v_cvt_pk_bf16_f32 v{PK+30}, v{M+4}, v{M+5}
    v_mov_b32 v{PK+31}, 0x00003f80
    v_mul_f32 v{kk}, v{K}, v{K}
    v_mul_f32 v{kk+1}, v{K+8}, v{K+8}""".split("\n"):
        E(epiC, s.strip())
    for i in range(1, 8):
        E(epiC, f"v_fmac_f32 v{kk}, v{K+i}, v{K+i}")
        E(epiC, f"v_fmac_f32 v{kk+1}, v{K+8+i}, v{K+8+i}")
    for s in [f"v_permlane32_swap_b32 v{kk}, v{kk+1}", f"v_add_f32 v{kk}, v{kk}, v{kk+1}",
              f"v_fmac_f32 v{kk}, v{M+2}, v{M+2}", f"v_fmac_f32 v{kk}, v{M+3}, v{M+3}"]:
        E(epiC, s)
    for mod in ("quad_perm:[1,0,3,2]", "quad_perm:[2,3,0,1]", "row_half_mirror", "row_mirror"):
        E(epiC, f"v_max_f32_dpp v{kk}, v{kk}, v{kk} {mod} row_mask:0xf bank_mask:0xf")
    for s in [f"v_mov_b32 v{kk+1}, v{kk}", f"v_permlane16_swap_b32 v{kk}, v{kk+1}", f"v_max_f32 v{kk}, v{kk}, v{kk+1}"]:
        E(epiC, s)
    ZU = [ACC1 + 8 * gi for gi in range(8)] + [ACC0 + 72]
    for gi in range(4):
        for i in range(4):
            E(epiC, f"v_lshlrev_b32 v{ZU[gi]+2*i}, 16, v{Z2P+4*gi+i}")
            E(epiC, f"v_and_b32 v{ZU[gi]+2*i+1}, 0xffff0000, v{Z2P+4*gi+i}")
    sl_ = [f"buffer_load_dwordx2 v[{SR+2*i}:{SR+2*i+1}], v11, s[20:23], s45 offen offset:{256*i} sc1" for i in range(8)]
    for s in sl_:
        ST(epiC, s, "SL")
    ST(epiC, f"buffer_store_dwordx4 v[{PK}:{PK+3}], v{vL16}, s[20:23], s44 offen{SC}")
    ST(epiC, f"buffer_store_dwordx4 v[{PK+4}:{PK+7}], v{vL16}, s[20:23], s48 offen{SC}")
    ST(epiC, f"buffer_store_dwordx4 v[{PK+8}:{PK+11}], v{vL16}, s[20:23], s59 offen{SC}")
    ST(epiC, f"buffer_store_dwordx4 v[{PK+12}:{PK+15}], v{vL16}, s[20:23], s49 offen{SC}")
    ST(epiC, f"buffer_store_dwordx4 v[{PK+16}:{PK+19}], v{vL16}, s[20:23], s50 offen{SC}")
    ST(epiC, f"buffer_store_dwordx4 v[{PK+20}:{PK+23}], v{vL16}, s[20:23], s49 offen offset:1024{SC}")
    ST(epiC, f"buffer_store_dwordx4 v[{PK+24}:{PK+27}], v{vL16}, s[20:23], s50 offen offset:1024{SC}")
    ST(epiC, f"buffer_store_dwordx4 v[{PK+28}:{PK+31}], v{vKVt}, s[20:23], s49 offen offset:2048{SC}")
    ST(epiC, f"buffer_store_dword v{PK+32}, v{vQt}, s[20:23], s48 offen offset:1024{SC}")
    def kst():
        a("s_mov_b32 exec_lo, 1\ns_mov_b32 exec_hi, 1")
        w.ivm(f"buffer_store_dword v{kk}, v{vKm}, s[20:23], s52 offen", "st")
        a("s_mov_b64 exec, -1")
    epiC.append(kst)
    vPf, vPd = TMP + 58, TMP + 59
    a(f"""
    v_lshlrev_b32 v{vPf}, 7, v1
    v_mov_b32 v{vPd}, 0x40000000
    v_cmp_gt_u32 vcc, 16, v1
    v_cndmask_b32 v{vPf}, v{vPd}, v{vPf}, vcc
    s_lshl_b32 s60, s2, 2
    s_add_u32 s60, s60, s32
    s_mul_i32 s61, s60, {21*128}
    s_mul_i32 s3, s60, {6*128}
    s_lshl_b32 s60, s60, 13
    """)
    pfl = {}
    if PFK1:
        t0, dt = PFT0, PFDT
        pfl[t0] = f"buffer_load_dword v{vPd}, v{vPf}, s[12:15], s60 offen"
        pfl[t0 + dt] = f"buffer_load_dword v{vPd}, v{vPf}, s[12:15], s60 offen offset:2048\ns_add_u32 s60, s60, 4096"
        pfl[t0 + 2 * dt] = pfl[t0]
        pfl[t0 + 3 * dt] = pfl[t0 + dt]
        pfl[t0 + 4 * dt] = f"buffer_load_dword v{vPd}, v{vPf}, s[8:11], s61 offen"
        pfl[t0 + 5 * dt] = f"buffer_load_dword v{vPd}, v{vPf}, s[8:11], s61 offen offset:640"
        pfl[t0 + 6 * dt] = f"buffer_load_dword v{vPd}, v{vPf}, s[16:19], s3 offen"
    for gi in range(4, 9):
        for i in range(4):
            E(epiC, f"v_lshlrev_b32 v{ZU[gi]+2*i}, 16, v{Z2P+4*gi+i}")
            E(epiC, f"v_and_b32 v{ZU[gi]+2*i+1}, 0xffff0000, v{Z2P+4*gi+i}")
    for _ in range(SLGAP):
        epiC.append(lambda: None)
    vm, vv = SR, SR + 1
    def stats():
        w.wvm("SL")
        a(f"""
        s_mov_b32 s53, 0
        K1_POLL:
        v_min3_f32 v{vSum}, v{SR+1}, v{SR+3}, v{SR+5}
        v_min3_f32 v{vSum}, v{vSum}, v{SR+7}, v{SR+9}
        v_min3_f32 v{vSum}, v{vSum}, v{SR+11}, v{SR+13}
        v_min_f32 v{vSum}, v{vSum}, v{SR+15}
        v_cmp_gt_f32 vcc, 0, v{vSum}
        s_cmp_lg_u64 vcc, 0
        s_cbranch_scc1 K1_RETRY
        K1_GOT:
        """)
    epiC.append(stats)
    for i in range(1, 8):
        E(epiC, f"v_add_f32 v{SR}, v{SR}, v{SR+2*i}")
        E(epiC, f"v_add_f32 v{SR+1}, v{SR+1}, v{SR+2*i+1}")
    for s in f"""v_mov_b32 v{SR+2}, v{SR}
    v_mov_b32 v{SR+3}, v{SR+1}
    v_permlane32_swap_b32 v{SR}, v{SR+2}
    v_permlane32_swap_b32 v{SR+1}, v{SR+3}
    v_add_f32 v{SR}, v{SR}, v{SR+2}
    v_add_f32 v{SR+1}, v{SR+1}, v{SR+3}
    v_mul_f32 v{vm}, {fbits(1.0/FH)}, v{vm}
    v_mul_f32 v{vv}, {fbits(1.0/FH)}, v{vv}
    v_fma_f32 v{vv}, -v{vm}, v{vm}, v{vv}
    v_max_f32 v{vv}, 0, v{vv}
    v_cvt_pk_bf16_f32 v{vm}, v{vm}, v{vm}
    v_cvt_pk_bf16_f32 v{vv}, v{vv}, v{vv}
    v_lshlrev_b32 v{vm}, 16, v{vm}
    v_lshlrev_b32 v{vv}, 16, v{vv}
    v_add_f32 v{vv}, {fbits(1e-5)}, v{vv}
    v_cvt_pk_bf16_f32 v{vv}, v{vv}, v{vv}
    v_lshlrev_b32 v{vv}, 16, v{vv}
    v_sqrt_f32 v{vv}, v{vv}
    v_cvt_pk_bf16_f32 v{vv}, v{vv}, v{vv}
    v_lshlrev_b32 v{vv}, 16, v{vv}
    v_rcp_f32 v{vv}, v{vv}
    v_mul_f32 v{vm}, -v{vm}, v{vv}""".split("\n"):
        E(epiC, s.strip())
    for gi in range(9):
        b = ZU[gi]
        for i in range(8):
            E(epiC, f"v_fma_f32 v{b+i}, v{b+i}, v{vv}, v{vm}")
        for i in range(4):
            E(epiC, f"v_cvt_pk_bf16_f32 v{Z2P+4*gi+(i ^ 2 if gi % 2 else i)}, v{b+2*i}, v{b+2*i+1}")
        def zst(gi=gi):
            w.ivm(f"buffer_store_dwordx4 v[{Z2P+4*gi}:{Z2P+4*gi+3}], v{vZa}, s[20:23], s54 offen offset:{(gi % 4) * 1024}{SC}", "st")
            if gi % 4 == 3:
                a("s_add_u32 s54, s54, 4096")
        epiC.append(zst)
    pos = {1: 0, 2: 0}

    sync(0)
    pf.stamp()
    for f in reads(0) + reads(1):
        f()
    slot = {1: 0, 2: 0}
    for t in range(NT):
        g, ks, n = steps[t]
        if t in (12, 36, 72):
            pf.stamp()
        tn = t + 2
        if tn < NT and tn % 4 == 0:
            sync(tn)
        if t in pfl:
            w.ivm(pfl[t], "pf")
        rd = reads(tn) if tn < NT else []
        fs = AW + 20 * (t % 3)
        acc = ACC1 if g == 1 else ACC0
        nrd = len(rd)
        for T in range(n):
            if T % 2 == 0:
                w.wlg((t, min(T + 1, n - 1)))
            c = "0" if ks == 0 else f"v[{acc+16*T}:{acc+16*T+15}]"
            a(f"v_mfma_f32_32x32x16_bf16 v[{acc+16*T}:{acc+16*T+15}], a[{fs+4*T}:{fs+4*T+3}], a[{4*ks}:{4*ks+3}], {c}")
            for f in rd[(nrd * T) // n:(nrd * (T + 1)) // n]:
                f()
            if T % 2 == 0 or g == 0:
                issue_next(t)
            if g >= 1 and ks >= 1:
                epi = epiB if g == 1 else epiC
                slot[g] += 1
                tot = 35 * 4 - (4 if g == 1 else 0)
                tgt = min(len(epi), (len(epi) * slot[g] + tot - 1) // tot)
                while pos[g] < tgt:
                    epi[pos[g]]()
                    pos[g] += 1
    assert pos[1] == len(epiB) and pos[2] == len(epiC) and st["i"] == len(order) and not cur
    pf.stamp()
    for gi in range(8):
        base = ACC0 + 8 * gi
        for s in gelu8(base, gi):
            a(s)
        pk = ACC1 + 4 * gi
        for i in range(4):
            a(f"v_cvt_pk_bf16_f32 v{pk+i}, v{base+2*i}, v{base+2*i+1}")
        a(f"buffer_store_dwordx4 v[{pk}:{pk+3}], v{vL16}, s[20:23], s{42 + gi // 4} offen offset:{(gi % 4) * 1024}{SC}")
    pf.stamp()
    pf.dump(20, 4)
    a(f"""
    K1_END:
    s_endpgm
    K1_RETRY:
    s_add_u32 s53, s53, 1
    s_cmp_ge_u32 s53, 0x40000
    s_cbranch_scc1 K1_GOT
    s_sleep 1
    """)
    for s in sl_:
        a(s)
    a("""
    s_waitcnt vmcnt(0)
    s_branch K1_POLL
    """)
    return k
```

```python
from common import *
from k2a import attn_body
from k2b import gemm2_body
from k3 import outproj_body, sproj_body

def build_k2(prio_attn=1, prio_gemm=0, kidx=2):
    k = Kernel("k2_mix_kernel", 512, 256, 81920, 256)
    a = k.a
    pf = Prof(a, bool(PROF), kidx)
    pf.stamp()
    a(f"""
    s_cmp_ge_u32 s2, 512
    s_cbranch_scc1 K2_END
    s_load_dwordx4 s[4:7], s[0:1], {KA_WSP}
    s_load_dwordx2 s[24:25], s[0:1], {KA_WOUT}
    s_load_dwordx2 s[26:27], s[0:1], {KA_WS}
    s_waitcnt lgkmcnt(0)
    """)
    srd(a, 12, 4, SZ_WSP)
    srd(a, 16, 6, SZ_BSP)
    srd(a, 20, 26, WS_USED)
    a("""
    s_cmp_lt_u32 s2, 256
    s_cbranch_scc1 K2_ATT
    """)
    if prio_gemm:
        a(f"s_setprio {prio_gemm}")
    n0 = pf.n
    a("s_sub_u32 s3, s2, 256")
    srd(a, 8, 24, SZ_WOUT)
    gemm2_body(a, pf, "s3", 20, 12, 16, loop_prio=int(os.environ.get("GLP", "2")))
    a(f"""
    s_waitcnt vmcnt(0)
    s_barrier
    s_cmp_lg_u32 s32, 0
    s_cbranch_scc1 K2_NOSIG
    s_lshl_b32 s30, s30, 7
    s_lshl_b32 s31, s31, 2
    s_add_u32 s30, s30, s31
    s_add_u32 s30, s30, {FLG}
    v_mov_b32 v1, 0
    v_mov_b32 v2, 1
    s_mov_b64 exec, 1
    buffer_store_dword v2, v1, s[20:23], s30 offen sc1
    s_mov_b64 exec, -1
    K2_NOSIG:
    """)
    pf.stamp()
    a(f"""
    s_load_dwordx2 s[4:5], s[0:1], {KA_X}
    s_load_dwordx2 s[24:25], s[0:1], {KA_OUT}
    s_waitcnt lgkmcnt(0)
    """)
    srd(a, 12, 4, SZ_X)
    srd(a, 4, 24, SZ_X)
    outproj_body(a, pf, "s3", 20, 8, 12, 4, "K2_END", prio=int(os.environ.get("OPP", "0")))
    pf.dump(20, 4)
    a("s_endpgm")
    a.label("K2_ATT")
    if os.environ.get("NOATT"):
        a("s_endpgm")
    pf.n = n0
    if prio_attn:
        a(f"s_setprio {prio_attn}")
    a(f"s_load_dwordx2 s[4:5], s[0:1], {KA_WO}\ns_waitcnt lgkmcnt(0)")
    srd(a, 8, 4, SZ_WO)
    attn_body(a, pf, "s2", 20)
    a(f"""
    s_waitcnt vmcnt(0)
    s_barrier
    s_cmp_lg_u32 s32, 0
    s_cbranch_scc1 K2_NOSIG2
    s_lshl_b32 s31, s31, 7
    s_lshl_b32 s30, s30, 2
    s_add_u32 s30, s30, s31
    s_add_u32 s30, s30, {FLG + 2048}
    v_mov_b32 v1, 0
    v_mov_b32 v2, 1
    s_mov_b64 exec, 1
    buffer_store_dword v2, v1, s[20:23], s30 offen sc1
    s_mov_b64 exec, -1
    K2_NOSIG2:
    """)
    pf.stamp()
    sproj_body(a, pf, "s2", 20, 8, "K2_END")
    pf.dump(20, 4)
    a("K2_END:\ns_endpgm")
    return k
```

```python
from common import *

STG = 17408


def gemm2_body(a, pf, sid, sws, swsp, sbsp, L="G2", loop_prio=0):
    ACC = 16
    FA = [88, 124]
    FB = [160, 168]
    Z1 = 176
    TMP = 212
    vL16 = 2
    rB = 3
    rA = [4, 5, 6, 7]
    rX = [8, 9]
    dT, dT2 = 10, 11
    vU, vU9 = 12, 13
    a(f"""
    v_and_b32 v1, 63, v0
    v_lshrrev_b32 v{TMP}, 6, v0
    s_and_b32 s28, {sid}, 7
    s_lshr_b32 s29, {sid}, 3
    s_and_b32 s30, s28, 1
    s_lshl_b32 s30, s30, 3
    s_and_b32 s31, s29, 7
    s_add_u32 s30, s30, s31           ; tb
    s_lshr_b32 s31, s28, 1
    s_lshl_b32 s31, s31, 2
    s_lshr_b32 s32, s29, 3
    s_add_u32 s31, s31, s32           ; fb
    v_readfirstlane_b32 s32, v{TMP}   ; wave
    v_lshlrev_b32 v{vL16}, 4, v1
    v_lshrrev_b32 v{TMP+1}, 2, v1
    v_lshrrev_b32 v{TMP+3}, 4, v1                 ; q = r>>2
    v_lshlrev_b32 v{TMP+4}, 1, v{TMP+3}
    v_and_b32 v{TMP+4}, 3, v{TMP+4}
    v_lshrrev_b32 v{TMP+3}, 1, v{TMP+3}
    v_mul_u32_u24 v{TMP+3}, 3, v{TMP+3}
    v_xor_b32 v{TMP+3}, v{TMP+3}, v{TMP+4}
    v_and_b32 v{TMP+2}, 3, v1
    v_xor_b32 v{TMP+2}, v{TMP+2}, v{TMP+3}
    s_lshl_b32 s38, s32, 11
    s_add_u32 s39, s38, 8192
    s_lshl_b32 s40, s32, 8
    s_add_u32 s41, s40, 8192
    s_add_u32 s40, s40, 16384
    s_lshl_b32 s44, s30, 7
    s_lshl_b32 s45, s32, 5
    s_add_u32 s44, s44, s45
    v_add_u32 v{TMP+1}, s44, v{TMP+1}
    v_lshlrev_b32 v{dT}, 12, v{TMP+1}
    v_lshl_add_u32 v{dT}, v{TMP+2}, 4, v{dT}
    v_add_u32 v{dT2}, {16*4096 - 1024}, v{dT}
    s_mov_b32 s42, 0
    s_mul_i32 s43, s31, {64*9216}
    s_add_u32 s43, s43, {Z2N}
    s_add_u32 s46, s43, s41
    s_add_u32 s43, s43, s38
    """)

    def dma_sp(sl):
        o = sl * STG
        return [f"s_add_u32 m0, s39, {o}\nbuffer_load_dwordx4 v{vL16}, s[{sws}:{sws+3}], s43 offen lds",
                f"buffer_load_dwordx4 v{vL16}, s[{sws}:{sws+3}], s43 offen offset:1024 lds\ns_add_u32 s43, s43, 9216",
                f"s_add_u32 m0, s40, {o}\ns_mov_b64 exec, 0xffff\nbuffer_load_dwordx4 v{vL16}, s[{sws}:{sws+3}], s46 offen lds\n"
                f"s_mov_b64 exec, -1\ns_add_u32 s46, s46, 9216",
                f"s_add_u32 m0, s38, {o}\nbuffer_load_dwordx4 v{dT}, s[{swsp}:{swsp+3}], s42 offen lds",
                f"buffer_load_dwordx4 v{dT2}, s[{swsp}:{swsp+3}], s42 offen offset:1024 lds\ns_add_u32 s42, s42, 64"]

    GD = int(os.environ.get("GD", "1"))
    for st in range(0, 4 - 3 * GD if GD < 2 else 1):
        if GD != 1:
            a.ext(dma_sp(st))
    a(f"""
    v_and_b32 v{TMP+1}, 15, v1
    v_bfe_u32 v{TMP+3}, v1, 2, 2
    v_lshlrev_b32 v{TMP+4}, 1, v{TMP+3}
    v_and_b32 v{TMP+4}, 3, v{TMP+4}
    v_lshrrev_b32 v{TMP+3}, 1, v{TMP+3}
    v_mul_u32_u24 v{TMP+3}, 3, v{TMP+3}
    v_xor_b32 v{TMP+3}, v{TMP+3}, v{TMP+4}
    v_lshrrev_b32 v{TMP+2}, 4, v1                 ; g
    v_xor_b32 v{TMP+3}, v{TMP+3}, v{TMP+2}
    v_lshl_add_u32 v{TMP+3}, v{TMP+1}, 2, v{TMP+3}
    v_lshlrev_b32 v{rB}, 4, v{TMP+3}
    v_add_u32 v{rB}, s38, v{rB}
    v_lshlrev_b32 v{vU}, 9, v{TMP+2}
    v_lshl_add_u32 v{vU}, v{TMP+1}, 4, v{vU}
    v_lshrrev_b32 v{TMP+3}, 1, v{TMP+2}
    v_lshlrev_b32 v{vU9}, 9, v{TMP+3}
    v_lshl_add_u32 v{vU9}, v{TMP+1}, 4, v{vU9}
    v_and_b32 v{TMP+3}, 1, v{TMP+2}
    v_lshl_add_u32 v{vU9}, v{TMP+3}, 3, v{vU9}
    v_bfe_u32 v{TMP+3}, v1, 2, 2
    v_lshl_add_u32 v{TMP+3}, v{TMP+2}, 3, v{TMP+3}   ; s (i = 0)
    v_and_b32 v{TMP+4}, 1, v1
    v_lshlrev_b32 v{TMP+5}, 2, v{TMP+4}
    v_xor_b32 v{TMP+5}, v{TMP+5}, v{TMP+3}
    v_lshlrev_b32 v{TMP+5}, 4, v{TMP+5}
    v_and_b32 v{TMP+6}, 3, v1
    v_lshl_add_u32 v{TMP+5}, v{TMP+6}, 9, v{TMP+5}
    v_bfe_u32 v{TMP+6}, v1, 1, 1
    v_lshl_add_u32 v{TMP+5}, v{TMP+6}, 3, v{TMP+5}
    v_add_u32 v{rA[0]}, 8192, v{TMP+5}
    v_xor_b32 v{rA[1]}, 64, v{rA[0]}
    v_xor_b32 v{rA[2]}, 8, v{rA[0]}
    v_xor_b32 v{rA[3]}, 8, v{rA[1]}
    v_lshlrev_b32 v{TMP+5}, 2, v{TMP+6}
    v_xor_b32 v{TMP+5}, v{TMP+5}, v{TMP+3}
    v_lshlrev_b32 v{TMP+5}, 4, v{TMP+5}
    v_lshl_add_u32 v{TMP+5}, v{TMP+6}, 9, v{TMP+5}
    v_lshl_add_u32 v{TMP+5}, v{TMP+4}, 3, v{TMP+5}
    v_add_u32 v{rX[0]}, 16384, v{TMP+5}
    v_xor_b32 v{rX[1]}, 64, v{rX[0]}
    s_lshl_b32 s48, s30, 2
    s_add_u32 s48, s48, s32
    s_mul_i32 s48, s48, 144
    s_mul_i32 s49, s31, 9
    s_add_u32 s48, s48, s49
    s_lshl_b32 s48, s48, 10
    s_add_u32 s48, s48, {UF}
    s_add_u32 s49, s48, 4096
    s_add_u32 s50, s48, 8192
    s_lshl_b32 s44, s44, 1
    v_lshlrev_b32 v{TMP+21}, 1, v{TMP+1}
    """)

    def reads(sl, k):
        o = sl * STG
        fa, fb = FA[k], FB[k]
        out = [f"ds_read_b128 v[{fb}:{fb+3}], v{rB} offset:{o}", f"ds_read_b128 v[{fb+4}:{fb+7}], v{rB} offset:{o+1024}"]
        for tau in range(9):
            for i in range(2):
                reg = rA[2 * (tau % 2) + i] if tau < 8 else rX[i]
                off = o + (tau // 2) * 2048 if tau < 8 else o
                out.append(f"ds_read_b64_tr_b16 v[{fa+4*tau+2*i}:{fa+4*tau+2*i+1}], v{reg} offset:{off}")
        return out

    def mfmas(k):
        fa, fb = FA[k], FB[k]
        out = []
        for tau in range(9):
            for b in range(2):
                d = ACC + 4 * (2 * tau + b)
                out.append(f"v_mfma_f32_16x16x32_bf16 v[{d}:{d+3}], v[{fa+4*tau}:{fa+4*tau+3}], v[{fb+4*b}:{fb+4*b+3}], v[{d}:{d+3}]")
        return out

    def uop(op, P, b, sc=""):
        if P < 4:
            z = Z1 + 4 * (2 * P + b)
            return f"buffer_{op}_dwordx4 v[{z}:{z+3}], v{vU}, s[{sws}:{sws+3}], s{48 + P // 2} offen offset:{(P % 2) * 2048 + b * 256}{sc}"
        z = Z1 + 32 + 2 * b
        return f"buffer_{op}_dwordx2 v[{z}:{z+1}], v{vU9}, s[{sws}:{sws+3}], s50 offen offset:{b * 256}{sc}"

    for i in range(72):
        a(f"v_mov_b32 v{ACC+i}, 0")
    for st in range(4):
        if GD == 1 or (GD == 2 and st >= 1):
            a.ext(dma_sp(st))
    pf.stamp()
    a(f"s_waitcnt vmcnt(15)\ns_barrier")
    a.ext(reads(0, 0))
    pf.stamp()

    def body(sl, vm, dma, rdnext, extra=None):
        ms = mfmas(sl % 2)
        rd = reads((sl + 1) % 4, (sl + 1) % 2) if rdnext else []
        dm = dma_sp(sl) if dma else []
        extra = list(extra or [])
        a(f"s_waitcnt vmcnt({vm}) lgkmcnt(0)\ns_barrier")
        GS_ = int(os.environ.get("GSCHED", "3"))
        if GS_ == 0:
            for q in range(18):
                a(ms[q])
                if q < 10 and rd:
                    a.ext(rd[2 * q:2 * q + 2])
                if q >= 8 and q % 2 == 0 and dm:
                    a(dm.pop(0))
                if extra:
                    a(extra.pop(0))
        elif GS_ == 1:
            a.ext(dm); a.ext(extra); a.ext(rd); a.ext(ms)
        elif GS_ == 2:
            a.ext(dm); a.ext(extra)
            for q in range(18):
                a(ms[q])
                if rd:
                    a(rd.pop(0))
            a.ext(rd)
        elif GS_ == 3:
            a.ext(rd[:8]); rd = rd[8:]
            for q in range(18):
                a(ms[q])
                if rd:
                    a(rd.pop(0))
            a.ext(dm); a.ext(extra)

    zl = [uop("load", P, b) for P in range(5) for b in range(2)] + \
         [f"buffer_load_ushort v{TMP+18}, v{TMP+21}, s[{sbsp}:{sbsp+3}], s44 offen",
          f"buffer_load_ushort v{TMP+19}, v{TMP+21}, s[{sbsp}:{sbsp+3}], s44 offen offset:32"]
    a(f"s_mov_b32 s47, 15\ns_setprio {loop_prio}")
    a.label(f"{L}_LOOP")
    for sl in range(4):
        body(sl, 10, True, True)
    a(f"""
    s_sub_u32 s47, s47, 1
    s_cmp_lg_u32 s47, 0
    s_cbranch_scc1 {L}_LOOP
    """)
    for sl in range(4):
        body(sl, max(0, 10 - 5 * sl) + (12 if sl > 0 else 0), False, sl < 3, zl if sl == 0 else None)
    pf.stamp()
    a(f"""
    s_setprio 3
    s_waitcnt vmcnt(0)
    v_lshlrev_b32 v{TMP+18}, 16, v{TMP+18}
    v_lshlrev_b32 v{TMP+19}, 16, v{TMP+19}
    """)
    for P in range(5):
        for b in range(2):
            if P < 4:
                src = [ACC + 4 * (2 * (2 * P) + b) + i for i in range(4)] + [ACC + 4 * (2 * (2 * P + 1) + b) + i for i in range(4)]
                z = Z1 + 4 * (2 * P + b)
            else:
                src = [ACC + 4 * (16 + b) + i for i in range(4)]
                z = Z1 + 32 + 2 * b
            n = len(src)
            for r in src:
                a(f"v_add_f32 v{r}, v{r}, v{TMP+18+b}")
            for i in range(n // 2):
                a(f"v_lshlrev_b32 v{TMP+2+2*i}, 16, v{z+i}")
                a(f"v_and_b32 v{TMP+3+2*i}, 0xffff0000, v{z+i}")
            for i, r in enumerate(src):
                a(f"v_mul_f32 v{r}, v{r}, v{TMP+2+i}")
            for i in range(n // 2):
                a(f"v_cvt_pk_bf16_f32 v{z+i}, v{src[2*i]}, v{src[2*i+1]}")
            a(uop("store", P, b, " sc1"))
```

```python
from common import *

WSL = 4096
PART = 80 * 256
NT3 = 234


def tile_setup(a, sid, Lend, TMP, ring_bytes):
    a(f"""
    ; L = (id&7)*30 + (id>>3) ; rb = L/9 ; cb = L%9
    s_and_b32 s36, {sid}, 7
    s_lshr_b32 s37, {sid}, 3
    s_cmp_ge_u32 s37, 30
    s_cbranch_scc1 {Lend}
    s_mul_i32 s36, s36, 30
    s_add_u32 s36, s36, s37
    s_cmp_ge_u32 s36, {NT3}
    s_cbranch_scc1 {Lend}
    s_mul_i32 s38, s36, 7282
    s_lshr_b32 s38, s38, 16           ; rb
    s_mul_i32 s39, s38, 9
    s_sub_u32 s39, s36, s39           ; cb
    v_and_b32 v1, 63, v0
    v_lshrrev_b32 v{TMP}, 6, v0
    s_lshl_b32 s41, s39, 7
    v_lshrrev_b32 v{TMP+1}, 3, v1
    v_readfirstlane_b32 s40, v{TMP}   ; wave
    v_and_b32 v{TMP+2}, 7, v1
    v_and_b32 v{TMP+3}, 2, v{TMP+1}
    v_xor_b32 v{TMP+2}, v{TMP+2}, v{TMP+3}
    v_lshlrev_b32 v{TMP+2}, 4, v{TMP+2}
    v_add_u32 v{TMP+2}, s41, v{TMP+2}
    v_mul_u32_u24 v{TMP+3}, 1152, v{TMP+1}
    v_add_u32 v12, v{TMP+3}, v{TMP+2}             ; i = 0
    v_xor_b32 v13, 64, v12
    v_add_u32 v13, {8*1152 - 1024}, v13           ; i = 1 (imm 1024)
    v_add_u32 v14, {16*1152 - 2048}, v12          ; i = 2
    v_add_u32 v15, {16*1152 - 2048}, v13          ; i = 3
    v_lshrrev_b32 v{TMP+3}, 1, v{TMP+1}
    v_mul_u32_u24 v{TMP+3}, 18, v{TMP+3}
    v_and_b32 v{TMP+4}, 1, v{TMP+1}
    v_add3_u32 v{TMP+3}, v{TMP+3}, v{TMP+4}, 16
    v_mul_u32_u24 v{TMP+3}, 1152, v{TMP+3}
    v_add_u32 v18, v{TMP+3}, v{TMP+2}
    v_xor_b32 v19, 64, v18
    v_add_u32 v19, {72*1152 - 1024}, v19
    v_and_b32 v{TMP+2}, 7, v1
    v_mul_u32_u24 v7, 1152, v{TMP+1}
    v_lshl_add_u32 v7, v{TMP+2}, 4, v7
    v_lshrrev_b32 v{TMP+1}, 4, v1
    v_and_b32 v{TMP+2}, 15, v1
    v_lshlrev_b32 v6, 9, v{TMP+1}
    v_lshl_add_u32 v6, v{TMP+2}, 4, v6
    v_bfe_u32 v{TMP+2}, v1, 2, 2
    v_lshl_add_u32 v{TMP+3}, v{TMP+1}, 3, v{TMP+2}
    v_lshlrev_b32 v{TMP+3}, 7, v{TMP+3}
    v_and_b32 v{TMP+4}, 3, v1
    v_lshl_add_u32 v{TMP+3}, v{TMP+4}, 3, v{TMP+3}
    v_bfe_u32 v{TMP+4}, v1, 3, 2
    v_lshl_add_u32 v{TMP+3}, v{TMP+4}, 5, v{TMP+3}
    s_mul_i32 s42, s40, {ring_bytes}
    v_add_u32 v8, s42, v{TMP+3}
    v_xor_b32 v9, 32, v8
    v_xor_b32 v10, 64, v8
    v_xor_b32 v11, 96, v8
    s_mul_i32 s46, s38, 5
    s_mul_i32 s59, s38, 80
    s_mul_i32 s58, s40, 20
    s_add_u32 s59, s59, s58
    s_mul_i32 s59, s59, 1152
    s_add_u32 s59, s59, s41
    s_add_u32 s60, s59, {8*1152}
    s_add_u32 s61, s59, {16*1152}
    """)


def tok_bases(a, tile_bytes):
    for i in range(5):
        a(f"""
        s_add_u32 s47, s46, {i}
        s_and_b32 s58, s47, 1
        s_lshl_b32 s58, s58, 8
        s_lshr_b32 s47, s47, 1
        s_mul_i32 s{48+i}, s47, {tile_bytes}
        s_add_u32 s{48+i}, s{48+i}, s58
        """)


def reduce_write(a, ACC, TMP, mid=None, addr=True):
    if addr:
        a(f"""
        v_and_b32 v{TMP+1}, 15, v1
        v_lshlrev_b32 v{TMP+1}, 8, v{TMP+1}
        v_lshrrev_b32 v{TMP+2}, 4, v1
        v_and_b32 v{TMP+3}, 7, v1
        v_xor_b32 v{TMP+2}, v{TMP+2}, v{TMP+3}
        v_lshl_add_u32 v{TMP+1}, v{TMP+2}, 4, v{TMP+1}
        s_mul_i32 s58, s40, {PART}
        v_add_u32 v12, s58, v{TMP+1}
        v_xor_b32 v13, 64, v12
        """)
    for nt in range(4):
        for i in range(5):
            d = ACC + 20 * nt + 4 * i
            a(f"ds_write_b128 v{12 + nt % 2}, v[{d}:{d+3}] offset:{i*4096 + (nt//2)*128}")
    if addr:
        a(f"""
        v_lshrrev_b32 v{TMP+1}, 3, v1
        s_mul_i32 s58, s40, 20
        v_add_u32 v{TMP+1}, s58, v{TMP+1}
        v_and_b32 v{TMP+2}, 7, v{TMP+1}
        v_and_b32 v{TMP+3}, 7, v1
        v_lshlrev_b32 v{TMP+3}, 1, v{TMP+3}
        v_xor_b32 v{TMP+3}, v{TMP+3}, v{TMP+2}
        v_lshlrev_b32 v{TMP+1}, 8, v{TMP+1}
        v_lshl_add_u32 v16, v{TMP+3}, 4, v{TMP+1}
        v_xor_b32 v17, 16, v16
        v_add_u32 v18, 4096, v16
        v_add_u32 v19, 4096, v17
        """)
    if mid:
        mid()
    a("s_waitcnt lgkmcnt(0)\ns_barrier")


def rreg(R, rd, p):
    return R[4 * rd + p]


def reduce_read(a, R):
    for rd in range(3):
        if rd == 2:
            a("s_mov_b32 exec_hi, 0")
        for p in range(4):
            for hf in range(2):
                d = rreg(R, rd, p) + 4 * hf
                a(f"ds_read_b128 v[{d}:{d+3}], v{16 + hf + (2 if rd == 2 else 0)} offset:{p*PART + (rd % 2)*2048}")
    a("s_mov_b32 exec_hi, -1")


def reduce_sum(a, R, rd, wait=True):
    b0, b1, b2, b3 = [rreg(R, rd, p) for p in range(4)]
    if wait:
        a(f"s_waitcnt lgkmcnt({min(15, 8*(2-rd))})")
    for e in range(8):
        a(f"v_add_f32 v{b0+e}, v{b0+e}, v{b1+e}")
        a(f"v_add_f32 v{b2+e}, v{b2+e}, v{b3+e}")
    for e in range(8):
        a(f"v_add_f32 v{b0+e}, v{b0+e}, v{b2+e}")


SFL = FL_S


def poll(a, L, vdst, vaddr, sws, soff, first=True, sleep=6):
    a("s_mov_b32 s47, 0")
    if first:
        a(f"buffer_load_dword v{vdst}, v{vaddr}, s[{sws}:{sws+3}], s{soff} offen sc1")
    a(f"""
    {L}_P:
    s_waitcnt vmcnt(0)
    v_cmp_eq_u32 vcc, 0, v{vdst}
    s_cmp_eq_u64 vcc, 0
    s_cbranch_scc1 {L}_OK
    s_add_u32 s47, s47, 1
    s_cmp_ge_u32 s47, 0x40000
    s_cbranch_scc1 {L}_OK
    s_sleep {sleep}
    buffer_load_dword v{vdst}, v{vaddr}, s[{sws}:{sws+3}], s{soff} offen sc1
    s_branch {L}_P
    {L}_OK:
    """)


def outproj_body(a, pf, sid, sws, swout, sx, sout, Lend, L="OP", DEPTH=int(os.environ.get("OPD", "4")), prio=0):
    RING = 5
    TRING = DEPTH + 1
    w = Waits(a)
    ACC = 24
    TOK = ACC + 80
    WFR = TOK + 100
    SR_ = WFR + 16
    XR = SR_ + 12
    TMP = XR + 12
    assert TMP + 8 <= 256 and TRING <= 5
    tile_setup(a, sid, Lend, TMP, RING * WSL)
    tok_bases(a, 144 * 1024)
    a(f"""
    s_mul_i32 s43, s40, {576*1152}
    s_mul_i32 s58, s40, {36*1024}
    s_add_u32 s58, s58, {UF}
    v_add_u32 v20, s58, v6
    """)
    NS = 18

    def issue_w(n):
        sl = n % RING
        ops = []
        for i in range(4):
            def f(i=i):
                if i == 0:
                    a(f"s_add_u32 m0, s42, {sl*WSL}")
                w.ivm(f"buffer_load_dwordx4 v{12+i}, s[{swout}:{swout+3}], s43 offen offset:{1024*i} lds", ("W", n))
                if i == 3:
                    a(f"s_add_u32 s43, s43, {32*1152}")
            ops.append(f)
        return ops

    def issue_t(n):
        tk = TOK + 20 * (n % TRING)
        ops = []
        for i in range(5):
            def f(i=i):
                w.ivm(f"buffer_load_dwordx4 v[{tk+4*i}:{tk+4*i+3}], v20, s[{sws}:{sws+3}], s{48 + i} offen offset:{(n%2)*2048} sc1", ("T", n))
                if i == 4 and n % 2 == 1:
                    a(f"v_add_u32 v20, 4096, v20")
            ops.append(f)
        return ops

    def wreads(n, nt):
        o = (n % RING) * WSL
        w.ilg(f"ds_read_b64_tr_b16 v[{WFR+4*nt}:{WFR+4*nt+1}], v{8+nt} offset:{o}", (n, nt))
        w.ilg(f"ds_read_b64_tr_b16 v[{WFR+4*nt+2}:{WFR+4*nt+3}], v{8+nt} offset:{o + 512}", (n, nt))

    for n in range(RING - 1):
        for f in issue_w(n):
            f()
    for i in range(3):
        if i == 2:
            a("s_mov_b32 exec_hi, 0")
        a(f"buffer_load_dwordx4 v[{XR+4*i}:{XR+4*i+3}], v7, s[{sx}:{sx+3}], s{59+i} offen")
    a("s_mov_b32 exec_hi, -1")
    a(f"""
    s_lshl_b32 s56, s36, 7
    s_add_u32 s56, s56, {SFL}
    v_mov_b32 v23, 0
    s_add_u32 s53, s59, {GF}
    s_add_u32 s54, s60, {GF}
    s_add_u32 s55, s61, {GF}
    s_cmp_lg_u32 s40, 0
    s_cbranch_scc1 {L}U_OK
    s_mul_i32 s44, s38, 80
    s_add_u32 s45, s44, 79
    s_min_u32 s45, s45, 2047
    s_lshr_b32 s44, s44, 7
    s_lshr_b32 s45, s45, 7
    s_sub_u32 s45, s45, s44
    s_lshl_b32 s45, s45, 7
    s_lshl_b32 s44, s44, 7
    s_add_u32 s44, s44, {FLG}
    v_and_b32 v21, 15, v1
    v_lshlrev_b32 v21, 2, v21
    v_bfe_u32 v22, v1, 4, 1
    v_mul_lo_u32 v22, v22, s45
    v_add_u32 v21, v21, v22
    """)
    poll(a, f"{L}U", 22, 21, sws, 44, sleep=6)
    a("s_waitcnt vmcnt(0)\ns_barrier")
    a(f"s_setprio {prio}")
    w.vm = []
    pf.stamp()
    for n in range(DEPTH):
        for f in issue_t(n):
            f()
    for nt in range(4):
        wreads(0, nt)
    for n in range(NS):
        if n + 1 < NS:
            w.wvm(("W", n + 1))
        w.wvm(("T", n))
        pend = (issue_t(n + DEPTH) if n + DEPTH < NS else []) + (issue_w(n + RING - 1) if n + RING - 1 < NS else [])
        if n == NS - 2:
            pend = [lambda: w.ivm(f"buffer_load_dword v22, v23, s[{sws}:{sws+3}], s56 offen sc1", "SF")]
        tk = TOK + 20 * (n % TRING)
        q = 0
        for nt in range(4):
            w.wlg((n, nt))
            for i in range(5):
                d = ACC + 20 * nt + 4 * i
                c = "0" if n == 0 else f"v[{d}:{d+3}]"
                a(f"v_mfma_f32_16x16x32_bf16 v[{d}:{d+3}], v[{WFR+4*nt}:{WFR+4*nt+3}], v[{tk+4*i}:{tk+4*i+3}], {c}")
                q += 1
                if q % 2 == 0 and pend:
                    pend.pop(0)()
            if n + 1 < NS:
                wreads(n + 1, nt)
        for f in pend:
            f()
    pf.stamp()
    a("s_setprio 3")

    def s_loads():
        for i in range(3):
            if i == 2:
                a("s_mov_b32 exec_hi, 0")
            a(f"buffer_load_dwordx4 v[{SR_+4*i}:{SR_+4*i+3}], v7, s[{sws}:{sws+3}], s{53+i} offen sc1")
        a("s_mov_b32 exec_hi, -1")

    def early():
        a(f"""
        s_waitcnt vmcnt(0)
        v_readfirstlane_b32 s57, v22
        s_cmp_eq_u32 s57, 0
        s_cbranch_scc1 {L}_LATE
        """)
        s_loads()
        a.label(f"{L}_LATE")
    reduce_write(a, ACC, TMP, mid=early)
    R = [TOK + 8 * i for i in range(12)]
    reduce_read(a, R)
    a(f"s_mov_b32 s58, {fbits(-math.log2(math.e))}")
    for rd in range(3):
        reduce_sum(a, R, rd)
        b, t = rreg(R, rd, 0), rreg(R, rd, 1)
        for e in range(8):
            a(f"v_mul_f32 v{t+e}, s58, v{b+e}")
        for e in range(8):
            a(f"v_exp_f32 v{t+e}, v{t+e}")
        for e in range(8):
            a(f"v_add_f32 v{t+e}, 1.0, v{t+e}")
        for e in range(8):
            a(f"v_rcp_f32 v{t+e}, v{t+e}")
        U = ACC + 16 * rd
        for e in range(4):
            a(f"v_lshlrev_b32 v{U+2*e}, 16, v{XR+4*rd+e}")
            a(f"v_and_b32 v{U+2*e+1}, 0xffff0000, v{XR+4*rd+e}")
        for e in range(8):
            a(f"v_mul_f32 v{b+e}, v{b+e}, v{t+e}")
    pf.stamp()
    a(f"""
    s_cmp_lg_u32 s57, 0
    s_cbranch_scc1 {L}_HAVE
    """)
    poll(a, f"{L}S", 22, 23, sws, 56, sleep=12)
    s_loads()
    a.label(f"{L}_HAVE")
    a("s_waitcnt vmcnt(0)")
    for rd in range(3):
        b = rreg(R, rd, 0)
        U = ACC + 16 * rd
        for e in range(4):
            a(f"v_lshlrev_b32 v{U+8+2*e}, 16, v{SR_+4*rd+e}")
            a(f"v_and_b32 v{U+8+2*e+1}, 0xffff0000, v{SR_+4*rd+e}")
        for e in range(8):
            a(f"v_fmac_f32 v{U+e}, v{b+e}, v{U+8+e}")
        for e in range(4):
            a(f"v_cvt_pk_bf16_f32 v{XR+4*rd+e}, v{U+2*e}, v{U+2*e+1}")
        if rd == 2:
            a("s_mov_b32 exec_hi, 0")
        a(f"buffer_store_dwordx4 v[{XR+4*rd}:{XR+4*rd+3}], v7, s[{sout}:{sout+3}], s{59+rd} offen")
    a("s_mov_b32 exec_hi, -1")


def sproj_body(a, pf, sid, sws, swo, Lend, L="SP"):
    w = Waits(a)
    ACC = 24
    TOK = ACC + 80
    WFR = TOK + 100
    TMP = WFR + 16
    tile_setup(a, sid, Lend, TMP, 5 * WSL)
    tok_bases(a, 36 * 1024)
    a(f"""
    v_add_u32 v14, 2304, v14
    v_add_u32 v15, 2304, v15
    s_mul_i32 s44, s40, {144*1152}
    s_mov_b32 s45, s44
    """)
    for n in range(5):
        a(f"s_add_u32 m0, s42, {n*WSL}")
        regs = [12, 13, 14, 15] if n < 4 else [18, 19, 14, 15]
        for i in range(4):
            a(f"buffer_load_dwordx4 v{regs[i]}, s[{swo}:{swo+3}], s{44 if n < 4 else 45} offen offset:{1024*i} lds")
        if n < 4:
            a(f"s_add_u32 s44, s44, {36*1152}")
    a(f"""
    s_lshl_b32 s58, s40, 13
    s_add_u32 s58, s58, {OF}
    v_add_u32 v21, s58, v6            ; o mains
    v_add_u32 v20, 4096, v21
    s_lshl_b32 s58, s40, 10
    s_add_u32 s58, s58, {OF + 32*1024}
    v_add_u32 v6, s58, v6             ; o tails
    s_add_u32 s59, s59, {GF}
    s_add_u32 s60, s60, {GF}
    s_add_u32 s61, s61, {GF}
    """)
    for i in range(20):
        a(f"v_mov_b32 v{TOK+80+i}, 0")
    a(f"""
    s_cmp_lg_u32 s40, 0
    s_cbranch_scc1 {L}O_OK
    s_mul_i32 s44, s38, 80
    s_add_u32 s45, s44, 79
    s_min_u32 s45, s45, 2047
    s_lshr_b32 s56, s44, 8
    s_lshr_b32 s57, s45, 8
    s_sub_u32 s57, s57, s56
    s_lshl_b32 s57, s57, 7
    s_lshl_b32 s56, s56, 7
    s_add_u32 s56, s56, {FLG + 2048}
    v_and_b32 v23, 31, v1
    v_lshlrev_b32 v23, 2, v23
    v_lshrrev_b32 v22, 5, v1
    v_mul_lo_u32 v22, v22, s57
    v_add_u32 v23, v23, v22
    """)
    poll(a, f"{L}O", 22, 23, sws, 56, sleep=8)
    a("s_waitcnt vmcnt(0)\ns_barrier")
    pf.stamp()
    for n in range(5):
        tk = TOK + 20 * n
        if n == 4:
            a("s_mov_b32 exec_hi, 0")
        for i in range(5):
            if n < 4:
                w.ivm(f"buffer_load_dwordx4 v[{tk+4*i}:{tk+4*i+3}], v{21 if n < 2 else 20}, s[{sws}:{sws+3}], s{48 + i} offen offset:{(n%2)*2048} sc1", ("T", n))
            else:
                w.ivm(f"buffer_load_dwordx4 v[{tk+4*i}:{tk+4*i+3}], v6, s[{sws}:{sws+3}], s{48 + i} offen sc1", ("T", n))
    a("s_mov_b32 exec_hi, -1")

    def wreads(n, nt):
        o = n * WSL
        w.ilg(f"ds_read_b64_tr_b16 v[{WFR+4*nt}:{WFR+4*nt+1}], v{8+nt} offset:{o}", (n, nt))
        w.ilg(f"ds_read_b64_tr_b16 v[{WFR+4*nt+2}:{WFR+4*nt+3}], v{8+nt} offset:{o + 512}", (n, nt))
    for nt in range(4):
        wreads(0, nt)
    for n in range(5):
        w.wvm(("T", n))
        tk = TOK + 20 * n
        for nt in range(4):
            w.wlg((n, nt))
            for i in range(5):
                d = ACC + 20 * nt + 4 * i
                c = "0" if n == 0 else f"v[{d}:{d+3}]"
                a(f"v_mfma_f32_16x16x32_bf16 v[{d}:{d+3}], v[{WFR+4*nt}:{WFR+4*nt+3}], v[{tk+4*i}:{tk+4*i+3}], {c}")
            if n + 1 < 5:
                wreads(n + 1, nt)
    reduce_write(a, ACC, TMP)
    R = [TOK + 8 * i for i in range(12)]
    reduce_read(a, R)
    for rd in range(3):
        reduce_sum(a, R, rd)
        b, t = rreg(R, rd, 0), rreg(R, rd, 1)
        for e in range(4):
            a(f"v_cvt_pk_bf16_f32 v{t+e}, v{b+2*e}, v{b+2*e+1}")
        if rd == 2:
            a("s_mov_b32 exec_hi, 0")
        a(f"buffer_store_dwordx4 v[{t}:{t+3}], v7, s[{sws}:{sws+3}], s{59+rd} offen sc1")
    a(f"""
    s_mov_b64 exec, -1
    s_lshl_b32 s56, s36, 7
    s_add_u32 s56, s56, {SFL}
    v_mov_b32 v2, 0
    v_mov_b32 v3, 1
    s_waitcnt vmcnt(0)
    s_barrier
    s_cmp_lg_u32 s40, 0
    s_cbranch_scc1 {L}_DONE
    s_mov_b64 exec, 1
    buffer_store_dword v3, v2, s[{sws}:{sws+3}], s56 offen sc1
    s_mov_b64 exec, -1
    {L}_DONE:
    """)
```

```python
from common import *

SC = " sc1" if os.environ.get("SC1", "1") == "1" else ""

def build_k1(LA_A=int(os.environ.get('LAA', '10')), LA_B=40, INIT=4, ROT=int(os.environ.get('ROT', '0')), PFK1=int(os.environ.get('PFK1', '1')), SLGAP=int(os.environ.get('SLGAP', '40')), PFT0=int(os.environ.get('PFT0', '40')), PFDT=int(os.environ.get('PFDT', '4'))):
    RINGB = 160 * 1024
    k = Kernel("k1_gemm1_kernel", 256, 256, RINGB, 256, nagpr=144 + 60)
    a = k.a
    w = Waits(a)
    pf = Prof(a, bool(PROF), 1)
    ACC0, ACC1, Z2P, TMP = 16, 96, 160, 196
    AW = 144
    vL16, vRd, vZa, vZb, vGC2, vSum, vSq, vL1k = 3, 4, 5, 6, 7, 8, 9, 13
    a(f"""
    s_cmp_ge_u32 s2, 256
    s_cbranch_scc1 K1_END
    s_load_dwordx2 s[26:27], s[0:1], {KA_WS}
    s_load_dwordx2 s[4:5], s[0:1], {KA_WSP}
    s_load_dwordx2 s[6:7], s[0:1], {KA_WOUT}
    s_load_dwordx2 s[24:25], s[0:1], {KA_WO}
    v_and_b32 v1, 63, v0              ; lane
    v_lshrrev_b32 v2, 6, v0           ; wave
    s_and_b32 s28, s2, 7
    s_lshr_b32 s29, s2, 3
    s_and_b32 s30, s28, 1
    s_lshl_b32 s30, s30, 3
    s_and_b32 s31, s29, 7
    s_add_u32 s30, s30, s31           ; rb
    s_lshr_b32 s31, s28, 1
    s_lshl_b32 s31, s31, 2
    s_lshr_b32 s32, s29, 3
    s_add_u32 s31, s31, s32           ; g
    v_readfirstlane_b32 s32, v2       ; wave
    s_lshl_b32 s33, s30, 2
    s_add_u32 s33, s33, s32
    v_lshlrev_b32 v{vL16}, 4, v1
    s_and_b32 s53, s29, 7
    s_lshr_b32 s54, s29, 3
    s_lshl_b32 s54, s54, 1
    s_add_u32 s53, s53, s54
    s_sub_u32 s54, s53, 9
    s_cmp_ge_u32 s53, 9
    s_cselect_b32 s53, s54, s53
    s_mul_i32 s53, s53, {ROT}
    s_mul_i32 s38, s33, {36*1024}
    s_add_u32 s38, s38, {XF}
    s_add_u32 s35, s38, {36*1024}
    s_lshl_b32 s54, s53, 12
    s_add_u32 s34, s38, s54
    s_mul_i32 s36, s32, 5120
    s_lshl_b32 s39, s32, 12
    s_mul_i32 s54, s31, {WFG}
    s_add_u32 s54, s54, {WF}
    s_add_u32 s55, s54, s39
    s_add_u32 s57, s54, s36
    s_add_u32 s56, s57, {9*20480}
    s_mul_i32 s58, s53, 20480
    s_add_u32 s37, s57, s58
    s_lshl_b32 s58, s53, 14           ; rot*16K
    v_add_u32 v{vL1k}, 1024, v{vL16}
    v_mov_b32 v{vRd}, v{vL16}
    s_waitcnt lgkmcnt(0)
    """)
    srd(a, 16, 24, SZ_WO)
    srd(a, 8, 6, SZ_WOUT)
    srd(a, 20, 26, WS_USED)
    srd(a, 12, 4, SZ_WSP)
    pf.stamp()

    steps = []
    for g_, n_ in ((0, 5), (1, 4), (2, 4)):
        for ks in range(36):
            steps.append((g_, ks, n_))
    NT = len(steps)
    NUN = NT // 4
    usize = [steps[4 * u][2] * 4096 for u in range(NUN)]
    upos = []
    uwait = []
    pos_ = 0
    for u in range(NUN):
        if pos_ + usize[u] > RINGB:
            pos_ = 0
        upos.append(pos_)
        conf = [v for v in range(u) if upos[v] < pos_ + usize[u] and pos_ < upos[v] + usize[v]]
        uwait.append(max(conf) if conf else -1)
        pos_ += usize[u]
    order = []
    for u in range(NUN):
        if u < 9:
            order.append((4 * u, "x", u))
        order.append((4 * u, "u", u))
    st = dict(i=0, sub=0, done=-1)

    def item_ops(kind, u):
        ops = []
        if kind == "x":
            for i in range(4):
                ks = 4 * u + i
                ops.append(lambda ks=ks, i=i: w.ivm(
                    f"buffer_load_dwordx4 a[{4*ks}:{4*ks+3}], v{vL16}, s[20:23], s34 offen offset:{1024*i}", ("X", u)))
            def adv():
                a(f"""
                s_add_u32 s34, s34, 4096
                s_cmp_eq_u32 s34, s35
                s_cselect_b32 s34, s38, s34
                """)
            last = ops[-1]
            ops[-1] = lambda: (last(), adv())
        else:
            g_ = u // 9
            n_ = 5 if g_ == 0 else 4
            sw = 36 if g_ == 0 else 39
            def first():
                if u % 9 == 0 and u > 0:
                    a(f"""
                    s_add_u32 s57, s55, {WFC if g_ == 1 else WFB}
                    s_add_u32 s56, s57, {9*16384}
                    s_add_u32 s37, s57, s58
                    """)
                a(f"s_add_u32 m0, s{sw}, {upos[u]}")
                w.ivm(f"buffer_load_dwordx4 v{vL16}, s[20:23], s37 offen lds", ("U", u))
            ops.append(first)
            for i in range(1, 4):
                ops.append(lambda i=i: w.ivm(f"buffer_load_dwordx4 v{vL16}, s[20:23], s37 offen offset:{1024*i} lds", ("U", u)))
            if n_ == 5:
                def fifth():
                    a(f"s_add_u32 m0, s{sw}, {upos[u] + 1024}")
                    w.ivm(f"buffer_load_dwordx4 v{vL1k}, s[20:23], s37 offen offset:3072 lds", ("U", u))
                ops.append(fifth)
            def adv():
                a(f"""
                s_add_u32 s37, s37, {n_*4096}
                s_cmp_eq_u32 s37, s56
                s_cselect_b32 s37, s57, s37
                """)
            last = ops[-1]
            ops[-1] = lambda: (last(), adv())
        return ops

    cur = []

    def issue_next(t, force_upto=None):
        if not cur:
            if st["i"] >= len(order):
                return False
            nt_, kind, idx = order[st["i"]]
            if force_upto is not None:
                if nt_ > force_upto:
                    return False
                assert kind == "x" or uwait[idx] <= st["done"]
            else:
                la = LA_A if t < 30 else LA_B
                if nt_ > t + la or (kind == "u" and uwait[idx] > st["done"]):
                    return False
            cur.extend(item_ops(kind, idx))
            st["i"] += 1
        cur.pop(0)()
        return True

    def ensure(t_end):
        while issue_next(0, force_upto=t_end):
            pass

    rdbase = [0]

    def reads(t):
        g, ks, n = steps[t]
        fs = AW + 20 * (t % 3)
        out = []
        for T in range(n):
            off = upos[t // 4] + ((t % 4) * n + T) * 1024
            want = (off // 65536) * 65536
            if want != rdbase[0]:
                d = want - rdbase[0]
                out.append(lambda d=d: a(f"v_add_u32 v{vRd}, {d & 0xffffffff}, v{vRd}"))
                rdbase[0] = want
            out.append(lambda T=T, off=off, want=want: w.ilg(
                f"ds_read_b128 a[{fs+4*T}:{fs+4*T+3}], v{vRd} offset:{off - want}", (t, T)))
        return out

    def sync(tn):
        u = tn // 4
        ensure(tn)
        w.wvm(("U", u))
        a("s_barrier")
        st["done"] = u - 2

    ensure(INIT)
    pf.stamp()
    vQt, vKVt, vKm = 12, 14, 15
    a(f"""
    s_mov_b32 s40, {fbits(GC1)}
    v_mov_b32 v{vGC2}, {fbits(GC2)}
    v_mov_b32 v{vSum}, 0
    v_mov_b32 v{vSq}, 0
    s_mul_i32 s42, s33, 144
    s_mul_i32 s41, s31, 9
    s_add_u32 s42, s42, s41
    s_lshl_b32 s42, s42, 10
    s_add_u32 s42, s42, {UF}
    s_add_u32 s43, s42, 4096
    s_add_u32 s44, s42, 8192
    s_lshl_b32 s45, s33, 12
    s_add_u32 s45, s45, {STT}
    s_lshl_b32 s46, s31, 8
    s_add_u32 s46, s46, s45
    v_and_b32 v{TMP+1}, 31, v1              ; s
    v_lshrrev_b32 v{TMP}, 5, v1             ; h
    v_lshlrev_b32 v10, 3, v{TMP+1}
    v_lshl_add_u32 v11, v{TMP}, 11, v10
    s_lshl_b32 s47, s31, 7
    s_add_u32 s47, s47, s33           ; 2g*64 + rt
    s_mul_i32 s48, s47, 1152
    s_add_u32 s48, s48, {QF}
    s_add_u32 s59, s48, {64*1152}
    s_mul_i32 s49, s47, 2560
    s_add_u32 s49, s49, {KV}
    s_add_u32 s50, s49, {64*2560}
    s_mov_b32 s51, {fbits(QSCALE)}
    v_mul_u32_u24 v{vQt}, {64*1152}, v{TMP}
    v_lshl_add_u32 v{vQt}, v{TMP+1}, 2, v{vQt}
    v_mul_u32_u24 v{vKVt}, {64*2560}, v{TMP}
    v_lshl_add_u32 v{vKVt}, v{TMP+1}, 4, v{vKVt}
    v_lshlrev_b32 v{vKm}, 8, v{TMP}
    s_lshl_b32 s52, s47, 2
    s_add_u32 s52, s52, {KMX}
    v_lshlrev_b32 v{TMP+2}, 2, v{TMP}
    v_xor_b32 v{TMP+2}, v{TMP+2}, v{TMP+1}
    v_lshl_add_u32 v{TMP+2}, v{TMP}, 5, v{TMP+2}
    v_lshlrev_b32 v{vZa}, 4, v{TMP+2}
    s_lshl_b32 s54, s31, 6
    s_add_u32 s54, s54, s33
    s_mul_i32 s54, s54, 9216
    s_add_u32 s54, s54, {Z2N}
    """)

    def gelu8(base, ti):
        return gelu_group(list(range(base, base + 8)), [TMP + 8 * (ti % 2) + i for i in range(8)], 40, vGC2)

    epiB, epiC = [], []
    E = lambda lst, s: lst.append(lambda s=s: a(s))
    ST = lambda lst, s, tag="st": lst.append(lambda s=s: w.ivm(s, tag))
    for gi in range(9):
        base = ACC0 + 8 * gi
        for s in gelu8(base, gi):
            E(epiB, s)
        for i in range(4):
            E(epiB, f"v_cvt_pk_bf16_f32 v{Z2P+4*gi+i}, v{base+2*i}, v{base+2*i+1}")
        for i in range(8):
            E(epiB, f"v_add_f32 v{vSum}, v{vSum}, v{base+i}")
            E(epiB, f"v_fmac_f32 v{vSq}, v{base+i}, v{base+i}")

    def pub1():
        reduce_x32(a, vSum, TMP + 16)
        reduce_x32(a, vSq, TMP + 16)
        a("s_mov_b32 exec_hi, 0")
        w.ivm(f"buffer_store_dwordx2 v[{vSum}:{vSq}], v10, s[20:23], s46 offen sc1", "STAT")
        a("s_mov_b32 exec_hi, -1")
    epiB.append(pub1)

    SR = TMP
    PK = TMP + 16
    Q, K, V, M = ACC1, ACC1 + 16, ACC1 + 32, ACC1 + 48
    base = ACC0 + 72
    for s in gelu8(base, 0):
        E(epiC, s)
    for i in range(4):
        E(epiC, f"v_cvt_pk_bf16_f32 v{PK+i}, v{base+2*i}, v{base+2*i+1}")
    for i in range(16):
        E(epiC, f"v_mul_f32 v{Q+i}, s51, v{Q+i}")
    for j, X in enumerate((Q, K, V)):
        for i in range(8):
            E(epiC, f"v_cvt_pk_bf16_f32 v{PK+4+8*j+i}, v{X+2*i}, v{X+2*i+1}")
    kk = PK + 33
    for s in f"""v_mul_f32 v{M}, s51, v{M}
    v_mul_f32 v{M+1}, s51, v{M+1}
    v_cvt_pk_bf16_f32 v{PK+32}, v{M}, v{M+1}
    v_cvt_pk_bf16_f32 v{PK+28}, v{M+2}, v{M+3}
    v_mov_b32 v{PK+29}, 0x3f803f80
    v_cvt_pk_bf16_f32 v{PK+30}, v{M+4}, v{M+5}
    v_mov_b32 v{PK+31}, 0x00003f80
    v_mul_f32 v{kk}, v{K}, v{K}
    v_mul_f32 v{kk+1}, v{K+8}, v{K+8}""".split("\n"):
        E(epiC, s.strip())
    for i in range(1, 8):
        E(epiC, f"v_fmac_f32 v{kk}, v{K+i}, v{K+i}")
        E(epiC, f"v_fmac_f32 v{kk+1}, v{K+8+i}, v{K+8+i}")
    for s in [f"v_permlane32_swap_b32 v{kk}, v{kk+1}", f"v_add_f32 v{kk}, v{kk}, v{kk+1}",
              f"v_fmac_f32 v{kk}, v{M+2}, v{M+2}", f"v_fmac_f32 v{kk}, v{M+3}, v{M+3}"]:
        E(epiC, s)
    for mod in ("quad_perm:[1,0,3,2]", "quad_perm:[2,3,0,1]", "row_half_mirror", "row_mirror"):
        E(epiC, f"v_max_f32_dpp v{kk}, v{kk}, v{kk} {mod} row_mask:0xf bank_mask:0xf")
    for s in [f"v_mov_b32 v{kk+1}, v{kk}", f"v_permlane16_swap_b32 v{kk}, v{kk+1}", f"v_max_f32 v{kk}, v{kk}, v{kk+1}"]:
        E(epiC, s)
    ZU = [ACC1 + 8 * gi for gi in range(8)] + [ACC0 + 72]
    for gi in range(4):
        for i in range(4):
            E(epiC, f"v_lshlrev_b32 v{ZU[gi]+2*i}, 16, v{Z2P+4*gi+i}")
            E(epiC, f"v_and_b32 v{ZU[gi]+2*i+1}, 0xffff0000, v{Z2P+4*gi+i}")
    sl_ = [f"buffer_load_dwordx2 v[{SR+2*i}:{SR+2*i+1}], v11, s[20:23], s45 offen offset:{256*i} sc1" for i in range(8)]
    for s in sl_:
        ST(epiC, s, "SL")
    ST(epiC, f"buffer_store_dwordx4 v[{PK}:{PK+3}], v{vL16}, s[20:23], s44 offen{SC}")
    ST(epiC, f"buffer_store_dwordx4 v[{PK+4}:{PK+7}], v{vL16}, s[20:23], s48 offen{SC}")
    ST(epiC, f"buffer_store_dwordx4 v[{PK+8}:{PK+11}], v{vL16}, s[20:23], s59 offen{SC}")
    ST(epiC, f"buffer_store_dwordx4 v[{PK+12}:{PK+15}], v{vL16}, s[20:23], s49 offen{SC}")
    ST(epiC, f"buffer_store_dwordx4 v[{PK+16}:{PK+19}], v{vL16}, s[20:23], s50 offen{SC}")
    ST(epiC, f"buffer_store_dwordx4 v[{PK+20}:{PK+23}], v{vL16}, s[20:23], s49 offen offset:1024{SC}")
    ST(epiC, f"buffer_store_dwordx4 v[{PK+24}:{PK+27}], v{vL16}, s[20:23], s50 offen offset:1024{SC}")
    ST(epiC, f"buffer_store_dwordx4 v[{PK+28}:{PK+31}], v{vKVt}, s[20:23], s49 offen offset:2048{SC}")
    ST(epiC, f"buffer_store_dword v{PK+32}, v{vQt}, s[20:23], s48 offen offset:1024{SC}")
    def kst():
        a("s_mov_b32 exec_lo, 1\ns_mov_b32 exec_hi, 1")
        w.ivm(f"buffer_store_dword v{kk}, v{vKm}, s[20:23], s52 offen", "st")
        a("s_mov_b64 exec, -1")
    epiC.append(kst)
    vPf, vPd = TMP + 58, TMP + 59
    a(f"""
    v_lshlrev_b32 v{vPf}, 7, v1
    v_mov_b32 v{vPd}, 0x40000000
    v_cmp_gt_u32 vcc, 16, v1
    v_cndmask_b32 v{vPf}, v{vPd}, v{vPf}, vcc
    s_lshl_b32 s60, s2, 2
    s_add_u32 s60, s60, s32
    s_mul_i32 s61, s60, {21*128}
    s_mul_i32 s3, s60, {6*128}
    s_lshl_b32 s60, s60, 13
    """)
    pfl = {}
    if PFK1:
        t0, dt = PFT0, PFDT
        pfl[t0] = f"buffer_load_dword v{vPd}, v{vPf}, s[12:15], s60 offen"
        pfl[t0 + dt] = f"buffer_load_dword v{vPd}, v{vPf}, s[12:15], s60 offen offset:2048\ns_add_u32 s60, s60, 4096"
        pfl[t0 + 2 * dt] = pfl[t0]
        pfl[t0 + 3 * dt] = pfl[t0 + dt]
        pfl[t0 + 4 * dt] = f"buffer_load_dword v{vPd}, v{vPf}, s[8:11], s61 offen"
        pfl[t0 + 5 * dt] = f"buffer_load_dword v{vPd}, v{vPf}, s[8:11], s61 offen offset:640"
        pfl[t0 + 6 * dt] = f"buffer_load_dword v{vPd}, v{vPf}, s[16:19], s3 offen"
    for gi in range(4, 9):
        for i in range(4):
            E(epiC, f"v_lshlrev_b32 v{ZU[gi]+2*i}, 16, v{Z2P+4*gi+i}")
            E(epiC, f"v_and_b32 v{ZU[gi]+2*i+1}, 0xffff0000, v{Z2P+4*gi+i}")
    for _ in range(SLGAP):
        epiC.append(lambda: None)
    vm, vv = SR, SR + 1
    def stats():
        w.wvm("SL")
        a(f"""
        s_mov_b32 s53, 0
        K1_POLL:
        v_min3_f32 v{vSum}, v{SR+1}, v{SR+3}, v{SR+5}
        v_min3_f32 v{vSum}, v{vSum}, v{SR+7}, v{SR+9}
        v_min3_f32 v{vSum}, v{vSum}, v{SR+11}, v{SR+13}
        v_min_f32 v{vSum}, v{vSum}, v{SR+15}
        v_cmp_gt_f32 vcc, 0, v{vSum}
        s_cmp_lg_u64 vcc, 0
        s_cbranch_scc1 K1_RETRY
        K1_GOT:
        """)
    epiC.append(stats)
    for i in range(1, 8):
        E(epiC, f"v_add_f32 v{SR}, v{SR}, v{SR+2*i}")
        E(epiC, f"v_add_f32 v{SR+1}, v{SR+1}, v{SR+2*i+1}")
    for s in f"""v_mov_b32 v{SR+2}, v{SR}
    v_mov_b32 v{SR+3}, v{SR+1}
    v_permlane32_swap_b32 v{SR}, v{SR+2}
    v_permlane32_swap_b32 v{SR+1}, v{SR+3}
    v_add_f32 v{SR}, v{SR}, v{SR+2}
    v_add_f32 v{SR+1}, v{SR+1}, v{SR+3}
    v_mul_f32 v{vm}, {fbits(1.0/FH)}, v{vm}
    v_mul_f32 v{vv}, {fbits(1.0/FH)}, v{vv}
    v_fma_f32 v{vv}, -v{vm}, v{vm}, v{vv}
    v_max_f32 v{vv}, 0, v{vv}
    v_cvt_pk_bf16_f32 v{vm}, v{vm}, v{vm}
    v_cvt_pk_bf16_f32 v{vv}, v{vv}, v{vv}
    v_lshlrev_b32 v{vm}, 16, v{vm}
    v_lshlrev_b32 v{vv}, 16, v{vv}
    v_add_f32 v{vv}, {fbits(1e-5)}, v{vv}
    v_cvt_pk_bf16_f32 v{vv}, v{vv}, v{vv}
    v_lshlrev_b32 v{vv}, 16, v{vv}
    v_sqrt_f32 v{vv}, v{vv}
    v_cvt_pk_bf16_f32 v{vv}, v{vv}, v{vv}
    v_lshlrev_b32 v{vv}, 16, v{vv}
    v_rcp_f32 v{vv}, v{vv}
    v_mul_f32 v{vm}, -v{vm}, v{vv}""".split("\n"):
        E(epiC, s.strip())
    for gi in range(9):
        b = ZU[gi]
        for i in range(8):
            E(epiC, f"v_fma_f32 v{b+i}, v{b+i}, v{vv}, v{vm}")
        for i in range(4):
            E(epiC, f"v_cvt_pk_bf16_f32 v{Z2P+4*gi+(i ^ 2 if gi % 2 else i)}, v{b+2*i}, v{b+2*i+1}")
        def zst(gi=gi):
            w.ivm(f"buffer_store_dwordx4 v[{Z2P+4*gi}:{Z2P+4*gi+3}], v{vZa}, s[20:23], s54 offen offset:{(gi % 4) * 1024}{SC}", "st")
            if gi % 4 == 3:
                a("s_add_u32 s54, s54, 4096")
        epiC.append(zst)
    if PFK1 and int(os.environ.get("PF2", "0")):
        t1 = int(os.environ.get("PF2T", "72"))
        pfl[t1 - 1] = f"""s_add_u32 s60, s2, 3
        s_and_b32 s60, s60, 255
        s_lshl_b32 s60, s60, 2
        s_add_u32 s60, s60, s32
        s_mul_i32 s61, s60, {21*128}
        s_mul_i32 s3, s60, {6*128}
        s_lshl_b32 s60, s60, 13
        buffer_load_dword v{vPd}, v{vPf}, s[16:19], s3 offen"""
        for i in range(6):
            pfl[t1 + 2 * i] = pfl[PFT0 + i * PFDT]
    pos = {1: 0, 2: 0}

    sync(0)
    pf.stamp()
    for f in reads(0) + reads(1):
        f()
    slot = {1: 0, 2: 0}
    for t in range(NT):
        g, ks, n = steps[t]
        if t in (12, 36, 72):
            pf.stamp()
        tn = t + 2
        if tn < NT and tn % 4 == 0:
            sync(tn)
        if t in pfl:
            w.ivm(pfl[t], "pf")
        rd = reads(tn) if tn < NT else []
        fs = AW + 20 * (t % 3)
        acc = ACC1 if g == 1 else ACC0
        nrd = len(rd)
        for T in range(n):
            if T % 2 == 0:
                w.wlg((t, min(T + 1, n - 1)))
            c = "0" if ks == 0 else f"v[{acc+16*T}:{acc+16*T+15}]"
            a(f"v_mfma_f32_32x32x16_bf16 v[{acc+16*T}:{acc+16*T+15}], a[{fs+4*T}:{fs+4*T+3}], a[{4*ks}:{4*ks+3}], {c}")
            for f in rd[(nrd * T) // n:(nrd * (T + 1)) // n]:
                f()
            if T % 2 == 0 or g == 0:
                issue_next(t)
            if g >= 1 and ks >= 1:
                epi = epiB if g == 1 else epiC
                slot[g] += 1
                tot = 35 * 4 - (4 if g == 1 else 0)
                tgt = min(len(epi), (len(epi) * slot[g] + tot - 1) // tot)
                while pos[g] < tgt:
                    epi[pos[g]]()
                    pos[g] += 1
    assert pos[1] == len(epiB) and pos[2] == len(epiC) and st["i"] == len(order) and not cur
    pf.stamp()
    for gi in range(8):
        base = ACC0 + 8 * gi
        for s in gelu8(base, gi):
            a(s)
        pk = ACC1 + 4 * gi
        for i in range(4):
            a(f"v_cvt_pk_bf16_f32 v{pk+i}, v{base+2*i}, v{base+2*i+1}")
        a(f"buffer_store_dwordx4 v[{pk}:{pk+3}], v{vL16}, s[20:23], s{42 + gi // 4} offen offset:{(gi % 4) * 1024}{SC}")
    pf.stamp()
    pf.dump(20, 4)
    a(f"""
    K1_END:
    s_endpgm
    K1_RETRY:
    s_add_u32 s53, s53, 1
    s_cmp_ge_u32 s53, 0x40000
    s_cbranch_scc1 K1_GOT
    s_sleep 1
    """)
    for s in sl_:
        a(s)
    a("""
    s_waitcnt vmcnt(0)
    s_branch K1_POLL
    """)
    return k
```

```python
import sys
from common import *
from k0 import build_k0
from k1 import build_k1

HEADER = open("recurrent_scan__mha_block__mixer_gmlp__prompt.s.ref").read().split("; Override launch")[0]

def build(kernels, path):
    out = HEADER
    for k in kernels:
        out += f"; @launch kernel={k.name} grid=({k.grid},1,1) block=({k.block},1,1) lds={k.lds}\n"
    out += '.amdgcn_target "amdgcn-amd-amdhsa--gfx950"\n.text\n'
    seen = []
    for k in kernels:
        if k.name in seen:
            continue
        seen.append(k.name)
        out += k.text()
    out += 'ALL_CODE_END:\n    s_endpgm\n.section .rodata,"a"\n'
    seen = []
    for k in kernels:
        if k.name in seen:
            continue
        seen.append(k.name)
        out += k.desc()
    open(path, "w").write(out)
    for k in kernels:
        print(k.name, "instrs", len(k.a.lines), "nops inserted", k.a.n_nops)

if __name__ == "__main__":
    import os
    from k2 import build_k2
    pa = int(os.environ.get("PA", "3")); pg = int(os.environ.get("PG", "3"))
    ks = [build_k0(), build_k1(), build_k2(pa, pg)]
    def empty(name):
        k = Kernel(name, 256, 64, 0, 8)
        k.a("s_endpgm")
        return k
    for i in range(int(os.environ.get("EPRE", "0"))):
        ks.insert(0, empty(f"e{i}_kernel"))
    for i in range(int(os.environ.get("EPOST", "0"))):
        ks.append(empty(f"f{i}_kernel"))
    if os.environ.get("TWICE"):
        ks = ks + ks[:int(os.environ["TWICE"])] + ks[int(os.environ["TWICE"]):] * 0
    if os.environ.get("SEQ"):
        ks = [ks[int(c)] for c in os.environ["SEQ"]]
    if os.environ.get("DUP"):
        i = int(os.environ["DUP"]); ks.insert(i, ks[i])
    build(ks, sys.argv[1] if len(sys.argv) > 1 else "recurrent_scan__mha_block__mixer_gmlp__prompt.s")
```

```python
from common import *

SC = " sc1" if os.environ.get("SC1", "1") == "1" else ""

def build_k1(LA_A=int(os.environ.get('LAA', '10')), LA_B=40, INIT=int(os.environ.get('INIT', '4')), ROT=int(os.environ.get('ROT', '0')), PFK1=int(os.environ.get('PFK1', '1')), SLGAP=int(os.environ.get('SLGAP', '40')), PFT0=int(os.environ.get('PFT0', '40')), PFDT=int(os.environ.get('PFDT', '4'))):
    RINGB = 160 * 1024
    k = Kernel("k1_gemm1_kernel", 256, 256, RINGB, 256, nagpr=144 + 60)
    a = k.a
    w = Waits(a)
    pf = Prof(a, bool(PROF), 1, base=70)
    ACC0, ACC1, Z2P, TMP = 16, 96, 160, 196
    AW = 144
    vL16, vRd, vZa, vZb, vGC2, vSum, vSq, vL1k = 3, 4, 5, 6, 7, 8, 9, 13
    a(f"""
    s_cmp_ge_u32 s2, 256
    s_cbranch_scc1 K1_END
    s_load_dwordx2 s[26:27], s[0:1], {KA_WS}
    s_load_dwordx2 s[4:5], s[0:1], {KA_WSP}
    s_load_dwordx2 s[6:7], s[0:1], {KA_WOUT}
    s_load_dwordx2 s[24:25], s[0:1], {KA_WO}
    v_and_b32 v1, 63, v0              ; lane
    v_lshrrev_b32 v2, 6, v0           ; wave
    s_and_b32 s28, s2, 7
    s_lshr_b32 s29, s2, 3
    s_and_b32 s30, s28, 1
    s_lshl_b32 s30, s30, 3
    s_and_b32 s31, s29, 7
    s_add_u32 s30, s30, s31           ; rb
    s_lshr_b32 s31, s28, 1
    s_lshl_b32 s31, s31, 2
    s_lshr_b32 s32, s29, 3
    s_add_u32 s31, s31, s32           ; g
    v_readfirstlane_b32 s32, v2       ; wave
    s_lshl_b32 s33, s30, 2
    s_add_u32 s33, s33, s32
    v_lshlrev_b32 v{vL16}, 4, v1
    s_and_b32 s53, s29, 7
    s_lshr_b32 s54, s29, 3
    s_lshl_b32 s54, s54, 1
    s_add_u32 s53, s53, s54
    s_sub_u32 s54, s53, 9
    s_cmp_ge_u32 s53, 9
    s_cselect_b32 s53, s54, s53
    s_mul_i32 s53, s53, {ROT}
    s_mul_i32 s38, s33, {36*1024}
    s_add_u32 s38, s38, {XF}
    s_add_u32 s35, s38, {36*1024}
    s_lshl_b32 s54, s53, 12
    s_add_u32 s34, s38, s54
    s_mul_i32 s36, s32, 5120
    s_lshl_b32 s39, s32, 12
    s_mul_i32 s54, s31, {WFG}
    s_add_u32 s54, s54, {WF}
    s_add_u32 s55, s54, s39
    s_add_u32 s57, s54, s36
    s_add_u32 s56, s57, {9*20480}
    s_mul_i32 s58, s53, 20480
    s_add_u32 s37, s57, s58
    s_lshl_b32 s58, s53, 14           ; rot*16K
    v_add_u32 v{vL1k}, 1024, v{vL16}
    v_mov_b32 v{vRd}, v{vL16}
    s_waitcnt lgkmcnt(0)
    """)
    srd(a, 16, 24, SZ_WO)
    srd(a, 8, 6, SZ_WOUT)
    srd(a, 20, 26, WS_USED)
    srd(a, 12, 4, SZ_WSP)
    pf.stamp()

    steps = []
    for g_, n_ in ((0, 5), (1, 4), (2, 4)):
        for ks in range(36):
            steps.append((g_, ks, n_))
    NT = len(steps)
    NUN = NT // 4
    usize = [steps[4 * u][2] * 4096 for u in range(NUN)]
    upos = []
    uwait = []
    pos_ = 0
    for u in range(NUN):
        if pos_ + usize[u] > RINGB:
            pos_ = 0
        upos.append(pos_)
        conf = [v for v in range(u) if upos[v] < pos_ + usize[u] and pos_ < upos[v] + usize[v]]
        uwait.append(max(conf) if conf else -1)
        pos_ += usize[u]
    order = []
    for u in range(NUN):
        if u < 9:
            order.append((4 * u, "x", u))
        order.append((4 * u, "u", u))
    st = dict(i=0, sub=0, done=-1)

    def item_ops(kind, u):
        ops = []
        if kind == "x":
            for i in range(4):
                ks = 4 * u + i
                ops.append(lambda ks=ks, i=i: w.ivm(
                    f"buffer_load_dwordx4 a[{4*ks}:{4*ks+3}], v{vL16}, s[20:23], s34 offen offset:{1024*i}", ("X", u)))
            def adv():
                a(f"""
                s_add_u32 s34, s34, 4096
                s_cmp_eq_u32 s34, s35
                s_cselect_b32 s34, s38, s34
                """)
            last = ops[-1]
            ops[-1] = lambda: (last(), adv())
        else:
            g_ = u // 9
            n_ = 5 if g_ == 0 else 4
            sw = 36 if g_ == 0 else 39
            def first():
                if u % 9 == 0 and u > 0:
                    a(f"""
                    s_add_u32 s57, s55, {WFC if g_ == 1 else WFB}
                    s_add_u32 s56, s57, {9*16384}
                    s_add_u32 s37, s57, s58
                    """)
                a(f"s_add_u32 m0, s{sw}, {upos[u]}")
                w.ivm(f"buffer_load_dwordx4 v{vL16}, s[20:23], s37 offen lds", ("U", u))
            ops.append(first)
            for i in range(1, 4):
                ops.append(lambda i=i: w.ivm(f"buffer_load_dwordx4 v{vL16}, s[20:23], s37 offen offset:{1024*i} lds", ("U", u)))
            if n_ == 5:
                def fifth():
                    a(f"s_add_u32 m0, s{sw}, {upos[u] + 1024}")
                    w.ivm(f"buffer_load_dwordx4 v{vL1k}, s[20:23], s37 offen offset:3072 lds", ("U", u))
                ops.append(fifth)
            def adv():
                a(f"""
                s_add_u32 s37, s37, {n_*4096}
                s_cmp_eq_u32 s37, s56
                s_cselect_b32 s37, s57, s37
                """)
            last = ops[-1]
            ops[-1] = lambda: (last(), adv())
        return ops

    cur = []

    def issue_next(t, force_upto=None):
        if not cur:
            if st["i"] >= len(order):
                return False
            nt_, kind, idx = order[st["i"]]
            if force_upto is not None:
                if nt_ > force_upto:
                    return False
                assert kind == "x" or uwait[idx] <= st["done"]
            else:
                la = LA_A if t < 30 else LA_B
                if nt_ > t + la or (kind == "u" and uwait[idx] > st["done"]):
                    return False
            cur.extend(item_ops(kind, idx))
            st["i"] += 1
        cur.pop(0)()
        return True

    def ensure(t_end):
        while issue_next(0, force_upto=t_end):
            pass

    rdbase = [0]

    def reads(t):
        g, ks, n = steps[t]
        fs = AW + 20 * (t % 3)
        out = []
        for T in range(n):
            off = upos[t // 4] + ((t % 4) * n + T) * 1024
            want = (off // 65536) * 65536
            if want != rdbase[0]:
                d = want - rdbase[0]
                out.append(lambda d=d: a(f"v_add_u32 v{vRd}, {d & 0xffffffff}, v{vRd}"))
                rdbase[0] = want
            out.append(lambda T=T, off=off, want=want: w.ilg(
                f"ds_read_b128 a[{fs+4*T}:{fs+4*T+3}], v{vRd} offset:{off - want}", (t, T)))
        return out

    def sync(tn):
        u = tn // 4
        ensure(tn)
        w.wvm(("U", u))
        a("s_barrier")
        st["done"] = u - 2

    ensure(INIT)
    pf.stamp()
    vQt, vKVt, vKm = 12, 14, 15
    a(f"""
    s_mov_b32 s40, {fbits(GC1)}
    v_mov_b32 v{vGC2}, {fbits(GC2)}
    v_mov_b32 v{vSum}, 0
    v_mov_b32 v{vSq}, 0
    s_mul_i32 s42, s33, 144
    s_mul_i32 s41, s31, 9
    s_add_u32 s42, s42, s41
    s_lshl_b32 s42, s42, 10
    s_add_u32 s42, s42, {UF}
    s_add_u32 s43, s42, 4096
    s_add_u32 s44, s42, 8192
    s_lshl_b32 s45, s33, 12
    s_add_u32 s45, s45, {STT}
    s_lshl_b32 s46, s31, 8
    s_add_u32 s46, s46, s45
    v_and_b32 v{TMP+1}, 31, v1              ; s
    v_lshrrev_b32 v{TMP}, 5, v1             ; h
    v_lshlrev_b32 v10, 3, v{TMP+1}
    v_lshl_add_u32 v11, v{TMP}, 11, v10
    s_lshl_b32 s47, s31, 7
    s_add_u32 s47, s47, s33           ; 2g*64 + rt
    s_mul_i32 s48, s47, 1152
    s_add_u32 s48, s48, {QF}
    s_add_u32 s59, s48, {64*1152}
    s_mul_i32 s49, s47, 2560
    s_add_u32 s49, s49, {KV}
    s_add_u32 s50, s49, {64*2560}
    s_mov_b32 s51, {fbits(QSCALE)}
    s_mov_b32 s64, 0x02020202
    s_mov_b32 s65, 0x02020202
    s_mov_b32 s66, 0x01010101
    s_mov_b32 s67, 0x01010101
    v_mul_u32_u24 v{vQt}, {64*1152}, v{TMP}
    v_lshl_add_u32 v{vQt}, v{TMP+1}, 2, v{vQt}
    v_mul_u32_u24 v{vKVt}, {64*2560}, v{TMP}
    v_lshl_add_u32 v{vKVt}, v{TMP+1}, 4, v{vKVt}
    v_lshlrev_b32 v{vKm}, 8, v{TMP}
    s_lshl_b32 s52, s47, 2
    s_add_u32 s52, s52, {KMX}
    v_lshlrev_b32 v{TMP+2}, 2, v{TMP}
    v_xor_b32 v{TMP+2}, v{TMP+2}, v{TMP+1}
    v_lshl_add_u32 v{TMP+2}, v{TMP}, 5, v{TMP+2}
    v_lshlrev_b32 v{vZa}, 4, v{TMP+2}
    s_lshl_b32 s54, s31, 6
    s_add_u32 s54, s54, s33
    s_mul_i32 s54, s54, 9216
    s_add_u32 s54, s54, {Z2N}
    """)

    def gelu8(base, ti):
        return gelu_group(list(range(base, base + 8)), [TMP + 8 * (ti % 2) + i for i in range(8)], 40, vGC2)

    epiB, epiC = [], []
    E = lambda lst, s: lst.append(lambda s=s: a(s))
    ST = lambda lst, s, tag="st": lst.append(lambda s=s: w.ivm(s, tag))
    for gi in range(9):
        base = ACC0 + 8 * gi
        for s in gelu8(base, gi):
            E(epiB, s)
        for i in range(4):
            E(epiB, f"v_cvt_pk_bf16_f32 v{Z2P+4*gi+i}, v{base+2*i}, v{base+2*i+1}")
        for i in range(8):
            E(epiB, f"v_add_f32 v{vSum}, v{vSum}, v{base+i}")
            E(epiB, f"v_fmac_f32 v{vSq}, v{base+i}, v{base+i}")

    def pub1():
        reduce_x32(a, vSum, TMP + 16)
        reduce_x32(a, vSq, TMP + 16)
        a("s_mov_b32 exec_hi, 0")
        w.ivm(f"buffer_store_dwordx2 v[{vSum}:{vSq}], v10, s[20:23], s46 offen sc1", "STAT")
        a("s_mov_b32 exec_hi, -1")
    epiB.append(pub1)

    SR = TMP
    PK = TMP + 16
    Q, K, V, M = ACC1, ACC1 + 16, ACC1 + 32, ACC1 + 48
    base = ACC0 + 72
    for s in gelu8(base, 0):
        E(epiC, s)
    for i in range(4):
        E(epiC, f"v_cvt_pk_bf16_f32 v{PK+i}, v{base+2*i}, v{base+2*i+1}")
    for i in range(16):
        E(epiC, f"v_mul_f32 v{Q+i}, s51, v{Q+i}")
    for j, X in enumerate((Q, K, V)):
        for i in range(8):
            E(epiC, f"v_cvt_pk_bf16_f32 v{PK+4+8*j+i}, v{X+2*i}, v{X+2*i+1}")
    kk = PK + 33
    for s in f"""v_mul_f32 v{M}, s51, v{M}
    v_mul_f32 v{M+1}, s51, v{M+1}
    v_cvt_pk_bf16_f32 v{PK+32}, v{M}, v{M+1}
    v_cvt_pk_bf16_f32 v{PK+28}, v{M+2}, v{M+3}
    v_mov_b32 v{PK+29}, 0x3f803f80
    v_mov_b32_dpp v{PK+31}, v{PK+28} row_shr:1 row_mask:0xf bank_mask:0xf
    v_cndmask_b32 v{PK+29}, v{PK+29}, v{PK+31}, s[64:65]
    v_cndmask_b32 v{PK+29}, v{PK+29}, 0, s[66:67]
    v_cndmask_b32 v{PK+28}, v{PK+28}, 0, s[66:67]
    v_cvt_pk_bf16_f32 v{PK+30}, v{M+4}, v{M+5}
    v_mov_b32 v{PK+31}, 0x00003f80
    v_mul_f32 v{kk}, v{K}, v{K}
    v_mul_f32 v{kk+1}, v{K+8}, v{K+8}""".split("\n"):
        E(epiC, s.strip())
    for i in range(1, 8):
        E(epiC, f"v_fmac_f32 v{kk}, v{K+i}, v{K+i}")
        E(epiC, f"v_fmac_f32 v{kk+1}, v{K+8+i}, v{K+8+i}")
    for s in [f"v_permlane32_swap_b32 v{kk}, v{kk+1}", f"v_add_f32 v{kk}, v{kk}, v{kk+1}",
              f"v_fmac_f32 v{kk}, v{M+2}, v{M+2}", f"v_fmac_f32 v{kk}, v{M+3}, v{M+3}"]:
        E(epiC, s)
    for mod in ("quad_perm:[1,0,3,2]", "quad_perm:[2,3,0,1]", "row_half_mirror", "row_mirror"):
        E(epiC, f"v_max_f32_dpp v{kk}, v{kk}, v{kk} {mod} row_mask:0xf bank_mask:0xf")
    for s in [f"v_mov_b32 v{kk+1}, v{kk}", f"v_permlane16_swap_b32 v{kk}, v{kk+1}", f"v_max_f32 v{kk}, v{kk}, v{kk+1}"]:
        E(epiC, s)
    ZU = [ACC1 + 8 * gi for gi in range(8)] + [ACC0 + 72]
    for gi in range(4):
        for i in range(4):
            E(epiC, f"v_lshlrev_b32 v{ZU[gi]+2*i}, 16, v{Z2P+4*gi+i}")
            E(epiC, f"v_and_b32 v{ZU[gi]+2*i+1}, 0xffff0000, v{Z2P+4*gi+i}")
    sl_ = [f"buffer_load_dwordx2 v[{SR+2*i}:{SR+2*i+1}], v11, s[20:23], s45 offen offset:{256*i} sc1" for i in range(8)]
    for s in sl_:
        ST(epiC, s, "SL")
    ST(epiC, f"buffer_store_dwordx4 v[{PK}:{PK+3}], v{vL16}, s[20:23], s44 offen{SC}")
    ST(epiC, f"buffer_store_dwordx4 v[{PK+4}:{PK+7}], v{vL16}, s[20:23], s48 offen{SC}")
    ST(epiC, f"buffer_store_dwordx4 v[{PK+8}:{PK+11}], v{vL16}, s[20:23], s59 offen{SC}")
    ST(epiC, f"buffer_store_dwordx4 v[{PK+12}:{PK+15}], v{vL16}, s[20:23], s49 offen{SC}")
    ST(epiC, f"buffer_store_dwordx4 v[{PK+16}:{PK+19}], v{vL16}, s[20:23], s50 offen{SC}")
    ST(epiC, f"buffer_store_dwordx4 v[{PK+20}:{PK+23}], v{vL16}, s[20:23], s49 offen offset:1024{SC}")
    ST(epiC, f"buffer_store_dwordx4 v[{PK+24}:{PK+27}], v{vL16}, s[20:23], s50 offen offset:1024{SC}")
    ST(epiC, f"buffer_store_dwordx4 v[{PK+28}:{PK+31}], v{vKVt}, s[20:23], s49 offen offset:2048{SC}")
    ST(epiC, f"buffer_store_dword v{PK+32}, v{vQt}, s[20:23], s48 offen offset:1024{SC}")
    def kst():
        a("s_mov_b32 exec_lo, 1\ns_mov_b32 exec_hi, 1")
        w.ivm(f"buffer_store_dword v{kk}, v{vKm}, s[20:23], s52 offen", "st")
        a("s_mov_b64 exec, -1")
    epiC.append(kst)
    vPf, vPd = TMP + 58, TMP + 59
    a(f"""
    v_lshlrev_b32 v{vPf}, 7, v1
    v_mov_b32 v{vPd}, 0x40000000
    v_cmp_gt_u32 vcc, 16, v1
    v_cndmask_b32 v{vPf}, v{vPd}, v{vPf}, vcc
    s_lshl_b32 s60, s2, 2
    s_add_u32 s60, s60, s32
    s_mul_i32 s61, s60, {21*128}
    s_mul_i32 s3, s60, {6*128}
    s_lshl_b32 s60, s60, 13
    """)
    pfl = {}
    if PFK1:
        t0, dt = PFT0, PFDT
        pfl[t0] = f"buffer_load_dword v{vPd}, v{vPf}, s[12:15], s60 offen"
        pfl[t0 + dt] = f"buffer_load_dword v{vPd}, v{vPf}, s[12:15], s60 offen offset:2048\ns_add_u32 s60, s60, 4096"
        pfl[t0 + 2 * dt] = pfl[t0]
        pfl[t0 + 3 * dt] = pfl[t0 + dt]
        if not int(os.environ.get("PFA", "0")):
            pfl[t0 + 4 * dt] = f"buffer_load_dword v{vPd}, v{vPf}, s[8:11], s61 offen"
            pfl[t0 + 5 * dt] = f"buffer_load_dword v{vPd}, v{vPf}, s[8:11], s61 offen offset:640"
            pfl[t0 + 6 * dt] = f"buffer_load_dword v{vPd}, v{vPf}, s[16:19], s3 offen"
    for gi in range(4, 9):
        for i in range(4):
            E(epiC, f"v_lshlrev_b32 v{ZU[gi]+2*i}, 16, v{Z2P+4*gi+i}")
            E(epiC, f"v_and_b32 v{ZU[gi]+2*i+1}, 0xffff0000, v{Z2P+4*gi+i}")
    for _ in range(SLGAP):
        epiC.append(lambda: None)
    vm, vv = SR, SR + 1
    def stats():
        w.wvm("SL")
        a(f"""
        s_mov_b32 s53, 0
        K1_POLL:
        v_min3_f32 v{vSum}, v{SR+1}, v{SR+3}, v{SR+5}
        v_min3_f32 v{vSum}, v{vSum}, v{SR+7}, v{SR+9}
        v_min3_f32 v{vSum}, v{vSum}, v{SR+11}, v{SR+13}
        v_min_f32 v{vSum}, v{vSum}, v{SR+15}
        v_cmp_gt_f32 vcc, 0, v{vSum}
        s_cmp_lg_u64 vcc, 0
        s_cbranch_scc1 K1_RETRY
        K1_GOT:
        """)
    epiC.append(stats)
    for i in range(1, 8):
        E(epiC, f"v_add_f32 v{SR}, v{SR}, v{SR+2*i}")
        E(epiC, f"v_add_f32 v{SR+1}, v{SR+1}, v{SR+2*i+1}")
    for s in f"""v_mov_b32 v{SR+2}, v{SR}
    v_mov_b32 v{SR+3}, v{SR+1}
    v_permlane32_swap_b32 v{SR}, v{SR+2}
    v_permlane32_swap_b32 v{SR+1}, v{SR+3}
    v_add_f32 v{SR}, v{SR}, v{SR+2}
    v_add_f32 v{SR+1}, v{SR+1}, v{SR+3}
    v_mul_f32 v{vm}, {fbits(1.0/FH)}, v{vm}
    v_mul_f32 v{vv}, {fbits(1.0/FH)}, v{vv}
    v_fma_f32 v{vv}, -v{vm}, v{vm}, v{vv}
    v_max_f32 v{vv}, 0, v{vv}
    v_cvt_pk_bf16_f32 v{vm}, v{vm}, v{vm}
    v_cvt_pk_bf16_f32 v{vv}, v{vv}, v{vv}
    v_lshlrev_b32 v{vm}, 16, v{vm}
    v_lshlrev_b32 v{vv}, 16, v{vv}
    v_add_f32 v{vv}, {fbits(1e-5)}, v{vv}
    v_cvt_pk_bf16_f32 v{vv}, v{vv}, v{vv}
    v_lshlrev_b32 v{vv}, 16, v{vv}
    v_sqrt_f32 v{vv}, v{vv}
    v_cvt_pk_bf16_f32 v{vv}, v{vv}, v{vv}
    v_lshlrev_b32 v{vv}, 16, v{vv}
    v_rcp_f32 v{vv}, v{vv}
    v_mul_f32 v{vm}, -v{vm}, v{vv}""".split("\n"):
        E(epiC, s.strip())
    for gi in range(9):
        b = ZU[gi]
        for i in range(8):
            E(epiC, f"v_fma_f32 v{b+i}, v{b+i}, v{vv}, v{vm}")
        for i in range(4):
            E(epiC, f"v_cvt_pk_bf16_f32 v{Z2P+4*gi+(i ^ 2 if gi % 2 else i)}, v{b+2*i}, v{b+2*i+1}")
        def zst(gi=gi):
            w.ivm(f"buffer_store_dwordx4 v[{Z2P+4*gi}:{Z2P+4*gi+3}], v{vZa}, s[20:23], s54 offen offset:{(gi % 4) * 1024}{SC}", "st")
            if gi % 4 == 3:
                a("s_add_u32 s54, s54, 4096")
        epiC.append(zst)
    if PFK1 and os.environ.get("PFB", ""):
        seq = [pfl[k] for k in sorted(pfl)]
        tb_ = [int(x) for x in os.environ["PFB"].split(",")] if "," in os.environ["PFB"] else [int(os.environ["PFB"])] * 2
        pfl = {}
        pfl.setdefault(tb_[0], []).extend(seq[:4])
        pfl.setdefault(tb_[1], []).extend(seq[4:])
    else:
        pfl = {k: [v] for k, v in pfl.items()}
    pos = {1: 0, 2: 0}

    sync(0)
    pf.stamp()
    for f in reads(0) + reads(1):
        f()
    slot = {1: 0, 2: 0}
    mcount = [0]
    PACE = int(os.environ.get('PACE', '2'))
    for t in range(NT):
        g, ks, n = steps[t]
        if t in (12, 36, 72):
            pf.stamp()
        tn = t + 2
        if tn < NT and tn % 4 == 0:
            sync(tn)
        for x_ in pfl.get(t, []):
            w.ivm(x_, "pf")
        rd = reads(tn) if tn < NT else []
        fs = AW + 20 * (t % 3)
        acc = ACC1 if g == 1 else ACC0
        nrd = len(rd)
        for T in range(n):
            if T % 2 == 0:
                w.wlg((t, min(T + 1, n - 1)))
            c = "0" if ks == 0 else f"v[{acc+16*T}:{acc+16*T+15}]"
            a(f"v_mfma_f32_32x32x16_bf16 v[{acc+16*T}:{acc+16*T+15}], a[{fs+4*T}:{fs+4*T+3}], a[{4*ks}:{4*ks+3}], {c}")
            for f in rd[(nrd * T) // n:(nrd * (T + 1)) // n]:
                f()
            mcount[0] += 1
            if mcount[0] % PACE == 0:
                issue_next(t)
            if g >= 1 and ks >= 1:
                epi = epiB if g == 1 else epiC
                slot[g] += 1
                tot = 35 * 4 - (4 if g == 1 else 0)
                tgt = min(len(epi), (len(epi) * slot[g] + tot - 1) // tot)
                while pos[g] < tgt:
                    epi[pos[g]]()
                    pos[g] += 1
    assert pos[1] == len(epiB) and pos[2] == len(epiC) and st["i"] == len(order) and not cur
    pf.stamp()
    for gi in range(8):
        base = ACC0 + 8 * gi
        for s in gelu8(base, gi):
            a(s)
        pk = ACC1 + 4 * gi
        for i in range(4):
            a(f"v_cvt_pk_bf16_f32 v{pk+i}, v{base+2*i}, v{base+2*i+1}")
        a(f"buffer_store_dwordx4 v[{pk}:{pk+3}], v{vL16}, s[20:23], s{42 + gi // 4} offen offset:{(gi % 4) * 1024}{SC}")
    pf.stamp()
    pf.dump(20, 4)
    a(f"""
    K1_END:
    s_endpgm
    K1_RETRY:
    s_add_u32 s53, s53, 1
    s_cmp_ge_u32 s53, 0x40000
    s_cbranch_scc1 K1_GOT
    s_sleep 1
    """)
    for s in sl_:
        a(s)
    a("""
    s_waitcnt vmcnt(0)
    s_branch K1_POLL
    """)
    return k
```

```python
from common import *
from k2a import attn_body
from k2b import gemm2_body
from k3 import outproj_body, sproj_body

def build_k2(prio_attn=1, prio_gemm=0, kidx=2):
    k = Kernel("k2_mix_kernel", 512, 256, 81920, 256)
    a = k.a
    pf = Prof(a, bool(PROF), kidx)
    pf.stamp()
    a(f"""
    s_cmp_ge_u32 s2, 512
    s_cbranch_scc1 K2_END
    s_load_dwordx4 s[4:7], s[0:1], {KA_WSP}
    s_load_dwordx2 s[24:25], s[0:1], {KA_WOUT}
    s_load_dwordx2 s[26:27], s[0:1], {KA_WS}
    s_load_dwordx2 s[60:61], s[0:1], {KA_WO}
    s_waitcnt lgkmcnt(0)
    """)
    srd(a, 12, 4, SZ_WSP)
    srd(a, 16, 6, SZ_BSP)
    srd(a, 20, 26, WS_USED)
    a("""
    s_cmp_lt_u32 s2, 256
    s_cbranch_scc1 K2_ATT
    """)
    if prio_gemm:
        a(f"s_setprio {prio_gemm}")
    n0 = pf.n
    a("s_sub_u32 s3, s2, 256")
    srd(a, 8, 24, SZ_WOUT)
    gemm2_body(a, pf, "s3", 20, 12, 16, loop_prio=int(os.environ.get("GLP", "2")))
    a(f"""
    s_waitcnt vmcnt(0)
    s_barrier
    s_cmp_lg_u32 s32, 0
    s_cbranch_scc1 K2_NOSIG
    s_lshl_b32 s30, s30, 7
    s_lshl_b32 s31, s31, 2
    s_add_u32 s30, s30, s31
    s_add_u32 s30, s30, {FLG}
    v_mov_b32 v1, 0
    v_mov_b32 v2, 1
    s_mov_b64 exec, 1
    buffer_store_dword v2, v1, s[20:23], s30 offen sc1
    s_mov_b64 exec, -1
    K2_NOSIG:
    """)
    pf.stamp()
    a(f"""
    s_load_dwordx2 s[4:5], s[0:1], {KA_X}
    s_load_dwordx2 s[24:25], s[0:1], {KA_OUT}
    s_waitcnt lgkmcnt(0)
    """)
    srd(a, 12, 4, SZ_X)
    srd(a, 4, 24, SZ_X)
    outproj_body(a, pf, "s3", 20, 8, 12, 4, "K2_END", prio=int(os.environ.get("OPP", "0")))
    pf.dump(20, 4)
    a("s_endpgm")
    a.label("K2_ATT")
    if os.environ.get("NOATT"):
        a("s_endpgm")
    pf.n = n0
    if prio_attn:
        a(f"s_setprio {prio_attn}")
    srd(a, 8, 60, SZ_WO)
    srd(a, 12, 24, SZ_WOUT)
    attn_body(a, pf, "s2", 20, pfw=(12, 8) if int(os.environ.get("PFA", "0")) else None)
    a(f"""
    s_waitcnt vmcnt(0)
    s_barrier
    s_cmp_lg_u32 s32, 0
    s_cbranch_scc1 K2_NOSIG2
    s_lshl_b32 s31, s31, 7
    s_lshl_b32 s30, s30, 2
    s_add_u32 s30, s30, s31
    s_add_u32 s30, s30, {FLG + 2048}
    v_mov_b32 v1, 0
    v_mov_b32 v2, 1
    s_mov_b64 exec, 1
    buffer_store_dword v2, v1, s[20:23], s30 offen sc1
    s_mov_b64 exec, -1
    K2_NOSIG2:
    """)
    pf.stamp()
    sproj_body(a, pf, "s2", 20, 8, "K2_END")
    pf.dump(20, 4)
    a("K2_END:\ns_endpgm")
    return k
```

```python
from common import *

SC = " sc1"
CH = 20480
NSL = 4

def attn_body(a, pf, sid, sws, L="AT", swout=None, swo=None, swsp=None, pfw=None):
    SA, SB, OA, OB = 16, 32, 48, 64
    PA, PB = 80, 88
    QMA, QMB, QTA, QTB = 96, 100, 104, 108
    KM = [112, 116]; KT = [120, 124]
    VV = [128, 136]
    vK, vKt, vV, vL16 = 2, 3, 4, 5
    T0 = 144
    a(f"""
    v_and_b32 v1, 63, v0
    v_lshrrev_b32 v6, 6, v0
    s_and_b32 s28, {sid}, 7
    s_lshr_b32 s29, {sid}, 3
    s_lshl_b32 s30, s28, 2
    s_lshr_b32 s31, s29, 3
    s_add_u32 s30, s30, s31           ; head
    s_and_b32 s31, s29, 7             ; qb
    v_readfirstlane_b32 s32, v6       ; wave
    v_lshlrev_b32 v{vL16}, 4, v1
    s_mul_i32 s33, s30, {64*2560}
    s_add_u32 s33, s33, {KV}
    s_mul_i32 s35, s32, 5120
    s_lshl_b32 s36, s31, 3
    s_lshl_b32 s37, s32, 1
    s_add_u32 s36, s36, s37           ; qt
    s_lshl_b32 s37, s30, 6
    s_add_u32 s37, s37, s36
    s_mul_i32 s37, s37, 1152
    s_add_u32 s37, s37, {QF}
    s_lshl_b32 s38, s30, 8
    s_add_u32 s38, s38, {KMX}
    v_lshlrev_b32 v7, 2, v1           ; lane*4
    v_mov_b32 v{QTA}, 0
    v_mov_b32 v{QTB}, 0
    buffer_load_dwordx4 v[{QMA}:{QMA+3}], v{vL16}, s[{sws}:{sws+3}], s37 offen
    buffer_load_dwordx4 v[{QMB}:{QMB+3}], v{vL16}, s[{sws}:{sws+3}], s37 offen offset:1152
    buffer_load_dword v{T0}, v7, s[{sws}:{sws+3}], s38 offen
    s_mov_b32 exec_hi, 0
    buffer_load_dword v{QTA}, v7, s[{sws}:{sws+3}], s37 offen offset:1024
    buffer_load_dword v{QTB}, v7, s[{sws}:{sws+3}], s37 offen offset:{1152+1024}
    s_mov_b32 exec_hi, -1
    s_mov_b32 s39, 0
    """)

    def dma_chunk():
        a(f"""
        s_mov_b32 m0, s40
        s_add_u32 s41, s34, 4096
        buffer_load_dwordx4 v{vL16}, s[{sws}:{sws+3}], s34 offen lds
        buffer_load_dwordx4 v{vL16}, s[{sws}:{sws+3}], s34 offen offset:1024 lds
        buffer_load_dwordx4 v{vL16}, s[{sws}:{sws+3}], s34 offen offset:2048 lds
        buffer_load_dwordx4 v{vL16}, s[{sws}:{sws+3}], s34 offen offset:3072 lds
        s_add_u32 m0, s40, 4096
        s_add_u32 s34, s34, {CH}
        buffer_load_dwordx4 v{vL16}, s[{sws}:{sws+3}], s41 offen lds
        s_add_u32 s40, s40, {CH}
        s_sub_u32 s41, s40, {NSL*CH}
        s_cmp_ge_u32 s40, {NSL*CH}
        s_cselect_b32 s40, s41, s40
        """)

    a.label(f"{L}_PASS")
    a(f"""
    s_add_u32 s34, s33, s35
    s_mov_b32 s40, s35
    """)
    for c in range(3):
        dma_chunk()
    a(f"""
    v_mov_b32 v{vK}, v{vL16}
    v_and_b32 v8, 31, v1
    v_lshrrev_b32 v9, 5, v1           ; h
    v_lshlrev_b32 v{vKt}, 4, v8
    v_add_u32 v10, 20, v{vKt}
    v_and_b32 v11, 7, v8
    v_cmp_eq_u32 vcc, 0, v11
    v_cndmask_b32 v{vKt}, v{vKt}, v10, vcc
    v_mov_b32 v10, 36
    v_cmp_ne_u32 vcc, 0, v9
    v_cndmask_b32 v{vKt}, v{vKt}, v10, vcc
    v_mov_b32 v14, v{vKt}
    v_add_u32 v{vKt}, 2048, v{vKt}
    v_bfe_u32 v10, v1, 2, 2           ; r
    v_lshl_add_u32 v10, v9, 2, v10    ; key = 4h + r
    v_lshlrev_b32 v10, 4, v10
    v_and_b32 v11, 1, v1
    v_lshlrev_b32 v11, 9, v11
    v_bfe_u32 v12, v1, 1, 1
    v_lshl_add_u32 v11, v12, 3, v11
    v_add_u32 v11, 1024, v11
    v_mov_b32 v12, {2048+8}
    v_and_b32 v13, 16, v1
    v_cmp_ne_u32 vcc, 0, v13
    v_cndmask_b32 v11, v11, v12, vcc
    v_add_u32 v{vV}, v10, v11
    v_and_b32 v13, 19, v1
    v_mov_b32 v12, 2048
    v_cmp_lt_u32 vcc, 16, v13
    v_cndmask_b32 v{vV}, v{vV}, v12, vcc
    """)
    for r in list(range(OA, OA + 32)) + list(range(PB + 4, PB + 8)) + list(range(VV[1], VV[1] + 8)) \
            + [QTA + 1, QTA + 2, QTA + 3, QTB + 1, QTB + 2, QTB + 3] + [KT[0] + i for i in (1, 2, 3)] + [KT[1] + i for i in (1, 2, 3)]:
        a(f"v_mov_b32 v{r}, 0")
    a(f"""
    s_cmp_lg_u32 s39, 0
    s_cbranch_scc1 {L}_GO
    s_waitcnt vmcnt(15)
    """)
    reduce16(a, T0, T0 + 1, "v_max_f32")
    reduce_x16(a, T0, T0 + 1, "v_max_f32")
    reduce_x32(a, T0, T0 + 1, "v_max_f32")
    for (QM, QT, t) in ((QMA, QTA, T0 + 2), (QMB, QTB, T0 + 3)):
        a(f"v_dot2_f32_bf16 v{t}, v{QT}, v{QT}, 0")
        for i in range(4):
            a(f"v_dot2_f32_bf16 v{t}, v{QM+i}, v{QM+i}, v{t}")
    a("s_nop 2")
    for (QT, t) in ((QTA, T0 + 2), (QTB, T0 + 3)):
        reduce_x32(a, t, T0 + 1)
        a(f"""
        v_mul_f32 v{t}, v{t}, v{T0}
        v_sqrt_f32 v{t}, v{t}
        v_mul_f32 v{t}, {fbits(-1.02)}, v{t}
        v_mov_b32 v{T0+1}, 0
        v_cvt_pk_bf16_f32 v{t}, v{t}, v{T0+1}
        s_mov_b32 exec_lo, 0
        v_mov_b32 v{QT}, v{t}
        s_mov_b32 exec_lo, -1
        """)
    a.label(f"{L}_GO")
    pf.stamp()
    a(f"""
    s_waitcnt vmcnt(10)
    s_barrier
    ds_read_b128 v[{KM[0]}:{KM[0]+3}], v{vK}
    ds_read_b32 v{KT[0]}, v{vKt}
    ds_read_b128 v[{KM[1]}:{KM[1]+3}], v{vK} offset:2560
    ds_read_b32 v{KT[1]}, v{vKt} offset:2560
    """)
    for p in range(2):
        for i in range(2):
            a(f"ds_read_b64_tr_b16 v[{VV[0]+4*p+2*i}:{VV[0]+4*p+2*i+1}], v{vV} offset:{16*(16*p+8*i)}")
    X8 = int(os.environ.get("X8", "1"))
    def mf(d, x, y, c):
        if not c and X8:
            return f"v_mfma_f32_32x32x8bf16_1k v[{d}:{d+15}], v[{x}:{x+1}], v[{y}:{y+1}], 0"
        return f"v_mfma_f32_32x32x16_bf16 v[{d}:{d+15}], v[{x}:{x+3}], v[{y}:{y+3}], " + (f"v[{d}:{d+15}]" if c else "0")
    PFW, PFZ, PFD = T0 + 8, T0 + 9, T0 + 10

    def touch():
        a(f"""
        buffer_load_dword v{PFD}, v{PFW}, s[{swsp}:{swsp+3}], s50 offen
        buffer_load_dword v{PFD+1}, v{PFZ}, s[{sws}:{sws+3}], s51 offen
        s_add_u32 s50, s50, 512
        s_add_u32 s51, s51, 16384
        """)
    if pfw is not None:
        a(f"""
        s_lshl_b32 s52, {sid}, 2
        s_add_u32 s52, s52, s32
        s_mul_i32 s50, s52, {21*128}
        s_mul_i32 s51, s52, {6*128}
        v_lshlrev_b32 v{PFZ}, 7, v1
        v_mov_b32 v{PFD}, 0x40000000
        v_cmp_gt_u32 vcc, 5, v1
        v_cndmask_b32 v{PFW}, v{PFD}, v{PFZ}, vcc
        v_cmp_gt_u32 vcc, 2, v1
        v_cndmask_b32 v{PFZ}, v{PFD}, v{PFZ}, vcc
        """)
    if swout is not None:
        a(f"""
        s_lshl_b32 s52, s29, 2
        s_add_u32 s52, s52, s32           ; wave index within this id%8 class
        s_and_b32 s50, s28, 1
        s_lshl_b32 s50, s50, 10
        s_lshl_b32 s51, s52, 3
        s_add_u32 s50, s50, s51
        s_lshl_b32 s50, s50, 12
        v_lshrrev_b32 v{PFW}, 2, v1
        v_lshlrev_b32 v{PFW}, 12, v{PFW}
        v_and_b32 v{PFZ}, 3, v1
        v_lshl_add_u32 v{PFW}, v{PFZ}, 7, v{PFW}
        v_mov_b32 v{PFD}, 0x40000000
        v_cmp_gt_u32 vcc, 32, v1
        v_cndmask_b32 v{PFW}, v{PFD}, v{PFW}, vcc
        v_lshlrev_b32 v{PFZ}, 17, v1
        v_cmp_gt_u32 vcc, 18, v1
        v_cndmask_b32 v{PFZ}, v{PFD}, v{PFZ}, vcc
        s_lshr_b32 s51, s28, 1
        s_mul_i32 s51, s51, {18*131072}
        s_lshl_b32 s53, s52, 7
        s_add_u32 s51, s51, s53
        s_add_u32 s51, s51, {Z2N}
        s_mul_i32 s54, s52, {162*128}
        s_mul_i32 s55, s52, {41*128}
        """)
        touch()
        touch()
    a(f"""
    s_waitcnt lgkmcnt(0)
    {mf(SA, KT[0], QTA, False)}
    {mf(SA, KM[0], QMA, True)}
    s_mov_b32 s42, 0
    s_mov_b32 s43, 0
    s_nop 9
    """)
    pf.stamp()
    a.label(f"{L}_LOOP")
    NHI = int(os.environ.get("NHI", "1"))
    a(f"""
    s_cmp_lg_u32 s42, {NHI}
    s_cbranch_scc1 {L}_KEEP
    s_setprio 1
    {L}_KEEP:
    """)
    PAIR = int(os.environ.get("PAIR", "0"))

    def chunk_sync():
        a(f"""
        s_cmp_ge_u32 s42, 5
        s_cbranch_scc1 {L}_NODMA
        s_waitcnt vmcnt(5)
        s_barrier
        """)
        if pfw is not None:
            a(f"""
            buffer_load_dword v{PFD}, v{PFW}, s[{pfw[0]}:{pfw[0]+3}], s50 offen
            buffer_load_dword v{PFD+1}, v{PFZ}, s[{pfw[1]}:{pfw[1]+3}], s51 offen
            s_add_u32 s50, s50, {5*128}
            s_add_u32 s51, s51, {2*128}
            """)
        dma_chunk()
        a(f"""
        s_branch {L}_DMADONE
        {L}_NODMA:
        s_waitcnt vmcnt(0)
        s_barrier
        """)
        if swout is not None:
            a(f"""
            s_cmp_lg_u32 s42, 5
            s_cbranch_scc1 {L}_PFW
            """)
            touch()
            a(f"""
            v_lshlrev_b32 v{PFW}, 7, v1
            buffer_load_dword v{PFD}, v{PFW}, s[{swo}:{swo+3}], s55 offen
            {L}_PFW:
            buffer_load_dword v{PFD+1}, v{PFW}, s[{swout}:{swout+3}], s54 offen
            s_add_u32 s54, s54, {54*128}
            """)
        a(f"""
        {L}_DMADONE:
        s_add_u32 s43, s43, {CH}
        s_mov_b32 s44, {CH}
        s_cmp_ge_u32 s43, {NSL*CH}
        s_cselect_b32 s44, {-(NSL-1)*CH & 0xffffffff}, s44
        s_cselect_b32 s43, 0, s43
        v_add_u32 v{vK}, s44, v{vK}
        v_add_u32 v{vKt}, s44, v{vKt}
        """)

    for t in range(8):
        b, nb = t % 2, (t + 1) % 2
        ko = ((t + 2) % 8) * 2560
        vo = ((t + 1) % 8) * 2560
        kr = [f"ds_read_b128 v[{KM[b]}:{KM[b]+3}], v{vK} offset:{ko}", f"ds_read_b32 v{KT[b]}, v{vKt} offset:{ko}"]
        vr = [f"ds_read_b64_tr_b16 v[{VV[nb]+4*p+2*i}:{VV[nb]+4*p+2*i+1}], v{vV} offset:{vo + 16*(16*p+8*i)}" for p in range(2) for i in range(2)]
        if PAIR:
            grp = [[mf(SB, KT[b], QTB, False), mf(SB, KM[b], QMB, True)],
                   [mf(OB, VV[nb] + 4, PB + 4, True), mf(OA, VV[b], PA, True)],
                   [mf(SA, KT[nb], QTA, False), mf(SA, KM[nb], QMA, True)],
                   [mf(OA, VV[b] + 4, PA + 4, True), mf(OB, VV[b], PB, True)]]
            for g in range(4):
                if g == 1:
                    a("s_waitcnt lgkmcnt(0)")
                a(grp[g][0])
                a(grp[g][1])
                if g == 1:
                    if t == 6:
                        chunk_sync()
                    if t == 7:
                        a(f"v_add_u32 v{vV}, s44, v{vV}")
                    a.ext(kr + vr)
                S_, P_ = (SA, PA) if g < 2 else (SB, PB)
                o = 8 * (g % 2)
                for i in range(8):
                    a(f"v_exp_f32 v{S_+o+i}, v{S_+o+i}")
                for i in range(4):
                    a(f"v_cvt_pk_bf16_f32 v{P_+o//2+i}, v{S_+o+2*i}, v{S_+o+2*i+1}")
        else:
            mfs = [mf(SB, KT[b], QTB, False), mf(OB, VV[nb] + 4, PB + 4, True), mf(SB, KM[b], QMB, True), mf(OA, VV[b], PA, True),
                   mf(SA, KT[nb], QTA, False), mf(OA, VV[b] + 4, PA + 4, True), mf(SA, KM[nb], QMA, True), mf(OB, VV[b], PB, True)]
            for sl in range(8):
                if sl == 3:
                    a("s_waitcnt lgkmcnt(0)")
                a(mfs[sl])
                if sl == 3:
                    if t == 6:
                        chunk_sync()
                    if t == 7:
                        a(f"v_add_u32 v{vV}, s44, v{vV}")
                    a.ext(kr)
                if sl in (4, 5):
                    a.ext(vr[2 * (sl - 4):2 * (sl - 4) + 2])
                S_, P_ = (SA, PA) if sl < 4 else (SB, PB)
                o = 4 * (sl % 4)
                for i in range(4):
                    a(f"v_exp_f32 v{S_+o+i}, v{S_+o+i}")
                a(f"v_cvt_pk_bf16_f32 v{P_+o//2}, v{S_+o}, v{S_+o+1}")
                a(f"v_cvt_pk_bf16_f32 v{P_+o//2+1}, v{S_+o+2}, v{S_+o+3}")
    a(f"""
    s_add_u32 s42, s42, 1
    s_cmp_lt_u32 s42, 8
    s_cbranch_scc1 {L}_LOOP
    {mf(OB, VV[1] + 4, PB + 4, True)}
    """)
    pf.stamp()
    a(f"""
    s_waitcnt lgkmcnt(0)
    v_mov_b32 v{T0}, v{OA+10}
    v_mov_b32 v{T0+1}, v{OB+10}
    v_permlane32_swap_b32 v{OA+10}, v{T0}
    v_permlane32_swap_b32 v{OB+10}, v{T0+1}
    s_cmp_lg_u32 s39, 0
    s_cbranch_scc1 {L}_OUT
    s_mov_b32 s44, {fbits(2.0**-70)}
    v_min_f32 v{T0}, v{OA+10}, v{OB+10}
    v_cmp_nle_f32 vcc, s44, v{T0}
    s_cmp_lg_u64 vcc, 0
    s_cselect_b32 s44, 1, 0
    s_barrier
    v_mov_b32 v{T0}, s44
    v_lshlrev_b32 v{T0+1}, 2, v6
    ds_write_b32 v{T0+1}, v{T0}
    v_mov_b32 v{T0+1}, 0
    s_waitcnt lgkmcnt(0)
    s_barrier
    ds_read_b128 v[{T0+2}:{T0+5}], v{T0+1}
    s_waitcnt lgkmcnt(0)
    v_or_b32 v{T0+2}, v{T0+2}, v{T0+3}
    v_or3_b32 v{T0+2}, v{T0+2}, v{T0+4}, v{T0+5}
    v_readfirstlane_b32 s44, v{T0+2}
    s_cmp_eq_u32 s44, 0
    s_cbranch_scc1 {L}_OUT
    s_barrier
    s_mov_b32 s39, 1
    s_mov_b32 exec_lo, 0
    v_mov_b32 v{QTA}, 0
    v_mov_b32 v{QTB}, 0
    s_mov_b32 exec_lo, -1
    v_mov_b32 v{T0}, 0xff800000
    v_mov_b32 v{T0+1}, 0xff800000
    s_mov_b32 s44, s33
    s_mov_b32 s45, 0
    {L}_MAXL:
    buffer_load_dwordx4 v[{KM[0]}:{KM[0]+3}], v{vL16}, s[{sws}:{sws+3}], s44 offen
    buffer_load_dword v{KT[0]}, v14, s[{sws}:{sws+3}], s44 offen offset:2048
    s_waitcnt vmcnt(0)
    {mf(SA, KT[0], QTA, False)}
    {mf(SB, KT[0], QTB, False)}
    {mf(SA, KM[0], QMA, True)}
    {mf(SB, KM[0], QMB, True)}
    """)
    for i in range(8):
        a(f"v_max3_f32 v{T0}, v{SA+2*i}, v{SA+2*i+1}, v{T0}")
    for i in range(8):
        a(f"v_max3_f32 v{T0+1}, v{SB+2*i}, v{SB+2*i+1}, v{T0+1}")
    a(f"""
    s_add_u32 s44, s44, 2560
    s_add_u32 s45, s45, 1
    s_cmp_lt_u32 s45, 64
    s_cbranch_scc1 {L}_MAXL
    """)
    for (QT, t) in ((QTA, T0), (QTB, T0 + 1)):
        reduce_x32(a, t, T0 + 2, "v_max_f32")
        a(f"""
        v_sub_f32 v{t}, 0, v{t}
        v_cvt_pk_bf16_f32 v{T0+2}, v{t}, v{t}
        v_lshlrev_b32 v{T0+2}, 16, v{T0+2}
        v_sub_f32 v{T0+3}, v{t}, v{T0+2}
        v_cvt_pk_bf16_f32 v{T0+2}, v{T0+2}, v{T0+3}
        s_mov_b32 exec_lo, 0
        v_mov_b32 v{QT}, v{T0+2}
        s_mov_b32 exec_lo, -1
        """)
    a(f"s_branch {L}_PASS")
    a.label(f"{L}_OUT")
    a(f"""
    s_mul_i32 s44, s36, {36*1024}
    s_add_u32 s44, s44, {OF}
    s_lshl_b32 s45, s30, 10
    s_add_u32 s45, s45, s44
    s_add_u32 s46, s45, {36*1024}
    s_lshr_b32 s47, s30, 2
    s_lshl_b32 s47, s47, 9
    s_and_b32 s48, s30, 3
    s_lshl_b32 s48, s48, 2
    s_add_u32 s47, s47, s48
    s_add_u32 s47, s47, s44
    s_add_u32 s47, s47, {32*1024}
    s_add_u32 s48, s47, {36*1024}
    v_rcp_f32 v{T0}, v{OA+10}
    v_rcp_f32 v{T0+1}, v{OB+10}
    """)
    for (O, t, P_, so, st) in ((OA, T0, PA, 45, 47), (OB, T0 + 1, PB, 46, 48)):
        for i in range(10):
            a(f"v_mul_f32 v{O+i}, v{O+i}, v{t}")
        for i in range(5):
            a(f"v_cvt_pk_bf16_f32 v{P_+i}, v{O+2*i}, v{O+2*i+1}")
        a(f"buffer_store_dwordx4 v[{P_}:{P_+3}], v{vL16}, s[{sws}:{sws+3}], s{so} offen{SC}")
    a(f"""
    s_mov_b32 exec_hi, 0
    buffer_store_dword v{PA+4}, v{vL16}, s[{sws}:{sws+3}], s47 offen{SC}
    buffer_store_dword v{PB+4}, v{vL16}, s[{sws}:{sws+3}], s48 offen{SC}
    s_mov_b32 exec_hi, -1
    """)
```

```python
from asmlib import Asm

S, D, H, DH, FH = 2048, 576, 32, 18, 2304
KA_X, KA_WQKV, KA_WO, KA_BX, KA_WIN, KA_WSP, KA_BSP, KA_WOUT, KA_OUT, KA_DBG, KA_WS = [8 * i for i in range(11)]
SZ_X = S * D * 2
SZ_WQKV = D * 3 * D * 2
SZ_WO = D * D * 2
SZ_WIN = D * 2 * FH * 2
SZ_WSP = S * S * 2
SZ_BSP = S * 2
SZ_WOUT = FH * D * 2
SZ_WS = 268435456
XF = 0x0000000
QF = 0x0240000
OF = 0x0480000
KV = 0x06C0000
KMX = 0x0BC0000
FLG = 0x0C04000
STT = 0x0BC4000
WF = 0x0C10000
Z2N = 0x1380000
UF = 0x1D00000
GF = 0x2800000
WS_USED = 0x2B00000
import os
ZST = 131072 + int(os.environ.get('ZPAD', '0'))
WZ = WF
WZG = 18 * 9216
WQ = WF + 16 * WZG
WQG = 36 * 8192
FL_U, FL_O, FL_KV, FL_Z, FL_S = FLG, FLG + 2048, FLG + 4096, FLG + 6144, FLG + 8192
WFG = 468 * 1024
WFB = 180 * 1024
WFC = 324 * 1024


def swap23(m):
    return (m & ~12) | ((m & 4) << 1) | ((m & 8) >> 1)


def srd(a, dst, ptr, nbytes):
    a(f"""
    s_mov_b32 s{dst}, s{ptr}
    s_and_b32 s{dst+1}, s{ptr+1}, 0xffff
    s_mov_b32 s{dst+2}, {nbytes}
    s_mov_b32 s{dst+3}, 0x00020000
    """)


class Kernel:
    def __init__(self, name, grid, block, lds, nvgpr, nagpr=0, nsgpr=96):
        self.name, self.grid, self.block, self.lds = name, grid, block, lds
        self.nvgpr, self.nagpr, self.nsgpr = nvgpr, nagpr, nsgpr
        self.a = Asm()

    def text(self):
        body = self.a.finish()
        return (f".globl {self.name}\n.p2align 8\n.type {self.name},@function\n{self.name}:\n"
                + "\n".join(body) + "\n")

    def desc(self):
        acc = (self.nvgpr + 3) // 4 * 4
        nfv = acc + self.nagpr if self.nagpr else self.nvgpr
        return f""".p2align 6
.amdhsa_kernel {self.name}
  .amdhsa_next_free_vgpr {nfv}
  .amdhsa_next_free_sgpr {self.nsgpr}
  .amdhsa_accum_offset {acc}
  .amdhsa_group_segment_fixed_size 0
  .amdhsa_kernarg_size 88
  .amdhsa_user_sgpr_count 2
  .amdhsa_user_sgpr_kernarg_segment_ptr 1
  .amdhsa_system_sgpr_workgroup_id_x 1
.end_amdhsa_kernel
"""


def reduce16(a, v, t, op="v_add_f32"):
    for mod in ("quad_perm:[1,0,3,2]", "quad_perm:[2,3,0,1]", "row_half_mirror", "row_mirror"):
        a(f"{op}_dpp v{v}, v{v}, v{v} {mod} row_mask:0xf bank_mask:0xf")


def reduce_x16(a, v, t, op="v_add_f32"):
    a(f"v_mov_b32 v{t}, v{v}")
    a(f"v_permlane16_swap_b32 v{v}, v{t}")
    a(f"{op} v{v}, v{v}, v{t}")


def reduce_x32(a, v, t, op="v_add_f32"):
    a(f"v_mov_b32 v{t}, v{v}")
    a(f"v_permlane32_swap_b32 v{v}, v{t}")
    a(f"{op} v{v}, v{v}, v{t}")


def round_bf16(a, v):
    a(f"v_cvt_pk_bf16_f32 v{v}, v{v}, v{v}")
    a(f"v_lshlrev_b32 v{v}, 16, v{v}")


def fbits(x):
    import struct
    return "0x%08x" % struct.unpack("<I", struct.pack("<f", x))[0]


class Waits:
    def __init__(self, a):
        self.a = a
        self.vm = []
        self.lg = []

    def ivm(self, text, tag=None):
        self.a(text); self.vm.append(tag)

    def ilg(self, text, tag=None):
        self.a(text); self.lg.append(tag)

    def _n(self, lst, tag):
        idx = [i for i, t in enumerate(lst) if t == tag]
        if not idx:
            return None
        return len(lst) - 1 - idx[-1]

    def wvm(self, tag):
        n = self._n(self.vm, tag)
        if n is None:
            return
        n = min(n, 63)
        self.a(f"s_waitcnt vmcnt({n})")
        self.vm = self.vm[len(self.vm) - n:] if n else []

    def wlg(self, tag):
        n = self._n(self.lg, tag)
        if n is None:
            return
        n = min(n, 15)
        self.a(f"s_waitcnt lgkmcnt({n})")
        self.lg = self.lg[len(self.lg) - n:] if n else []


import math
GC1 = -2.0 * math.log2(math.e) * math.sqrt(2.0 / math.pi)
GC2 = GC1 * 0.044715
QSCALE = math.log2(math.e) / math.sqrt(18.0)


def gelu_ops(x, t, sc1, sc2v):
    return [f"v_mul_f32 v{t}, v{x}, v{x}",
            f"v_fma_f32 v{t}, v{t}, v{sc2v}, s{sc1}",
            f"v_mul_f32 v{t}, v{t}, v{x}",
            f"v_exp_f32 v{t}, v{t}",
            f"v_add_f32 v{t}, 1.0, v{t}",
            f"v_rcp_f32 v{t}, v{t}",
            f"v_mul_f32 v{x}, v{x}, v{t}"]


def gelu_group(xs, temps, sc1, sc2v):
    seqs = [gelu_ops(x, t, sc1, sc2v) for x, t in zip(xs, temps)]
    out = []
    for step in range(7):
        for s in seqs:
            out.append(s[step])
    return out


import os
PROF = os.environ.get("PROF", "")
PROFOFF = 0x2600000


class Prof:
    def __init__(self, a, on, kidx=0, base=64):
        self.a, self.on, self.n, self.base, self.kidx = a, on, 2, base, kidx
        if on:
            a(f"s_memrealtime s[{base}:{base+1}]")

    def stamp(self):
        if not self.on:
            return
        self.a(f"s_memtime s[{self.base+2*self.n}:{self.base+2*self.n+1}]")
        self.n += 1

    def dump(self, sws, waves, swg="s2", vt=1):
        if not self.on:
            return
        a = self.a
        a("s_mov_b64 exec, -1")
        a("s_waitcnt vmcnt(0)")
        self.stamp()
        a(f"s_memrealtime s[{self.base+2}:{self.base+3}]")
        a(f"v_lshrrev_b32 v{vt}, 6, v0")
        a(f"v_lshlrev_b32 v{vt}, 7, v{vt}")
        a("s_waitcnt lgkmcnt(0)")
        a("s_mov_b64 exec, 1")
        a(f"s_mul_i32 s{self.base-2}, {swg}, {waves*128}")
        a(f"s_add_u32 s{self.base-2}, s{self.base-2}, {PROFOFF + self.kidx*0x80000}")
        for i in range(self.n):
            a(f"v_mov_b32 v{vt+1}, s{self.base+2*i}")
            a(f"buffer_store_dword v{vt+1}, v{vt}, s[{sws}:{sws+3}], s{self.base-2} offen offset:{4*i}")
            a("s_nop 1")
```

```python
from common import *

SC = " sc1"
CH = 20480
NSL = 4

def attn_body(a, pf, sid, sws, L="AT", swout=None, swo=None, swsp=None, pfw=None, mega=False, mid=None, mid2=None, late_flag=None):
    SA, SB, OA, OB = 16, 32, 48, 64
    LS = ' sc1' if mega else ''
    PA, PB = 80, 88
    QMA, QMB, QTA, QTB = 96, 100, 104, 108
    KM = [112, 116]; KT = [120, 124]
    VV = [128, 136]
    vK, vKt, vV, vL16 = 2, 3, 4, 5
    T0 = 144
    a(f"""
    v_and_b32 v1, 63, v0
    v_lshrrev_b32 v6, 6, v0
    s_and_b32 s28, {sid}, 7
    s_lshr_b32 s29, {sid}, 3
    s_lshl_b32 s30, s28, 2
    s_lshr_b32 s31, s29, 3
    s_add_u32 s30, s30, s31           ; head
    s_and_b32 s31, s29, 7             ; qb
    v_readfirstlane_b32 s32, v6       ; wave
    v_lshlrev_b32 v{vL16}, 4, v1
    s_mul_i32 s33, s30, {64*2560}
    s_add_u32 s33, s33, {KV}
    s_mul_i32 s35, s32, 5120
    s_lshl_b32 s36, s31, 3
    s_lshl_b32 s37, s32, 1
    s_add_u32 s36, s36, s37           ; qt
    s_lshl_b32 s37, s30, 6
    s_add_u32 s37, s37, s36
    s_mul_i32 s37, s37, 1152
    s_add_u32 s37, s37, {QF}
    s_lshl_b32 s38, s30, 8
    s_add_u32 s38, s38, {KMX}
    v_lshlrev_b32 v7, 2, v1           ; lane*4
    v_mov_b32 v{QTA}, 0
    v_mov_b32 v{QTB}, 0
    """)
    if mega:
        from k3 import poll
        a(f"""
        s_cmp_lg_u32 s32, 0
        s_cbranch_scc1 {L}KV_OK
        s_lshr_b32 s44, s30, 1
        s_lshl_b32 s44, s44, 7
        s_add_u32 s44, s44, {FL_KV}
        v_and_b32 v8, 15, v1
        v_lshlrev_b32 v8, 2, v8
        """)
        poll(a, f"{L}KV", 9, 8, sws, 44, sleep=6)
        a("s_barrier")
        pf.stamp()
    a(f"""
    buffer_load_dwordx4 v[{QMA}:{QMA+3}], v{vL16}, s[{sws}:{sws+3}], s37 offen{LS}
    buffer_load_dwordx4 v[{QMB}:{QMB+3}], v{vL16}, s[{sws}:{sws+3}], s37 offen offset:1152{LS}
    buffer_load_dword v{T0}, v7, s[{sws}:{sws+3}], s38 offen{LS}
    s_mov_b32 exec_hi, 0
    buffer_load_dword v{QTA}, v7, s[{sws}:{sws+3}], s37 offen offset:1024{LS}
    buffer_load_dword v{QTB}, v7, s[{sws}:{sws+3}], s37 offen offset:{1152+1024}{LS}
    s_mov_b32 exec_hi, -1
    s_mov_b32 s39, 0
    """)

    def dma_chunk():
        a(f"""
        s_mov_b32 m0, s40
        s_add_u32 s41, s34, 4096
        buffer_load_dwordx4 v{vL16}, s[{sws}:{sws+3}], s34 offen{LS} lds
        buffer_load_dwordx4 v{vL16}, s[{sws}:{sws+3}], s34 offen offset:1024{LS} lds
        buffer_load_dwordx4 v{vL16}, s[{sws}:{sws+3}], s34 offen offset:2048{LS} lds
        buffer_load_dwordx4 v{vL16}, s[{sws}:{sws+3}], s34 offen offset:3072{LS} lds
        s_add_u32 m0, s40, 4096
        s_add_u32 s34, s34, {CH}
        buffer_load_dwordx4 v{vL16}, s[{sws}:{sws+3}], s41 offen{LS} lds
        s_add_u32 s40, s40, {CH}
        s_sub_u32 s41, s40, {NSL*CH}
        s_cmp_ge_u32 s40, {NSL*CH}
        s_cselect_b32 s40, s41, s40
        """)

    a.label(f"{L}_PASS")
    a(f"""
    s_add_u32 s34, s33, s35
    s_mov_b32 s40, s35
    """)
    for c in range(3):
        dma_chunk()
    a(f"""
    v_mov_b32 v{vK}, v{vL16}
    v_and_b32 v8, 31, v1
    v_lshrrev_b32 v9, 5, v1           ; h
    v_lshlrev_b32 v{vKt}, 4, v8
    v_add_u32 v10, 20, v{vKt}
    v_and_b32 v11, 7, v8
    v_cmp_eq_u32 vcc, 0, v11
    v_cndmask_b32 v{vKt}, v{vKt}, v10, vcc
    v_mov_b32 v10, 36
    v_cmp_ne_u32 vcc, 0, v9
    v_cndmask_b32 v{vKt}, v{vKt}, v10, vcc
    v_mov_b32 v14, v{vKt}
    v_add_u32 v{vKt}, 2048, v{vKt}
    v_bfe_u32 v10, v1, 2, 2           ; r
    v_lshl_add_u32 v10, v9, 2, v10    ; key = 4h + r
    v_lshlrev_b32 v10, 4, v10
    v_and_b32 v11, 1, v1
    v_lshlrev_b32 v11, 9, v11
    v_bfe_u32 v12, v1, 1, 1
    v_lshl_add_u32 v11, v12, 3, v11
    v_add_u32 v11, 1024, v11
    v_mov_b32 v12, {2048+8}
    v_and_b32 v13, 16, v1
    v_cmp_ne_u32 vcc, 0, v13
    v_cndmask_b32 v11, v11, v12, vcc
    v_add_u32 v{vV}, v10, v11
    v_and_b32 v13, 19, v1
    v_mov_b32 v12, 2048
    v_cmp_lt_u32 vcc, 16, v13
    v_cndmask_b32 v{vV}, v{vV}, v12, vcc
    """)
    for r in list(range(OA, OA + 32)) + list(range(PB + 4, PB + 8)) + list(range(VV[1], VV[1] + 8)) \
            + [QTA + 1, QTA + 2, QTA + 3, QTB + 1, QTB + 2, QTB + 3] + [KT[0] + i for i in (1, 2, 3)] + [KT[1] + i for i in (1, 2, 3)]:
        a(f"v_mov_b32 v{r}, 0")
    a(f"""
    s_cmp_lg_u32 s39, 0
    s_cbranch_scc1 {L}_GO
    """)
    if mid:
        mid()
    a("s_waitcnt vmcnt(15)")
    reduce16(a, T0, T0 + 1, "v_max_f32")
    reduce_x16(a, T0, T0 + 1, "v_max_f32")
    reduce_x32(a, T0, T0 + 1, "v_max_f32")
    for (QM, QT, t) in ((QMA, QTA, T0 + 2), (QMB, QTB, T0 + 3)):
        a(f"v_dot2_f32_bf16 v{t}, v{QT}, v{QT}, 0")
        for i in range(4):
            a(f"v_dot2_f32_bf16 v{t}, v{QM+i}, v{QM+i}, v{t}")
    a("s_nop 2")
    for (QT, t) in ((QTA, T0 + 2), (QTB, T0 + 3)):
        reduce_x32(a, t, T0 + 1)
        a(f"""
        v_mul_f32 v{t}, v{t}, v{T0}
        v_sqrt_f32 v{t}, v{t}
        v_mul_f32 v{t}, {fbits(-1.02)}, v{t}
        v_mov_b32 v{T0+1}, 0
        v_cvt_pk_bf16_f32 v{t}, v{t}, v{T0+1}
        s_mov_b32 exec_lo, 0
        v_mov_b32 v{QT}, v{t}
        s_mov_b32 exec_lo, -1
        """)
    if mid2:
        mid2()
    a.label(f"{L}_GO")
    pf.stamp()
    a(f"""
    s_waitcnt vmcnt(10)
    s_barrier
    ds_read_b128 v[{KM[0]}:{KM[0]+3}], v{vK}
    ds_read_b32 v{KT[0]}, v{vKt}
    ds_read_b128 v[{KM[1]}:{KM[1]+3}], v{vK} offset:2560
    ds_read_b32 v{KT[1]}, v{vKt} offset:2560
    """)
    for p in range(2):
        for i in range(2):
            a(f"ds_read_b64_tr_b16 v[{VV[0]+4*p+2*i}:{VV[0]+4*p+2*i+1}], v{vV} offset:{16*(16*p+8*i)}")
    X8 = int(os.environ.get("X8", "1"))
    def mf(d, x, y, c):
        if not c and X8:
            return f"v_mfma_f32_32x32x8bf16_1k v[{d}:{d+15}], v[{x}:{x+1}], v[{y}:{y+1}], 0"
        return f"v_mfma_f32_32x32x16_bf16 v[{d}:{d+15}], v[{x}:{x+3}], v[{y}:{y+3}], " + (f"v[{d}:{d+15}]" if c else "0")
    PFW, PFZ, PFD = T0 + 8, T0 + 9, T0 + 10

    def touch():
        a(f"""
        buffer_load_dword v{PFD}, v{PFW}, s[{swsp}:{swsp+3}], s50 offen
        buffer_load_dword v{PFD+1}, v{PFZ}, s[{sws}:{sws+3}], s51 offen
        s_add_u32 s50, s50, 512
        s_add_u32 s51, s51, 16384
        """)
    if pfw is not None:
        a(f"""
        s_lshl_b32 s52, {sid}, 2
        s_add_u32 s52, s52, s32
        s_mul_i32 s50, s52, {21*128}
        s_mul_i32 s51, s52, {6*128}
        v_lshlrev_b32 v{PFZ}, 7, v1
        v_mov_b32 v{PFD}, 0x40000000
        v_cmp_gt_u32 vcc, 5, v1
        v_cndmask_b32 v{PFW}, v{PFD}, v{PFZ}, vcc
        v_cmp_gt_u32 vcc, 2, v1
        v_cndmask_b32 v{PFZ}, v{PFD}, v{PFZ}, vcc
        """)
    if swout is not None:
        a(f"""
        s_lshl_b32 s52, s29, 2
        s_add_u32 s52, s52, s32           ; wave index within this id%8 class
        s_and_b32 s50, s28, 1
        s_lshl_b32 s50, s50, 10
        s_lshl_b32 s51, s52, 3
        s_add_u32 s50, s50, s51
        s_lshl_b32 s50, s50, 12
        v_lshrrev_b32 v{PFW}, 2, v1
        v_lshlrev_b32 v{PFW}, 12, v{PFW}
        v_and_b32 v{PFZ}, 3, v1
        v_lshl_add_u32 v{PFW}, v{PFZ}, 7, v{PFW}
        v_mov_b32 v{PFD}, 0x40000000
        v_cmp_gt_u32 vcc, 32, v1
        v_cndmask_b32 v{PFW}, v{PFD}, v{PFW}, vcc
        v_lshlrev_b32 v{PFZ}, 17, v1
        v_cmp_gt_u32 vcc, 18, v1
        v_cndmask_b32 v{PFZ}, v{PFD}, v{PFZ}, vcc
        s_lshr_b32 s51, s28, 1
        s_mul_i32 s51, s51, {18*131072}
        s_lshl_b32 s53, s52, 7
        s_add_u32 s51, s51, s53
        s_add_u32 s51, s51, {Z2N}
        s_mul_i32 s54, s52, {162*128}
        s_mul_i32 s55, s52, {41*128}
        """)
        touch()
        touch()
    a(f"""
    s_waitcnt lgkmcnt(0)
    {mf(SA, KT[0], QTA, False)}
    {mf(SA, KM[0], QMA, True)}
    s_mov_b32 s42, 0
    s_mov_b32 s43, 0
    s_nop 9
    """)
    pf.stamp()
    a.label(f"{L}_LOOP")
    NHI = int(os.environ.get("NHI", "0"))
    a(f"""
    s_cmp_lg_u32 s42, {NHI}
    s_cbranch_scc1 {L}_KEEP
    s_setprio {int(os.environ.get("ALP", "1"))}
    {L}_KEEP:
    """)
    PAIR = int(os.environ.get("PAIR", "0"))

    def chunk_sync():
        a(f"""
        s_cmp_ge_u32 s42, 5
        s_cbranch_scc1 {L}_NODMA
        s_waitcnt vmcnt(5)
        s_barrier
        """)
        if late_flag is not None:
            a(f"""
            s_cmp_lg_u32 s42, 1
            s_cbranch_scc1 {L}_LF
            """)
            from mkz import flag_store
            flag_store(a, f"{L}_LF", sws, late_flag, T0 + 4, T0 + 5)
        if pfw is not None:
            a(f"""
            buffer_load_dword v{PFD}, v{PFW}, s[{pfw[0]}:{pfw[0]+3}], s50 offen
            buffer_load_dword v{PFD+1}, v{PFZ}, s[{pfw[1]}:{pfw[1]+3}], s51 offen
            s_add_u32 s50, s50, {5*128}
            s_add_u32 s51, s51, {2*128}
            """)
        dma_chunk()
        a(f"""
        s_branch {L}_DMADONE
        {L}_NODMA:
        s_waitcnt vmcnt(0)
        s_barrier
        """)
        if swout is not None:
            a(f"""
            s_cmp_lg_u32 s42, 5
            s_cbranch_scc1 {L}_PFW
            """)
            touch()
            a(f"""
            v_lshlrev_b32 v{PFW}, 7, v1
            buffer_load_dword v{PFD}, v{PFW}, s[{swo}:{swo+3}], s55 offen
            {L}_PFW:
            buffer_load_dword v{PFD+1}, v{PFW}, s[{swout}:{swout+3}], s54 offen
            s_add_u32 s54, s54, {54*128}
            """)
        a(f"""
        {L}_DMADONE:
        s_add_u32 s43, s43, {CH}
        s_mov_b32 s44, {CH}
        s_cmp_ge_u32 s43, {NSL*CH}
        s_cselect_b32 s44, {-(NSL-1)*CH & 0xffffffff}, s44
        s_cselect_b32 s43, 0, s43
        v_add_u32 v{vK}, s44, v{vK}
        v_add_u32 v{vKt}, s44, v{vKt}
        """)

    for t in range(8):
        b, nb = t % 2, (t + 1) % 2
        ko = ((t + 2) % 8) * 2560
        vo = ((t + 1) % 8) * 2560
        kr = [f"ds_read_b128 v[{KM[b]}:{KM[b]+3}], v{vK} offset:{ko}", f"ds_read_b32 v{KT[b]}, v{vKt} offset:{ko}"]
        vr = [f"ds_read_b64_tr_b16 v[{VV[nb]+4*p+2*i}:{VV[nb]+4*p+2*i+1}], v{vV} offset:{vo + 16*(16*p+8*i)}" for p in range(2) for i in range(2)]
        if PAIR:
            grp = [[mf(SB, KT[b], QTB, False), mf(SB, KM[b], QMB, True)],
                   [mf(OB, VV[nb] + 4, PB + 4, True), mf(OA, VV[b], PA, True)],
                   [mf(SA, KT[nb], QTA, False), mf(SA, KM[nb], QMA, True)],
                   [mf(OA, VV[b] + 4, PA + 4, True), mf(OB, VV[b], PB, True)]]
            for g in range(4):
                if g == 1:
                    a("s_waitcnt lgkmcnt(0)")
                a(grp[g][0])
                a(grp[g][1])
                if g == 1:
                    if t == 6:
                        chunk_sync()
                    if t == 7:
                        a(f"v_add_u32 v{vV}, s44, v{vV}")
                    a.ext(kr + vr)
                S_, P_ = (SA, PA) if g < 2 else (SB, PB)
                o = 8 * (g % 2)
                for i in range(8):
                    a(f"v_exp_f32 v{S_+o+i}, v{S_+o+i}")
                for i in range(4):
                    a(f"v_cvt_pk_bf16_f32 v{P_+o//2+i}, v{S_+o+2*i}, v{S_+o+2*i+1}")
        else:
            mfs = [mf(SB, KT[b], QTB, False), mf(OB, VV[nb] + 4, PB + 4, True), mf(SB, KM[b], QMB, True), mf(OA, VV[b], PA, True),
                   mf(SA, KT[nb], QTA, False), mf(OA, VV[b] + 4, PA + 4, True), mf(SA, KM[nb], QMA, True), mf(OB, VV[b], PB, True)]
            for sl in range(8):
                if sl == 3:
                    a("s_waitcnt lgkmcnt(0)")
                a(mfs[sl])
                if sl == 3:
                    if t == 6:
                        chunk_sync()
                    if t == 7:
                        a(f"v_add_u32 v{vV}, s44, v{vV}")
                    a.ext(kr)
                if sl in (4, 5):
                    a.ext(vr[2 * (sl - 4):2 * (sl - 4) + 2])
                S_, P_ = (SA, PA) if sl < 4 else (SB, PB)
                o = 4 * (sl % 4)
                for i in range(4):
                    a(f"v_exp_f32 v{S_+o+i}, v{S_+o+i}")
                a(f"v_cvt_pk_bf16_f32 v{P_+o//2}, v{S_+o}, v{S_+o+1}")
                a(f"v_cvt_pk_bf16_f32 v{P_+o//2+1}, v{S_+o+2}, v{S_+o+3}")
    a(f"""
    s_add_u32 s42, s42, 1
    s_cmp_lt_u32 s42, 8
    s_cbranch_scc1 {L}_LOOP
    {mf(OB, VV[1] + 4, PB + 4, True)}
    """)
    pf.stamp()
    a(f"""
    s_waitcnt lgkmcnt(0)
    v_mov_b32 v{T0}, v{OA+10}
    v_mov_b32 v{T0+1}, v{OB+10}
    v_permlane32_swap_b32 v{OA+10}, v{T0}
    v_permlane32_swap_b32 v{OB+10}, v{T0+1}
    s_cmp_lg_u32 s39, 0
    s_cbranch_scc1 {L}_OUT
    s_mov_b32 s44, {fbits(2.0**-70)}
    v_min_f32 v{T0}, v{OA+10}, v{OB+10}
    v_cmp_nle_f32 vcc, s44, v{T0}
    s_cmp_lg_u64 vcc, 0
    s_cselect_b32 s44, 1, 0
    s_barrier
    v_mov_b32 v{T0}, s44
    v_lshlrev_b32 v{T0+1}, 2, v6
    ds_write_b32 v{T0+1}, v{T0}
    v_mov_b32 v{T0+1}, 0
    s_waitcnt lgkmcnt(0)
    s_barrier
    ds_read_b128 v[{T0+2}:{T0+5}], v{T0+1}
    s_waitcnt lgkmcnt(0)
    v_or_b32 v{T0+2}, v{T0+2}, v{T0+3}
    v_or3_b32 v{T0+2}, v{T0+2}, v{T0+4}, v{T0+5}
    v_readfirstlane_b32 s44, v{T0+2}
    s_cmp_eq_u32 s44, 0
    s_cbranch_scc1 {L}_OUT
    s_barrier
    s_mov_b32 s39, 1
    s_mov_b32 exec_lo, 0
    v_mov_b32 v{QTA}, 0
    v_mov_b32 v{QTB}, 0
    s_mov_b32 exec_lo, -1
    v_mov_b32 v{T0}, 0xff800000
    v_mov_b32 v{T0+1}, 0xff800000
    s_mov_b32 s44, s33
    s_mov_b32 s45, 0
    {L}_MAXL:
    buffer_load_dwordx4 v[{KM[0]}:{KM[0]+3}], v{vL16}, s[{sws}:{sws+3}], s44 offen{LS}
    buffer_load_dword v{KT[0]}, v14, s[{sws}:{sws+3}], s44 offen offset:2048{LS}
    s_waitcnt vmcnt(0)
    {mf(SA, KT[0], QTA, False)}
    {mf(SB, KT[0], QTB, False)}
    {mf(SA, KM[0], QMA, True)}
    {mf(SB, KM[0], QMB, True)}
    """)
    for i in range(8):
        a(f"v_max3_f32 v{T0}, v{SA+2*i}, v{SA+2*i+1}, v{T0}")
    for i in range(8):
        a(f"v_max3_f32 v{T0+1}, v{SB+2*i}, v{SB+2*i+1}, v{T0+1}")
    a(f"""
    s_add_u32 s44, s44, 2560
    s_add_u32 s45, s45, 1
    s_cmp_lt_u32 s45, 64
    s_cbranch_scc1 {L}_MAXL
    """)
    for (QT, t) in ((QTA, T0), (QTB, T0 + 1)):
        reduce_x32(a, t, T0 + 2, "v_max_f32")
        a(f"""
        v_sub_f32 v{t}, 0, v{t}
        v_cvt_pk_bf16_f32 v{T0+2}, v{t}, v{t}
        v_lshlrev_b32 v{T0+2}, 16, v{T0+2}
        v_sub_f32 v{T0+3}, v{t}, v{T0+2}
        v_cvt_pk_bf16_f32 v{T0+2}, v{T0+2}, v{T0+3}
        s_mov_b32 exec_lo, 0
        v_mov_b32 v{QT}, v{T0+2}
        s_mov_b32 exec_lo, -1
        """)
    a(f"s_branch {L}_PASS")
    a.label(f"{L}_OUT")
    a(f"""
    s_mul_i32 s44, s36, {36*1024}
    s_add_u32 s44, s44, {OF}
    s_lshl_b32 s45, s30, 10
    s_add_u32 s45, s45, s44
    s_add_u32 s46, s45, {36*1024}
    s_lshr_b32 s47, s30, 2
    s_lshl_b32 s47, s47, 9
    s_and_b32 s48, s30, 3
    s_lshl_b32 s48, s48, 2
    s_add_u32 s47, s47, s48
    s_add_u32 s47, s47, s44
    s_add_u32 s47, s47, {32*1024}
    s_add_u32 s48, s47, {36*1024}
    v_rcp_f32 v{T0}, v{OA+10}
    v_rcp_f32 v{T0+1}, v{OB+10}
    """)
    for (O, t, P_, so, st) in ((OA, T0, PA, 45, 47), (OB, T0 + 1, PB, 46, 48)):
        for i in range(10):
            a(f"v_mul_f32 v{O+i}, v{O+i}, v{t}")
        for i in range(5):
            a(f"v_cvt_pk_bf16_f32 v{P_+i}, v{O+2*i}, v{O+2*i+1}")
        a(f"buffer_store_dwordx4 v[{P_}:{P_+3}], v{vL16}, s[{sws}:{sws+3}], s{so} offen{SC}")
    a(f"""
    s_mov_b32 exec_hi, 0
    buffer_store_dword v{PA+4}, v{vL16}, s[{sws}:{sws+3}], s47 offen{SC}
    buffer_store_dword v{PB+4}, v{vL16}, s[{sws}:{sws+3}], s48 offen{SC}
    s_mov_b32 exec_hi, -1
    """)
```

```python
from common import *
from k3 import poll

STG = 17408


def gemm2_body(a, pf, sid, sws, swsp, sbsp, L="G2", loop_prio=0, mega=False):
    ACC = 16
    FA = [88, 124]
    FB = [160, 168]
    Z1 = 176
    TMP = 212
    vL16 = 2
    rB = 3
    rA = [4, 5, 6, 7]
    rX = [8, 9]
    dT, dT2 = 10, 11
    vU, vU9 = 12, 13
    a(f"""
    v_and_b32 v1, 63, v0
    v_lshrrev_b32 v{TMP}, 6, v0
    s_and_b32 s28, {sid}, 7
    s_lshr_b32 s29, {sid}, 3
    s_and_b32 s30, s28, 1
    s_lshl_b32 s30, s30, 3
    s_and_b32 s31, s29, 7
    s_add_u32 s30, s30, s31           ; tb
    s_lshr_b32 s31, s28, 1
    s_lshl_b32 s31, s31, 2
    s_lshr_b32 s32, s29, 3
    s_add_u32 s31, s31, s32           ; fb
    v_readfirstlane_b32 s32, v{TMP}   ; wave
    v_lshlrev_b32 v{vL16}, 4, v1
    v_lshrrev_b32 v{TMP+1}, 2, v1
    v_lshrrev_b32 v{TMP+3}, 4, v1                 ; q = r>>2
    v_lshlrev_b32 v{TMP+4}, 1, v{TMP+3}
    v_and_b32 v{TMP+4}, 3, v{TMP+4}
    v_lshrrev_b32 v{TMP+3}, 1, v{TMP+3}
    v_mul_u32_u24 v{TMP+3}, 3, v{TMP+3}
    v_xor_b32 v{TMP+3}, v{TMP+3}, v{TMP+4}
    v_and_b32 v{TMP+2}, 3, v1
    v_xor_b32 v{TMP+2}, v{TMP+2}, v{TMP+3}
    s_lshl_b32 s38, s32, 11
    s_add_u32 s39, s38, 8192
    s_lshl_b32 s40, s32, 8
    s_add_u32 s41, s40, 8192
    s_add_u32 s40, s40, 16384
    s_lshl_b32 s44, s30, 7
    s_lshl_b32 s45, s32, 5
    s_add_u32 s44, s44, s45
    v_add_u32 v{TMP+1}, s44, v{TMP+1}
    v_lshlrev_b32 v{dT}, 12, v{TMP+1}
    v_lshl_add_u32 v{dT}, v{TMP+2}, 4, v{dT}
    v_add_u32 v{dT2}, {16*4096 - 1024}, v{dT}
    s_mov_b32 s42, 0
    s_mul_i32 s43, s31, {64*9216}
    s_add_u32 s43, s43, {Z2N}
    s_add_u32 s46, s43, s41
    s_add_u32 s43, s43, s38
    """)

    ZS = " sc1" if mega else ""

    def dma_sp(sl):
        o = sl * STG
        return [f"s_add_u32 m0, s39, {o}\nbuffer_load_dwordx4 v{vL16}, s[{sws}:{sws+3}], s43 offen{ZS} lds",
                f"buffer_load_dwordx4 v{vL16}, s[{sws}:{sws+3}], s43 offen offset:1024{ZS} lds\ns_add_u32 s43, s43, 9216",
                f"s_add_u32 m0, s40, {o}\ns_mov_b64 exec, 0xffff\nbuffer_load_dwordx4 v{vL16}, s[{sws}:{sws+3}], s46 offen{ZS} lds\n"
                f"s_mov_b64 exec, -1\ns_add_u32 s46, s46, 9216",
                f"s_add_u32 m0, s38, {o}\nbuffer_load_dwordx4 v{dT}, s[{swsp}:{swsp+3}], s42 offen lds",
                f"buffer_load_dwordx4 v{dT2}, s[{swsp}:{swsp+3}], s42 offen offset:1024 lds\ns_add_u32 s42, s42, 64"]

    GD = int(os.environ.get("GD", "1"))
    for st in range(0, 4 - 3 * GD if GD < 2 else 1):
        if GD != 1:
            a.ext(dma_sp(st))
    a(f"""
    v_and_b32 v{TMP+1}, 15, v1
    v_bfe_u32 v{TMP+3}, v1, 2, 2
    v_lshlrev_b32 v{TMP+4}, 1, v{TMP+3}
    v_and_b32 v{TMP+4}, 3, v{TMP+4}
    v_lshrrev_b32 v{TMP+3}, 1, v{TMP+3}
    v_mul_u32_u24 v{TMP+3}, 3, v{TMP+3}
    v_xor_b32 v{TMP+3}, v{TMP+3}, v{TMP+4}
    v_lshrrev_b32 v{TMP+2}, 4, v1                 ; g
    v_xor_b32 v{TMP+3}, v{TMP+3}, v{TMP+2}
    v_lshl_add_u32 v{TMP+3}, v{TMP+1}, 2, v{TMP+3}
    v_lshlrev_b32 v{rB}, 4, v{TMP+3}
    v_add_u32 v{rB}, s38, v{rB}
    v_lshlrev_b32 v{vU}, 9, v{TMP+2}
    v_lshl_add_u32 v{vU}, v{TMP+1}, 4, v{vU}
    v_lshrrev_b32 v{TMP+3}, 1, v{TMP+2}
    v_lshlrev_b32 v{vU9}, 9, v{TMP+3}
    v_lshl_add_u32 v{vU9}, v{TMP+1}, 4, v{vU9}
    v_and_b32 v{TMP+3}, 1, v{TMP+2}
    v_lshl_add_u32 v{vU9}, v{TMP+3}, 3, v{vU9}
    v_bfe_u32 v{TMP+3}, v1, 2, 2
    v_lshl_add_u32 v{TMP+3}, v{TMP+2}, 3, v{TMP+3}   ; s (i = 0)
    v_and_b32 v{TMP+4}, 1, v1
    v_lshlrev_b32 v{TMP+5}, 2, v{TMP+4}
    v_xor_b32 v{TMP+5}, v{TMP+5}, v{TMP+3}
    v_lshlrev_b32 v{TMP+5}, 4, v{TMP+5}
    v_and_b32 v{TMP+6}, 3, v1
    v_lshl_add_u32 v{TMP+5}, v{TMP+6}, 9, v{TMP+5}
    v_bfe_u32 v{TMP+6}, v1, 1, 1
    v_lshl_add_u32 v{TMP+5}, v{TMP+6}, 3, v{TMP+5}
    v_add_u32 v{rA[0]}, 8192, v{TMP+5}
    v_xor_b32 v{rA[1]}, 64, v{rA[0]}
    v_xor_b32 v{rA[2]}, 8, v{rA[0]}
    v_xor_b32 v{rA[3]}, 8, v{rA[1]}
    v_lshlrev_b32 v{TMP+5}, 2, v{TMP+6}
    v_xor_b32 v{TMP+5}, v{TMP+5}, v{TMP+3}
    v_lshlrev_b32 v{TMP+5}, 4, v{TMP+5}
    v_lshl_add_u32 v{TMP+5}, v{TMP+6}, 9, v{TMP+5}
    v_lshl_add_u32 v{TMP+5}, v{TMP+4}, 3, v{TMP+5}
    v_add_u32 v{rX[0]}, 16384, v{TMP+5}
    v_xor_b32 v{rX[1]}, 64, v{rX[0]}
    s_lshl_b32 s48, s30, 2
    s_add_u32 s48, s48, s32
    s_mul_i32 s48, s48, 144
    s_mul_i32 s49, s31, 9
    s_add_u32 s48, s48, s49
    s_lshl_b32 s48, s48, 10
    s_add_u32 s48, s48, {UF}
    s_add_u32 s49, s48, 4096
    s_add_u32 s50, s48, 8192
    s_lshl_b32 s44, s44, 1
    v_lshlrev_b32 v{TMP+21}, 1, v{TMP+1}
    """)

    def reads(sl, k):
        o = sl * STG
        fa, fb = FA[k], FB[k]
        out = [f"ds_read_b128 v[{fb}:{fb+3}], v{rB} offset:{o}", f"ds_read_b128 v[{fb+4}:{fb+7}], v{rB} offset:{o+1024}"]
        for tau in range(9):
            for i in range(2):
                reg = rA[2 * (tau % 2) + i] if tau < 8 else rX[i]
                off = o + (tau // 2) * 2048 if tau < 8 else o
                out.append(f"ds_read_b64_tr_b16 v[{fa+4*tau+2*i}:{fa+4*tau+2*i+1}], v{reg} offset:{off}")
        return out

    def mfmas(k):
        fa, fb = FA[k], FB[k]
        out = []
        for tau in range(9):
            for b in range(2):
                d = ACC + 4 * (2 * tau + b)
                out.append(f"v_mfma_f32_16x16x32_bf16 v[{d}:{d+3}], v[{fa+4*tau}:{fa+4*tau+3}], v[{fb+4*b}:{fb+4*b+3}], v[{d}:{d+3}]")
        return out

    def uop(op, P, b, sc=""):
        if P < 4:
            z = Z1 + 4 * (2 * P + b)
            return f"buffer_{op}_dwordx4 v[{z}:{z+3}], v{vU}, s[{sws}:{sws+3}], s{48 + P // 2} offen offset:{(P % 2) * 2048 + b * 256}{sc}"
        z = Z1 + 32 + 2 * b
        return f"buffer_{op}_dwordx2 v[{z}:{z+1}], v{vU9}, s[{sws}:{sws+3}], s50 offen offset:{b * 256}{sc}"

    for i in range(72):
        a(f"v_mov_b32 v{ACC+i}, 0")
    if mega:
        from mkz import flag_store
        a(f"""
        s_lshl_b32 s51, s31, 7
        s_add_u32 s51, s51, {FL_Z}
        s_lshl_b32 s52, s30, 2
        s_add_u32 s52, s52, s51
        s_lshl_b32 s53, s30, 7
        s_lshl_b32 s54, s31, 2
        s_add_u32 s53, s53, s54
        s_add_u32 s53, s53, {FL_U + 64}
        v_mov_b32 v{TMP+10}, 0
        s_waitcnt vmcnt(0)
        s_barrier
        """)
        flag_store(a, f"{L}_NOSIG", sws, 52, TMP + 8, TMP + 9)
        pf.stamp()
        for st in range(4):
            a.ext(dma_sp(st)[3:])
        a(f"""
        s_cmp_lg_u32 s32, 0
        s_cbranch_scc1 {L}Z_OK
        v_lshlrev_b32 v{TMP+8}, 2, v{TMP+1}
        """)
        poll(a, f"{L}Z", TMP + 9, TMP + 8, sws, 51, sleep=6)
        a("s_barrier")
        for st in range(4):
            a.ext(dma_sp(st)[:3])
        pf.stamp()
        a(f"s_waitcnt vmcnt(3)\ns_barrier")
    else:
        for st in range(4):
            if GD == 1 or (GD == 2 and st >= 1):
                a.ext(dma_sp(st))
        pf.stamp()
        a(f"s_waitcnt vmcnt(15)\ns_barrier")
    a.ext(reads(0, 0))
    pf.stamp()

    def body(sl, vm, dma, rdnext, extra=None):
        ms = mfmas(sl % 2)
        rd = reads((sl + 1) % 4, (sl + 1) % 2) if rdnext else []
        dm = dma_sp(sl) if dma else []
        extra = list(extra or [])
        a(f"s_waitcnt vmcnt({vm}) lgkmcnt(0)\ns_barrier")
        GS_ = int(os.environ.get("GSCHED", "4"))
        if GS_ == 0:
            for q in range(18):
                a(ms[q])
                if q < 10 and rd:
                    a.ext(rd[2 * q:2 * q + 2])
                if q >= 8 and q % 2 == 0 and dm:
                    a(dm.pop(0))
                if extra:
                    a(extra.pop(0))
        elif GS_ == 1:
            a.ext(dm); a.ext(extra); a.ext(rd); a.ext(ms)
        elif GS_ == 2:
            a.ext(dm); a.ext(extra)
            for q in range(18):
                a(ms[q])
                if rd:
                    a(rd.pop(0))
            a.ext(rd)
        elif GS_ == 4:
            a.ext(rd[:4]); rd = rd[4:]
            for q in range(18):
                a(ms[q])
                if q % 4 == 1 and dm:
                    a(dm.pop(0))
                elif rd:
                    a(rd.pop(0))
                    if q < 4 and rd:
                        a(rd.pop(0))
            a.ext(rd); a.ext(dm); a.ext(extra)
        elif GS_ == 3:
            a.ext(rd[:8]); rd = rd[8:]
            for q in range(18):
                a(ms[q])
                if rd:
                    a(rd.pop(0))
            a.ext(dm); a.ext(extra)

    zl = [uop("load", P, b, ZS) for P in range(5) for b in range(2)] + \
         [f"buffer_load_ushort v{TMP+18}, v{TMP+21}, s[{sbsp}:{sbsp+3}], s44 offen",
          f"buffer_load_ushort v{TMP+19}, v{TMP+21}, s[{sbsp}:{sbsp+3}], s44 offen offset:32"]
    a(f"s_mov_b32 s47, {14 if mega else 15}\ns_setprio {loop_prio}")
    a.label(f"{L}_LOOP")
    for sl in range(4):
        body(sl, 10, True, True)
    a(f"""
    s_sub_u32 s47, s47, 1
    s_cmp_lg_u32 s47, 0
    s_cbranch_scc1 {L}_LOOP
    """)
    if mega:
        body(0, 10, True, True, [f"buffer_load_dword v{TMP+11}, v{TMP+10}, s[{sws}:{sws+3}], s53 offen sc1"])
        body(1, 10, True, True)
        body(2, 10, True, True)
        body(3, 10, True, True)
        a(f"""
        v_readfirstlane_b32 s54, v{TMP+11}
        s_cmp_lg_u32 s54, 0
        s_cbranch_scc1 {L}Z1_OK
        """)
        poll(a, f"{L}Z1", TMP + 11, TMP + 10, sws, 53, sleep=6)
    for sl in range(4):
        body(sl, max(0, 10 - 5 * sl) + (len(zl) if sl > 0 else 0), False, sl < 3, zl if sl == 0 else None)
    pf.stamp()
    a(f"""
    s_setprio 3
    s_waitcnt vmcnt(0)
    v_lshlrev_b32 v{TMP+18}, 16, v{TMP+18}
    v_lshlrev_b32 v{TMP+19}, 16, v{TMP+19}
    """)
    for P in range(5):
        for b in range(2):
            if P < 4:
                src = [ACC + 4 * (2 * (2 * P) + b) + i for i in range(4)] + [ACC + 4 * (2 * (2 * P + 1) + b) + i for i in range(4)]
                z = Z1 + 4 * (2 * P + b)
            else:
                src = [ACC + 4 * (16 + b) + i for i in range(4)]
                z = Z1 + 32 + 2 * b
            n = len(src)
            for r in src:
                a(f"v_add_f32 v{r}, v{r}, v{TMP+18+b}")
            for i in range(n // 2):
                a(f"v_lshlrev_b32 v{TMP+2+2*i}, 16, v{z+i}")
                a(f"v_and_b32 v{TMP+3+2*i}, 0xffff0000, v{z+i}")
            for i, r in enumerate(src):
                a(f"v_mul_f32 v{r}, v{r}, v{TMP+2+i}")
            for i in range(n // 2):
                a(f"v_cvt_pk_bf16_f32 v{z+i}, v{src[2*i]}, v{src[2*i+1]}")
            a(uop("store", P, b, " sc1"))
```

```python
from common import *

NT = " nt" if os.environ.get("NT0", "1") == "1" else ""
SC = " sc1" if os.environ.get("SC1", "1") == "1" else ""

def ln_finish(a, f, n, vmean, vvar, t, pk):
    round_bf16(a, vmean)
    round_bf16(a, vvar)
    a(f"v_add_f32 v{vvar}, {fbits(1e-5)}, v{vvar}")
    round_bf16(a, vvar)
    a(f"v_sqrt_f32 v{vvar}, v{vvar}")
    round_bf16(a, vvar)
    a(f"v_rcp_f32 v{vvar}, v{vvar}")
    for i in range(n):
        a(f"v_sub_f32 v{f+i}, v{f+i}, v{vmean}")
    for i in range(n // 2):
        a(f"v_cvt_pk_bf16_f32 v{pk+i}, v{f+2*i}, v{f+2*i+1}")
    for i in range(n // 2):
        a(f"v_lshlrev_b32 v{f+2*i}, 16, v{pk+i}")
        a(f"v_and_b32 v{f+2*i+1}, 0xffff0000, v{pk+i}")
    for i in range(n):
        a(f"v_mul_f32 v{f+i}, v{f+i}, v{vvar}")
    for i in range(n // 2):
        a(f"v_cvt_pk_bf16_f32 v{pk+i}, v{f+2*i}, v{f+2*i+1}")


def build_k0():
    NCV, NLN, NWB, NPF = 144, 256, 288, (16 if os.environ.get('CPF', '1') == '1' else 0)
    NSP = 128 if os.environ.get("K0SP", "1") == "1" else 0
    k = Kernel("k0_prep_kernel", NCV + NLN + NWB + NPF + NSP, 256, 36864, 64)
    a = k.a
    pf = Prof(a, bool(PROF), 0)
    pf.stamp()
    a(f"""
    s_cmp_lt_u32 s2, {NPF}
    s_cbranch_scc1 K0_CPF
    s_sub_u32 s2, s2, {NPF}
    s_cmp_ge_u32 s2, {NCV+NLN+NWB}
    s_cbranch_scc1 K0_SP
    s_load_dwordx4 s[4:7], s[0:1], {KA_X}
    s_load_dwordx2 s[24:25], s[0:1], {KA_WIN}
    s_load_dwordx2 s[26:27], s[0:1], {KA_WS}
    v_and_b32 v1, 63, v0
    v_lshrrev_b32 v2, 6, v0
    s_waitcnt lgkmcnt(0)
    """)
    pf.stamp()
    srd(a, 8, 4, SZ_X)
    srd(a, 12, 6, SZ_WQKV)
    srd(a, 16, 24, SZ_WIN)
    srd(a, 20, 26, WS_USED)
    a(f"""
    s_cmp_ge_u32 s2, {NCV}
    s_cbranch_scc1 K0_NOTCV
    s_lshr_b32 s28, s2, 3             ; kp
    s_and_b32 s29, s2, 7              ; q
    v_readfirstlane_b32 s30, v2       ; wave
    s_mul_i32 s31, s28, {32*4*FH}
    s_mul_i32 s32, s29, 576
    s_add_u32 s31, s31, s32
    s_mul_i32 s33, s30, 9216
    s_mul_i32 s34, s30, {8*4*FH}
    s_add_u32 s31, s31, s34
    """)
    for i in range(9):
        a(f"""
        v_add_u32 v3, {64*i}, v1
        v_mul_u32_u24 v4, 1821, v3
        v_lshrrev_b32 v4, 16, v4
        v_mul_u32_u24 v5, 36, v4
        v_sub_u32 v5, v3, v5              ; chunk
        v_mul_u32_u24 v4, {2*FH}, v4
        v_lshl_add_u32 v4, v5, 4, v4
        s_add_u32 m0, s33, {1024*i}
        buffer_load_dwordx4 v4, s[16:19], s31 offen{NT} lds
        """)
    a(f"""
    s_lshr_b32 s35, s30, 1
    s_and_b32 s36, s30, 1
    s_lshl_b32 s37, s29, 1
    s_add_u32 s42, s37, s35           ; group
    s_mul_i32 s37, s35, 288
    v_lshlrev_b32 v7, 4, v1
    s_cmp_lg_u32 s36, 0
    s_cbranch_scc1 K0_CVZ1
    v_lshrrev_b32 v3, 4, v1
    v_bfe_u32 v4, v1, 2, 2
    v_lshl_add_u32 v3, v3, 3, v4
    v_mul_u32_u24 v3, 1152, v3
    s_add_u32 s37, s37, 576
    v_add_u32 v3, s37, v3
    v_and_b32 v4, 3, v1
    v_lshl_add_u32 v6, v4, 3, v3
    v_lshl_add_u32 v5, v4, 4, v3
    v_bfe_u32 v4, v1, 1, 1
    v_lshl_add_u32 v5, v4, 3, v5      ; parity 0
    v_xor_b32 v46, 8, v5              ; parity 1
    s_mul_i32 s37, s42, {WZG}
    s_mul_i32 s38, s28, 9216
    s_add_u32 s39, s37, s38
    s_add_u32 s39, s39, {WZ}
    s_add_u32 s40, s39, 4096
    s_add_u32 s41, s39, 8192
    s_waitcnt vmcnt(0)
    s_barrier
    """)
    for t in range(9):
        reg, off = ((5 if t % 2 == 0 else 46), 64 * (t // 2)) if t < 8 else (6, 256)
        a(f"ds_read_b64_tr_b16 v[{8+4*t}:{9+4*t}], v{reg} offset:{off}")
        a(f"ds_read_b64_tr_b16 v[{10+4*t}:{11+4*t}], v{reg} offset:{off + 4*1152}")
    for t in range(9):
        a(f"s_waitcnt lgkmcnt({min(15, 2*(8-t))})")
        a(f"buffer_store_dwordx4 v[{8+4*t}:{11+4*t}], v7, s[20:23], s{39 + t // 4} offen offset:{1024*(t % 4)}{SC}")
    a(f"""
    s_branch K0_CVEND
    K0_CVZ1:
    v_lshrrev_b32 v3, 5, v1
    v_bfe_u32 v4, v1, 2, 2
    v_lshl_add_u32 v3, v3, 3, v4
    v_mul_u32_u24 v3, 1152, v3
    v_add_u32 v3, s37, v3
    v_and_b32 v4, 1, v1
    v_lshl_add_u32 v3, v4, 4, v3
    v_bfe_u32 v4, v1, 1, 1
    v_lshl_add_u32 v6, v4, 3, v3      ; mixed (+256)
    v_bfe_u32 v4, v1, 4, 1
    v_lshl_add_u32 v5, v4, 5, v6
    s_mul_i32 s37, s42, {WQG}
    s_lshl_b32 s38, s28, 14
    s_add_u32 s39, s37, s38
    s_add_u32 s39, s39, {WQ + 4096}
    s_add_u32 s40, s39, 8192
    s_sub_u32 s41, s39, 1024
    s_sub_u32 s43, s40, 1024
    s_waitcnt vmcnt(0)
    s_barrier
    """)
    lst = [(ks, T) for ks in range(2) for T in range(5)]
    for i, (ks, T) in enumerate(lst):
        reg, off = (5, 64 * T) if T < 4 else (6, 256)
        off += ks * 16 * 1152
        a(f"ds_read_b64_tr_b16 v[{8+4*i}:{9+4*i}], v{reg} offset:{off}")
        a(f"ds_read_b64_tr_b16 v[{10+4*i}:{11+4*i}], v{reg} offset:{off + 4*1152}")
    a("s_waitcnt lgkmcnt(0)")
    for i, (ks, T) in enumerate(lst):
        if T < 4:
            a(f"buffer_store_dwordx4 v[{8+4*i}:{11+4*i}], v7, s[20:23], s{39 + ks} offen offset:{1024*T}{SC}")
    a("s_mov_b32 exec_lo, 0xffff0000\ns_mov_b32 exec_hi, 0xffff0000")
    for i, (ks, T) in enumerate(lst):
        if T == 4:
            a(f"buffer_store_dwordx4 v[{8+4*i}:{11+4*i}], v7, s[20:23], s{41 if ks == 0 else 43} offen{SC}")
    a("K0_CVEND:")
    pf.stamp()
    pf.dump(20, 4)
    pf.n -= 2
    a(f"""
    s_endpgm
    K0_NOTCV:
    s_cmp_ge_u32 s2, {NCV+NLN}
    s_cbranch_scc1 K0_WB
    v_lshrrev_b32 v3, 5, v1
    v_lshl_add_u32 v3, v2, 1, v3
    s_sub_u32 s28, s2, {NCV}
    s_lshl_b32 s28, s28, 3
    v_add_u32 v3, s28, v3            ; row
    v_and_b32 v4, 31, v1             ; c0
    v_mul_u32_u24 v5, 1152, v3
    v_lshl_add_u32 v5, v4, 4, v5
    """)
    for i in range(12):
        a(f"v_mov_b32 v{8+i}, 0")
    a(f"""
    s_mov_b32 s30, 0x00ffffff
    s_mov_b32 s31, 0x00ffffff
    s_mov_b64 exec, s[30:31]
    buffer_load_dwordx4 v[8:11], v5, s[8:11], 0 offen
    buffer_load_dwordx4 v[12:15], v5, s[8:11], 0 offen offset:384
    buffer_load_dwordx4 v[16:19], v5, s[8:11], 0 offen offset:768
    s_mov_b64 exec, -1
    v_lshlrev_b32 v6, 2, v0
    v_mov_b32 v7, -1.0
    s_lshl_b32 s29, s28, 7
    s_add_u32 s29, s29, {STT}
    buffer_store_dword v7, v6, s[20:23], s29 offen
    s_cmp_ge_u32 s28, {40*8}
    s_cbranch_scc1 K0_NOFLG
    v_mov_b32 v7, 0
    s_add_u32 s29, s29, {FLG - STT}
    buffer_store_dword v7, v6, s[20:23], s29 offen
    s_waitcnt vmcnt(0)
    K0_NOFLG:
    v_lshrrev_b32 v6, 5, v3
    v_mul_u32_u24 v6, 36, v6
    v_lshrrev_b32 v7, 1, v4
    v_add_u32 v6, v6, v7
    v_lshlrev_b32 v6, 10, v6
    v_and_b32 v7, 1, v4
    v_lshlrev_b32 v7, 5, v7
    v_and_b32 v20, 31, v3
    v_add_u32 v7, v7, v20
    v_lshl_add_u32 v6, v7, 4, v6
    s_waitcnt vmcnt(1)
    """)
    F = 24
    pf.stamp()
    for i in range(12):
        a(f"v_lshlrev_b32 v{F+2*i}, 16, v{8+i}")
        a(f"v_and_b32 v{F+2*i+1}, 0xffff0000, v{8+i}")
    a(f"v_add_f32 v50, v{F}, v{F+1}")
    a(f"v_add_f32 v51, v{F+2}, v{F+3}")
    for i in range(4, 24, 2):
        a(f"v_add_f32 v50, v50, v{F+i}")
        a(f"v_add_f32 v51, v51, v{F+i+1}")
    a("v_add_f32 v50, v50, v51")
    reduce16(a, 50, 52)
    reduce_x16(a, 50, 52)
    a(f"v_mul_f32 v50, {fbits(1.0/576)}, v50")
    a("v_mov_b32 v51, 0\nv_mov_b32 v53, 0\ns_mov_b64 exec, s[30:31]")
    for i in range(24):
        a(f"v_sub_f32 v52, v{F+i}, v50")
        a(f"v_fmac_f32 v{51 if i % 2 == 0 else 53}, v52, v52")
    a("s_mov_b64 exec, -1\nv_add_f32 v51, v51, v53")
    reduce16(a, 51, 52)
    reduce_x16(a, 51, 52)
    a(f"v_mul_f32 v51, {fbits(1.0/576)}, v51")
    ln_finish(a, F, 24, 50, 51, 52, 8)
    a(f"""
    s_mov_b64 exec, s[30:31]
    s_mov_b32 s32, {XF}
    s_mov_b32 s33, {XF + 12*1024}
    s_mov_b32 s34, {XF + 24*1024}
    buffer_store_dwordx4 v[8:11], v6, s[20:23], s32 offen
    buffer_store_dwordx4 v[12:15], v6, s[20:23], s33 offen
    buffer_store_dwordx4 v[16:19], v6, s[20:23], s34 offen
    """)
    pf.dump(20, 4)
    pf.n -= 2
    a("s_endpgm")
    a.label("K0_WB")
    a(f"""
    s_sub_u32 s28, s2, {NCV+NLN}      ; j in 0..287
    s_mul_i32 s29, s28, 3641          ; j/18 = (j*3641)>>16 for j<288
    s_lshr_b32 s29, s29, 16           ; g
    s_mul_i32 s30, s29, 18
    s_sub_u32 s30, s28, s30
    v_readfirstlane_b32 s31, v2       ; T = wave
    v_and_b32 v3, 31, v1              ; m
    v_lshrrev_b32 v4, 5, v1           ; h
    v_and_b32 v5, 19, v3
    v_and_b32 v6, 4, v3
    v_lshlrev_b32 v6, 1, v6
    v_or_b32 v5, v5, v6
    v_and_b32 v6, 8, v3
    v_lshrrev_b32 v6, 1, v6
    v_or_b32 v5, v5, v6               ; phi
    s_lshl_b32 s32, s30, 5
    v_lshlrev_b32 v6, 3, v4
    v_add_u32 v6, s32, v6             ; k row
    s_mul_i32 s33, s29, 36            ; 36 g
    """)
    for i in range(16):
        a(f"v_mov_b32 v{16+i}, 0")
    a(f"""
    s_cmp_eq_u32 s31, 3
    s_cbranch_scc1 K0_WB3
    s_mul_i32 s34, s31, 576
    s_add_u32 s34, s34, s33
    v_lshrrev_b32 v7, 4, v5
    v_mul_u32_u24 v7, 18, v7
    v_and_b32 v8, 15, v5
    v_add3_u32 v7, v7, v8, s34
    s_branch K0_WBQ
    K0_WB3:
    v_lshrrev_b32 v10, 3, v5
    v_bfe_u32 v11, v5, 1, 2
    v_and_b32 v12, 1, v5
    v_mul_u32_u24 v7, 576, v11
    v_mul_u32_u24 v10, 18, v10
    v_add3_u32 v7, v7, v10, v12
    v_add3_u32 v7, v7, s33, 16
    v_cmp_gt_u32 vcc, 16, v5
    v_cmp_ne_u32 s[38:39], 3, v11
    s_and_b64 vcc, vcc, s[38:39]
    s_mov_b64 exec, vcc
    K0_WBQ:
    v_mul_u32_u24 v9, {3*D}, v6
    v_add_lshl_u32 v9, v9, v7, 1
    """)
    for ks in range(2):
        for j in range(8):
            r = 16 * ks + j
            a(f"s_mov_b32 s38, {r * 3 * D * 2}")
            a(f"buffer_load_ushort v{(24 if j % 2 else 16)+4*ks+j//2}, v9, s[12:15], s38 offen")
    a(f"""
    s_mov_b64 exec, -1
    s_mul_i32 s34, s29, {WQG}
    s_lshl_b32 s35, s30, 4
    s_add_u32 s35, s35, s31
    s_lshl_b32 s35, s35, 10
    s_add_u32 s34, s34, s35
    s_add_u32 s34, s34, {WQ}
    s_add_u32 s35, s34, 8192
    v_lshlrev_b32 v9, 4, v1
    s_waitcnt vmcnt(0)
    """)
    pf.stamp()
    for i in range(8):
        a(f"v_lshl_or_b32 v{16+i}, v{24+i}, 16, v{16+i}")
    a(f"""
    s_cmp_eq_u32 s31, 3
    s_cselect_b32 exec_lo, 0xffff, -1
    s_cselect_b32 exec_hi, 0xffff, -1
    buffer_store_dwordx4 v[16:19], v9, s[20:23], s34 offen{SC}
    buffer_store_dwordx4 v[20:23], v9, s[20:23], s35 offen{SC}
    """)
    pf.dump(20, 4)
    a(f"""
    K0_END:
    s_endpgm
    K0_SP:
    s_sub_u32 s2, s2, {NCV+NLN+NWB}
    s_cmp_ge_u32 s2, {NSP}
    s_cbranch_scc1 K0_END
    s_load_dwordx2 s[4:5], s[0:1], {KA_WSP}
    v_lshlrev_b32 v1, 7, v0
    s_lshl_b32 s12, s2, 16
    s_add_u32 s13, s12, 32768
    s_waitcnt lgkmcnt(0)
    """)
    srd(a, 8, 4, SZ_WSP)
    a("""
    buffer_load_dword v2, v1, s[8:11], s12 offen
    buffer_load_dword v3, v1, s[8:11], s13 offen
    s_endpgm
    K0_CPF:
    s_getpc_b64 s[4:5]
    K0_PC:
    s_lshr_b32 s6, s2, 3
    s_lshl_b32 s6, s6, 15
    v_lshlrev_b32 v1, 7, v0
    v_add_u32 v1, s6, v1
    v_min_u32 v1, ALL_CODE_END-K0_PC-4, v1
    global_load_dword v2, v1, s[4:5]
    s_endpgm
    """)
    return k
```

```python
from common import *
from k2a import attn_body
from k2b import gemm2_body
from k3 import outproj_body, sproj_body
from mkz import z2_body
from mkq import qkv_body

def build_k2(prio_attn=1, prio_gemm=0, kidx=1):
    k = Kernel("k2_mix_kernel", 512, 256, 81920, 256, nsgpr=102)
    a = k.a
    pf = Prof(a, bool(PROF), kidx)
    pf.stamp()
    a(f"""
    s_cmp_ge_u32 s2, 512
    s_cbranch_scc1 K2_END
    s_load_dwordx4 s[4:7], s[0:1], {KA_WSP}
    s_load_dwordx2 s[24:25], s[0:1], {KA_WOUT}
    s_load_dwordx2 s[26:27], s[0:1], {KA_WS}
    s_load_dwordx2 s[60:61], s[0:1], {KA_WO}
    s_waitcnt lgkmcnt(0)
    """)
    srd(a, 12, 4, SZ_WSP)
    srd(a, 16, 6, SZ_BSP)
    srd(a, 20, 26, WS_USED)
    SWAP = int(os.environ.get("SWAP", "1"))
    a(f"""
    s_and_b32 s3, s2, 255
    s_cmp_{'ge' if SWAP else 'lt'}_u32 s2, 256
    s_cbranch_scc1 K2_ATT
    """)
    if prio_gemm:
        a(f"s_setprio {prio_gemm}")
    n0 = pf.n
    srd(a, 8, 24, SZ_WOUT)
    z2_body(a, pf, "s3", 20)
    gemm2_body(a, pf, "s3", 20, 12, 16, loop_prio=int(os.environ.get("GLP", "2")), mega=True)
    a(f"""
    s_waitcnt vmcnt(0)
    s_barrier
    s_cmp_lg_u32 s32, 0
    s_cbranch_scc1 K2_NOSIG
    s_lshl_b32 s30, s30, 7
    s_lshl_b32 s31, s31, 2
    s_add_u32 s30, s30, s31
    s_add_u32 s30, s30, {FLG}
    v_mov_b32 v1, 0
    v_mov_b32 v2, 1
    s_mov_b64 exec, 1
    buffer_store_dword v2, v1, s[20:23], s30 offen sc1
    s_mov_b64 exec, -1
    K2_NOSIG:
    """)
    pf.stamp()
    a(f"""
    s_load_dwordx2 s[4:5], s[0:1], {KA_X}
    s_load_dwordx2 s[24:25], s[0:1], {KA_OUT}
    s_waitcnt lgkmcnt(0)
    """)
    srd(a, 12, 4, SZ_X)
    srd(a, 4, 24, SZ_X)
    outproj_body(a, pf, "s3", 20, 8, 12, 4, "K2_END", prio=int(os.environ.get("OPP", "0")))
    pf.dump(20, 4)
    a("s_endpgm")
    a.label("K2_ATT")
    if os.environ.get("NOATT"):
        a("s_endpgm")
    pf.n = n0
    if prio_attn:
        a(f"s_setprio {prio_attn}")
    srd(a, 8, 60, SZ_WO)
    srd(a, 12, 24, SZ_WOUT)
    a(f"s_setprio {int(os.environ.get('PQ', '0'))}")
    m1, m2 = qkv_body(a, pf, "s3", 20)
    a(f"s_setprio {prio_attn}")
    pf.stamp()
    attn_body(a, pf, "s3", 20, pfw=(12, 8) if int(os.environ.get("PFA", "1")) else None, mega=True, mid=m1, mid2=m2, late_flag=60)
    a(f"""
    s_waitcnt vmcnt(0)
    s_barrier
    s_cmp_lg_u32 s32, 0
    s_cbranch_scc1 K2_NOSIG2
    s_lshl_b32 s31, s31, 7
    s_lshl_b32 s30, s30, 2
    s_add_u32 s30, s30, s31
    s_add_u32 s30, s30, {FLG + 2048}
    v_mov_b32 v1, 0
    v_mov_b32 v2, 1
    s_mov_b64 exec, 1
    buffer_store_dword v2, v1, s[20:23], s30 offen sc1
    s_mov_b64 exec, -1
    K2_NOSIG2:
    """)
    pf.stamp()
    sproj_body(a, pf, "s3", 20, 8, "K2_END")
    pf.dump(20, 4)
    a("K2_END:\ns_endpgm")
    return k
```

```python
from common import *
from mkz import ids, flag_store


def qkv_body(a, pf, sid, sws, L="QK"):
    w = Waits(a)
    ACC = 112
    XR_ = 16
    NXU = 5
    WR = XR_ + 8 * NXU
    NW = 12
    TMP = 240
    PK = 16
    vL16, vR2 = 2, 3
    NSL = 5
    NU = 18
    ids(a, sid, TMP)
    a(f"""
    v_add_u32 v{vR2}, 49152, v{vL16}
    s_mul_i32 s34, s33, {36*1024}
    s_add_u32 s34, s34, {XF}
    s_lshl_b32 s35, s32, 12
    s_mul_i32 s37, s31, {WQG}
    s_add_u32 s37, s37, {WQ}
    s_add_u32 s37, s37, s35
    """)

    def issue(u):
        ops = []
        x = XR_ + 8 * (u % NXU)
        for i in range(2):
            def f(i=i):
                w.ivm(f"buffer_load_dwordx4 v[{x+4*i}:{x+4*i+3}], v{vL16}, s[{sws}:{sws+3}], s34 offen offset:{1024*(2*(u%2)+i)}", u)
                if i == 1 and u % 2:
                    a("s_add_u32 s34, s34, 4096")
            ops.append(f)
        for i in range(4):
            def f(i=i):
                if i == 0:
                    a(f"s_add_u32 m0, s35, {(u % NSL) * 16384}")
                w.ivm(f"buffer_load_dwordx4 v{vL16}, s[{sws}:{sws+3}], s37 offen offset:{1024*i} lds", u)
                if i == 3:
                    a("s_add_u32 s37, s37, 16384")
            ops.append(f)
        return ops

    def rd(gt):
        off = ((gt // 16) % NSL) * 16384 + (gt % 16) * 1024
        reg = vL16 if off < 49152 else vR2
        off -= 0 if off < 49152 else 49152
        d = WR + 4 * (gt % NW)
        w.ilg(f"ds_read_b128 v[{d}:{d+3}], v{reg} offset:{off}", gt)

    QD = 3
    for u in range(QD + 1):
        for f in issue(u):
            f()
    vQt, vKVt, vKm, vGC2, vZ = 4, 5, 6, 249, 248
    a(f"""
    v_and_b32 v{TMP+1}, 31, v1              ; s
    v_lshrrev_b32 v{TMP}, 5, v1             ; h
    s_lshl_b32 s47, s31, 7
    s_add_u32 s47, s47, s33           ; 2g*64 + rt
    s_mul_i32 s48, s47, 1152
    s_add_u32 s48, s48, {QF}
    s_add_u32 s59, s48, {64*1152}
    s_mul_i32 s49, s47, 2560
    s_add_u32 s49, s49, {KV}
    s_add_u32 s50, s49, {64*2560}
    s_mov_b32 s51, {fbits(QSCALE)}
    s_mov_b32 s54, 0x02020202
    s_mov_b32 s55, 0x02020202
    s_mov_b32 s56, 0x01010101
    s_mov_b32 s57, 0x01010101
    v_mul_u32_u24 v{vQt}, {64*1152}, v{TMP}
    v_lshl_add_u32 v{vQt}, v{TMP+1}, 2, v{vQt}
    v_mul_u32_u24 v{vKVt}, {64*2560}, v{TMP}
    v_lshl_add_u32 v{vKVt}, v{TMP+1}, 4, v{vKVt}
    v_lshlrev_b32 v{vKm}, 8, v{TMP}
    s_lshl_b32 s52, s47, 2
    s_add_u32 s52, s52, {KMX}
    s_lshl_b32 s53, s31, 7
    s_lshl_b32 s58, s30, 2
    s_add_u32 s53, s53, s58
    s_add_u32 s53, s53, {FL_KV}
    s_lshl_b32 s60, s30, 7
    s_lshl_b32 s58, s31, 2
    s_add_u32 s60, s60, s58
    s_add_u32 s60, s60, {FL_U + 64}
    s_mul_i32 s61, s33, 144
    s_mul_i32 s43, s31, 9
    s_add_u32 s61, s61, s43
    s_lshl_b32 s61, s61, 10
    s_add_u32 s61, s61, {UF}
    v_mov_b32 v{vGC2}, {fbits(GC2)}
    v_mov_b32 v{vZ}, v{vL16}
    v_add_u32 v250, 4096, v{vL16}
    v_add_u32 v251, 8192, v{vL16}
    """)
    w.wvm(0)
    a("s_barrier")
    AH = 8
    for gt in range(AH):
        rd(gt)
    pend = []
    NG = 36 * 8
    for gt in range(NG):
        t, T = divmod(gt, 8)
        nx = gt + AH
        if nx < NG and nx % 16 == 0:
            u = nx // 16
            for f in pend:
                f()
            w.wvm(u)
            a("s_barrier")
            pend = issue(u + QD) if u + QD < NU else []
        if T % 2 == 0:
            w.wlg(gt + 1)
        x = XR_ + 8 * ((t // 2) % NXU) + 4 * (t % 2)
        wf = WR + 4 * (gt % NW)
        c = "0" if t == 0 else f"v[{ACC+16*T}:{ACC+16*T+15}]"
        a(f"v_mfma_f32_32x32x16_bf16 v[{ACC+16*T}:{ACC+16*T+15}], v[{wf}:{wf+3}], v[{x}:{x+3}], {c}")
        if nx < NG:
            rd(nx)
        if pend and T % 2 == 0:
            pend.pop(0)()
    pf.stamp()
    a("s_setprio 3")
    Q, K, V, M = ACC, ACC + 16, ACC + 32, ACC + 48
    for j, (X, s0, s1, off) in enumerate(((K, 49, 50, 0), (V, 49, 50, 1024), (Q, 48, 59, 0))):
        if X == Q:
            for i in range(16):
                a(f"v_mul_f32 v{Q+i}, s51, v{Q+i}")
        p = PK + 8 * j
        for i in range(8):
            a(f"v_cvt_pk_bf16_f32 v{p+i}, v{X+2*i}, v{X+2*i+1}")
        a(f"buffer_store_dwordx4 v[{p}:{p+3}], v{vL16}, s[{sws}:{sws+3}], s{s0} offen offset:{off} sc1")
        a(f"buffer_store_dwordx4 v[{p+4}:{p+7}], v{vL16}, s[{sws}:{sws+3}], s{s1} offen offset:{off} sc1")
    kk = PK + 33
    a(f"""
    v_mul_f32 v{M}, s51, v{M}
    v_mul_f32 v{M+1}, s51, v{M+1}
    v_cvt_pk_bf16_f32 v{PK+32}, v{M}, v{M+1}
    v_cvt_pk_bf16_f32 v{PK+28}, v{M+2}, v{M+3}
    v_mov_b32 v{PK+29}, 0x3f803f80
    v_cvt_pk_bf16_f32 v{PK+30}, v{M+4}, v{M+5}
    v_mov_b32_dpp v{PK+31}, v{PK+28} row_shr:1 row_mask:0xf bank_mask:0xf
    v_cndmask_b32 v{PK+29}, v{PK+29}, v{PK+31}, s[54:55]
    v_cndmask_b32 v{PK+29}, v{PK+29}, 0, s[56:57]
    v_cndmask_b32 v{PK+28}, v{PK+28}, 0, s[56:57]
    v_mov_b32 v{PK+31}, 0x00003f80
    buffer_store_dwordx4 v[{PK+28}:{PK+31}], v{vKVt}, s[{sws}:{sws+3}], s49 offen offset:2048 sc1
    buffer_store_dword v{PK+32}, v{vQt}, s[{sws}:{sws+3}], s48 offen offset:1024 sc1
    v_mul_f32 v{kk}, v{K}, v{K}
    v_mul_f32 v{kk+1}, v{K+8}, v{K+8}
    """)
    for i in range(1, 8):
        a(f"v_fmac_f32 v{kk}, v{K+i}, v{K+i}\nv_fmac_f32 v{kk+1}, v{K+8+i}, v{K+8+i}")
    a(f"""
    v_permlane32_swap_b32 v{kk}, v{kk+1}
    v_add_f32 v{kk}, v{kk}, v{kk+1}
    v_fmac_f32 v{kk}, v{M+2}, v{M+2}
    v_fmac_f32 v{kk}, v{M+3}, v{M+3}
    """)
    reduce16(a, kk, kk + 1, "v_max_f32")
    reduce_x16(a, kk, kk + 1, "v_max_f32")
    a(f"""
    s_mov_b32 exec_lo, 1
    s_mov_b32 exec_hi, 1
    buffer_store_dword v{kk}, v{vKm}, s[{sws}:{sws+3}], s52 offen sc1
    s_mov_b64 exec, -1
    s_setprio {int(os.environ.get('PZ1E', '1'))}
    """)
    pf.stamp()
    a(f"s_mov_b32 s56, {fbits(GC1)}")
    T8 = [TMP + i for i in range(8)]
    grp = [(ACC + 64 + 8 * gi, (vZ, 250)[gi // 4], (gi % 4) * 1024) for gi in range(8)] + [(M + 8, 251, 0)]
    KVH = int(os.environ.get("KVH", "4"))
    KVP = int(os.environ.get("KVP", "7"))

    def gel(lo, hi):
        for base, _, _ in grp[lo:hi]:
            a.ext(gelu_group(list(range(base, base + 8)), T8, 56, vGC2))
            for i in range(4):
                a(f"v_cvt_pk_bf16_f32 v{base+i}, v{base+2*i}, v{base+2*i+1}")
    gel(0, KVH)
    a("s_waitcnt vmcnt(0)\ns_barrier")
    flag_store(a, f"{L}_F1", sws, 53, 8, 9)
    gel(KVH, KVP)

    def stores():
        a("s_waitcnt vmcnt(10)")
        for base, vo, off in grp:
            a(f"buffer_store_dwordx4 v[{base}:{base+3}], v{vo}, s[{sws}:{sws+3}], s61 offen offset:{off} sc1")
    return (lambda: gel(KVP, 9)), stores
```

```python
from common import *

ZSL = 9216
NRS = 8


def ids(a, sid, tmp):
    a(f"""
    v_and_b32 v1, 63, v0
    v_lshrrev_b32 v{tmp}, 6, v0
    s_and_b32 s28, {sid}, 7
    s_lshr_b32 s29, {sid}, 3
    s_and_b32 s30, s28, 1
    s_lshl_b32 s30, s30, 3
    s_and_b32 s31, s29, 7
    s_add_u32 s30, s30, s31
    s_lshr_b32 s31, s28, 1
    s_lshl_b32 s31, s31, 2
    s_lshr_b32 s32, s29, 3
    s_add_u32 s31, s31, s32
    v_readfirstlane_b32 s32, v{tmp}   ; wave
    v_lshlrev_b32 v2, 4, v1
    s_lshl_b32 s33, s30, 2
    s_add_u32 s33, s33, s32
    """)


class ZPass:
    NS = 18

    def __init__(self, a, w, sws, half, ACC, XR, NXS, WR, vR2, vU, sb=34):
        self.a, self.w, self.sws, self.half = a, w, sws, half
        self.ACC, self.XR, self.NXS, self.WR, self.vR2, self.vU, self.sb = ACC, XR, NXS, WR, vR2, vU, sb
        self.nx = self.nw = 0
        self.xfree, self.wfree = NXS, NRS
        self.q = []
        self.done = []

    def setup(self, t):
        a, sb = self.a, self.sb
        a(f"""
        v_and_b32 v{t}, 15, v1
        v_lshrrev_b32 v{self.vU}, 4, v1
        v_lshlrev_b32 v{self.vU}, 9, v{self.vU}
        v_lshl_add_u32 v{self.vU}, v{t}, 4, v{self.vU}
        v_add_u32 v{self.vR2}, {4*ZSL}, v2
        s_mul_i32 s{sb}, s33, {36*1024}
        s_add_u32 s{sb}, s{sb}, {XF}
        s_lshl_b32 s{sb+1}, s32, 11
        s_lshl_b32 s{sb+2}, s32, 8
        s_add_u32 s{sb+2}, s{sb+2}, 8192
        s_mul_i32 s{sb+3}, s31, {WZG}
        s_add_u32 s{sb+3}, s{sb+3}, {WZ}
        s_add_u32 s{sb+4}, s{sb+3}, s{sb+2}
        s_add_u32 s{sb+3}, s{sb+3}, s{sb+1}
        """)

    def _iv(self, text, tag):
        self.w.ivm(text, tag); self.done.append(tag)

    def ops_x(self, n):
        a, sb, sws = self.a, self.sb, self.sws
        x = self.XR + 8 * (n % self.NXS)
        def f2():
            self._iv(f"buffer_load_dwordx4 v[{x+4}:{x+7}], v{self.vU}, s[{sws}:{sws+3}], s{sb} offen offset:{(n%2)*2048+256}", ("x", n))
            if n % 2:
                a(f"s_add_u32 s{sb}, s{sb}, 4096")
        return [lambda: self._iv(f"buffer_load_dwordx4 v[{x}:{x+3}], v{self.vU}, s[{sws}:{sws+3}], s{sb} offen offset:{(n%2)*2048}", ("x", n)), f2]

    def ops_w(self, n):
        a, sb, sws = self.a, self.sb, self.sws
        sl = n % NRS
        def f1():
            a(f"s_add_u32 m0, s{sb+1}, {sl*ZSL}")
            self._iv(f"buffer_load_dwordx4 v2, s[{sws}:{sws+3}], s{sb+3} offen lds", ("w", n))
        def f2():
            self._iv(f"buffer_load_dwordx4 v2, s[{sws}:{sws+3}], s{sb+3} offen offset:1024 lds", ("w", n))
            a(f"s_add_u32 s{sb+3}, s{sb+3}, {ZSL}")
        def f3():
            a(f"s_add_u32 m0, s{sb+2}, {sl*ZSL}\ns_mov_b64 exec, 0xffff")
            self._iv(f"buffer_load_dwordx4 v2, s[{sws}:{sws+3}], s{sb+4} offen lds", ("w", n))
            a(f"s_mov_b64 exec, -1\ns_add_u32 s{sb+4}, s{sb+4}, {ZSL}")
        return [f1, f2, f3]

    def refill(self, limit):
        while True:
            cx = self.nx < min(self.NS, self.xfree, limit + 1)
            cw = self.nw < min(self.NS, self.wfree, limit + 1)
            if cx and (not cw or self.nx <= self.nw):
                self.q.extend(self.ops_x(self.nx)); self.nx += 1
            elif cw:
                self.q.extend(self.ops_w(self.nw)); self.nw += 1
            else:
                break

    def pump(self, k=1):
        for _ in range(k):
            if self.q:
                self.q.pop(0)()

    def prefetch(self, limit):
        self.refill(limit)
        self.pump(len(self.q))

    def rd(self, gt):
        n, tau = divmod(gt, 9)
        sl = n % NRS
        reg, off = (2, sl * ZSL) if sl < 4 else (self.vR2, (sl - 4) * ZSL)
        d = self.WR + 4 * (gt % 6)
        self.w.ilg(f"ds_read_b128 v[{d}:{d+3}], v{reg} offset:{off + tau*1024}", ("z", gt))

    def sync(self, n, pre=None, post=None):
        m = min(n + 1, self.NS - 1)
        self.refill(m)
        while self.done.count(("w", m)) < 3:
            assert self.q
            self.pump()
        self.w.wvm(("w", m))
        if pre:
            pre()
        self.a("s_barrier")
        if post:
            post()

    def run(self, LA, hooks=None):
        a, w, NS = self.a, self.w, self.NS
        hooks = hooks or {}
        AH = 5
        self.sync(0)
        for gt in range(AH):
            self.rd(gt)
        for n in range(NS):
            self.xfree = n + self.NXS
            self.refill(n + LA)
            x = self.XR + 8 * (n % self.NXS)
            while self.done.count(("x", n)) < 2:
                self.pump()
            w.wvm(("x", n))
            for tau in range(9):
                gt = 9 * n + tau
                nx = gt + AH
                if nx % 18 == 0 and nx < 9 * NS:
                    self.sync(nx // 9, *hooks.get(nx // 9, (None, None)))
                    self.wfree = n + NRS
                    self.refill(n + LA)
                w.wlg(("z", gt))
                acc = self.ACC + 8 * tau
                wf = self.WR + 4 * (gt % 6)
                for b in range(2):
                    d = acc + 4 * b
                    c = "0" if n == 0 else f"v[{d}:{d+3}]"
                    a(f"v_mfma_f32_16x16x32_bf16 v[{d}:{d+3}], v[{wf}:{wf+3}], v[{x+4*b}:{x+4*b+3}], {c}")
                    if b == 0 and nx < 9 * NS:
                        self.rd(nx)
                if tau % 3 != 2:
                    self.pump()
        assert not self.q


def flag_store(a, L, sws, saddr, v0_, v1_):
    a(f"""
    s_cmp_lg_u32 s32, 0
    s_cbranch_scc1 {L}
    v_mov_b32 v{v0_}, 0
    v_mov_b32 v{v1_}, 1
    s_mov_b64 exec, 1
    buffer_store_dword v{v1_}, v{v0_}, s[{sws}:{sws+3}], s{saddr} offen sc1
    s_mov_b64 exec, -1
    {L}:
    """)


def z2_body(a, pf, sid, sws, L="ZG"):
    w = Waits(a)
    A2 = 88
    TMP = 232
    S0, Q0, S1, Q1 = 248, 249, 250, 251
    ids(a, sid, TMP)
    zp = ZPass(a, w, sws, 0, A2, 16, 8, 160, 3, 12)
    zp.setup(TMP)
    zp.prefetch(3)
    vSt, vSr, vZ, vZ9, vGC2 = 6, 7, 8, 9, 10
    a(f"""
    v_and_b32 v4, 15, v1              ; r
    v_lshrrev_b32 v5, 4, v1           ; g
    s_mov_b32 s40, {fbits(GC1)}
    v_mov_b32 v{vGC2}, {fbits(GC2)}
    v_and_b32 v{vSt}, 31, v1
    v_lshlrev_b32 v{vSt}, 3, v{vSt}
    v_lshlrev_b32 v{vSr}, 10, v5
    v_lshl_add_u32 v{vSr}, v4, 3, v{vSr}
    s_lshl_b32 s45, s33, 12
    s_add_u32 s45, s45, {STT}
    s_lshl_b32 s46, s31, 8
    s_add_u32 s46, s46, s45
    v_and_b32 v{TMP}, 1, v5
    v_lshlrev_b32 v{TMP+1}, 2, v{TMP}
    v_xor_b32 v{TMP+1}, v{TMP+1}, v4
    v_lshlrev_b32 v{vZ}, 9, v5
    v_lshl_add_u32 v{vZ}, v{TMP+1}, 4, v{vZ}
    v_lshrrev_b32 v{TMP+2}, 1, v5
    v_lshlrev_b32 v{TMP+1}, 2, v{TMP+2}
    v_xor_b32 v{TMP+1}, v{TMP+1}, v4
    v_lshlrev_b32 v{vZ9}, 9, v{TMP+2}
    v_lshl_add_u32 v{vZ9}, v{TMP+1}, 4, v{vZ9}
    v_lshl_add_u32 v{vZ9}, v{TMP}, 3, v{vZ9}
    s_lshl_b32 s48, s31, 6
    s_add_u32 s48, s48, s33
    s_mul_i32 s48, s48, 9216
    s_add_u32 s48, s48, {Z2N}
    s_add_u32 s49, s48, 4096
    s_add_u32 s50, s48, 8192
    s_mov_b32 s52, 0xffff0000
    s_mov_b32 s53, 0xffff0000
    """)
    for r in (S0, Q0, S1, Q1):
        a(f"v_mov_b32 v{r}, 0")
    pf.stamp()
    zp.run(int(os.environ.get("ZLA", "6")))
    pf.stamp()
    a(f"s_setprio {int(os.environ.get('ZEP', '2'))}")
    T8 = [TMP + i for i in range(16)]
    for tau in range(9):
        base = A2 + 8 * tau
        a.ext(gelu_group(list(range(base, base + 8)), T8[8 * (tau % 2):8 * (tau % 2) + 8], 40, vGC2))
        for i in range(8):
            s_, q_ = (S0, Q0) if i < 4 else (S1, Q1)
            a(f"v_add_f32 v{s_}, v{s_}, v{base+i}\nv_fmac_f32 v{q_}, v{base+i}, v{base+i}")
    for r in (S0, Q0, S1, Q1):
        a(f"v_mov_b32 v{r+4}, v{r}")
    for r in (S0, Q0, S1, Q1):
        a(f"v_permlane16_swap_b32 v{r}, v{r+4}")
    for r in (S0, Q0, S1, Q1):
        a(f"v_add_f32 v{r}, v{r}, v{r+4}")
    SR = TMP
    sl_ = [f"buffer_load_dwordx2 v[{SR+8*b+2*i}:{SR+8*b+2*i+1}], v{vSr}, s[{sws}:{sws+3}], s45 offen offset:{256*i+128*b} sc1"
           for b in range(2) for i in range(4)]
    a(f"""
    v_cndmask_b32 v{S0}, v{S0}, v{S1}, s[52:53]
    v_cndmask_b32 v{Q0}, v{Q0}, v{Q1}, s[52:53]
    v_mov_b32 v{S1}, v{S0}
    v_mov_b32 v{Q1}, v{Q0}
    v_permlane32_swap_b32 v{S0}, v{S1}
    v_permlane32_swap_b32 v{Q0}, v{Q1}
    v_add_f32 v{S0}, v{S0}, v{S1}
    v_add_f32 v{Q0}, v{Q0}, v{Q1}
    s_mov_b32 exec_hi, 0
    buffer_store_dwordx2 v[{S0}:{Q0}], v{vSt}, s[{sws}:{sws+3}], s46 offen sc1
    s_mov_b32 exec_hi, -1
    s_mov_b32 s47, 0
    s_waitcnt vmcnt(0)
    """)
    pf.stamp()
    a.label(f"{L}_POLL")
    a.ext(sl_)
    a(f"""
    s_waitcnt vmcnt(0)
    v_min3_f32 v{S1}, v{SR+1}, v{SR+3}, v{SR+5}
    v_min3_f32 v{S1}, v{S1}, v{SR+7}, v{SR+9}
    v_min3_f32 v{S1}, v{S1}, v{SR+11}, v{SR+13}
    v_min_f32 v{S1}, v{S1}, v{SR+15}
    v_cmp_gt_f32 vcc, 0, v{S1}
    s_cmp_eq_u64 vcc, 0
    s_cbranch_scc1 {L}_GOT
    s_add_u32 s47, s47, 1
    s_cmp_ge_u32 s47, 0x40000
    s_cbranch_scc1 {L}_GOT
    s_sleep 6
    s_branch {L}_POLL
    {L}_GOT:
    """)
    pf.stamp()
    s4 = [SR, SR + 1, SR + 8, SR + 9]
    for i in range(1, 4):
        for r in s4:
            a(f"v_add_f32 v{r}, v{r}, v{r+2*i}")
    for sw in ("16", "32"):
        for r in s4:
            a(f"v_mov_b32 v{r+2}, v{r}")
        for r in s4:
            a(f"v_permlane{sw}_swap_b32 v{r}, v{r+2}")
        for r in s4:
            a(f"v_add_f32 v{r}, v{r}, v{r+2}")
    seq = """v_mul_f32 v{m}, {c}, v{m}
    v_mul_f32 v{v}, {c}, v{v}
    v_fma_f32 v{v}, -v{m}, v{m}, v{v}
    v_max_f32 v{v}, 0, v{v}
    v_cvt_pk_bf16_f32 v{m}, v{m}, v{m}
    v_cvt_pk_bf16_f32 v{v}, v{v}, v{v}
    v_lshlrev_b32 v{m}, 16, v{m}
    v_lshlrev_b32 v{v}, 16, v{v}
    v_add_f32 v{v}, {e}, v{v}
    v_cvt_pk_bf16_f32 v{v}, v{v}, v{v}
    v_lshlrev_b32 v{v}, 16, v{v}
    v_sqrt_f32 v{v}, v{v}
    v_cvt_pk_bf16_f32 v{v}, v{v}, v{v}
    v_lshlrev_b32 v{v}, 16, v{v}
    v_rcp_f32 v{v}, v{v}
    v_mul_f32 v{m}, -v{m}, v{v}""".split("\n")
    for ln in seq:
        for b in range(2):
            a(ln.format(m=SR + 8 * b, v=SR + 8 * b + 1, c=fbits(1.0 / FH), e=fbits(1e-5)))
    for P in range(5):
        for b in range(2):
            src = [A2 + 8 * (2 * P) + 4 * b + i for i in range(4)]
            if P < 4:
                src += [A2 + 8 * (2 * P + 1) + 4 * b + i for i in range(4)]
            for r in src:
                a(f"v_fma_f32 v{r}, v{r}, v{SR+8*b+1}, v{SR+8*b}")
            pk = src[0]
            for i in range(len(src) // 2):
                a(f"v_cvt_pk_bf16_f32 v{pk+i}, v{src[2*i]}, v{src[2*i+1]}")
            if P < 4:
                a(f"buffer_store_dwordx4 v[{pk}:{pk+3}], v{vZ}, s[{sws}:{sws+3}], s{48 + P // 2} offen offset:{(P % 2) * 2048 + b * 256} sc1")
            else:
                a(f"buffer_store_dwordx2 v[{pk}:{pk+1}], v{vZ9}, s[{sws}:{sws+3}], s50 offen offset:{b * 256} sc1")
    pf.stamp()
```

```python
import sys
from common import *
from mk0 import build_k0

HEADER = open("recurrent_scan__mha_block__mixer_gmlp__prompt.s.ref").read().split("; Override launch")[0]

def build(kernels, path):
    out = HEADER
    for k in kernels:
        out += f"; @launch kernel={k.name} grid=({k.grid},1,1) block=({k.block},1,1) lds={k.lds}\n"
    out += '.amdgcn_target "amdgcn-amd-amdhsa--gfx950"\n.text\n'
    seen = []
    for k in kernels:
        if k.name in seen:
            continue
        seen.append(k.name)
        out += k.text()
    out += 'ALL_CODE_END:\n    s_endpgm\n.section .rodata,"a"\n'
    seen = []
    for k in kernels:
        if k.name in seen:
            continue
        seen.append(k.name)
        out += k.desc()
    open(path, "w").write(out)
    for k in kernels:
        print(k.name, "instrs", len(k.a.lines), "nops inserted", k.a.n_nops)

if __name__ == "__main__":
    import os
    from mk2 import build_k2
    pa = int(os.environ.get("PA", "3")); pg = int(os.environ.get("PG", "2"))
    ks = [build_k0(), build_k2(pa, pg)]
    def empty(name):
        k = Kernel(name, 256, 64, 0, 8)
        k.a("s_endpgm")
        return k
    for i in range(int(os.environ.get("EPRE", "0"))):
        ks.insert(0, empty(f"e{i}_kernel"))
    for i in range(int(os.environ.get("EPOST", "0"))):
        ks.append(empty(f"f{i}_kernel"))
    if os.environ.get("TWICE"):
        ks = ks + ks[:int(os.environ["TWICE"])] + ks[int(os.environ["TWICE"]):] * 0
    if os.environ.get("SEQ"):
        ks = [ks[int(c)] for c in os.environ["SEQ"]]
    if os.environ.get("DUP"):
        i = int(os.environ["DUP"]); ks.insert(i, ks[i])
    build(ks, sys.argv[1] if len(sys.argv) > 1 else "recurrent_scan__mha_block__mixer_gmlp__prompt.s")
```

```python
from asmlib import Asm

S, D, H, DH, FH = 2048, 576, 32, 18, 2304
KA_X, KA_WQKV, KA_WO, KA_BX, KA_WIN, KA_WSP, KA_BSP, KA_WOUT, KA_OUT, KA_DBG, KA_WS = [8 * i for i in range(11)]
SZ_X = S * D * 2
SZ_WQKV = D * 3 * D * 2
SZ_WO = D * D * 2
SZ_WIN = D * 2 * FH * 2
SZ_WSP = S * S * 2
SZ_BSP = S * 2
SZ_WOUT = FH * D * 2
SZ_WS = 268435456
XF = 0x0000000
QF = 0x0240000
OF = 0x0480000
KV = 0x06C0000
KMX = 0x0BC0000
FLG = 0x0C04000
STT = 0x0BC4000
WF = 0x0C10000
Z2N = 0x1380000
UF = 0x1D00000
GF = 0x2800000
WS_USED = 0x2B00000
import os
ZST = 131072 + int(os.environ.get('ZPAD', '0'))
WZ = WF
VARB = os.environ.get('VAR', 'A') == 'B'
WZG = 18 * (18432 if VARB else 9216)
WQ = WF + 16 * WZG
WQG = 36 * (4096 if VARB else 8192)
FL_U, FL_O, FL_KV, FL_Z, FL_S = FLG, FLG + 2048, FLG + 4096, FLG + 6144, FLG + 8192
WFG = 468 * 1024
WFB = 180 * 1024
WFC = 324 * 1024


def swap23(m):
    return (m & ~12) | ((m & 4) << 1) | ((m & 8) >> 1)


def srd(a, dst, ptr, nbytes):
    a(f"""
    s_mov_b32 s{dst}, s{ptr}
    s_and_b32 s{dst+1}, s{ptr+1}, 0xffff
    s_mov_b32 s{dst+2}, {nbytes}
    s_mov_b32 s{dst+3}, 0x00020000
    """)


class Kernel:
    def __init__(self, name, grid, block, lds, nvgpr, nagpr=0, nsgpr=96):
        self.name, self.grid, self.block, self.lds = name, grid, block, lds
        self.nvgpr, self.nagpr, self.nsgpr = nvgpr, nagpr, nsgpr
        self.a = Asm()

    def text(self):
        body = self.a.finish()
        return (f".globl {self.name}\n.p2align 8\n.type {self.name},@function\n{self.name}:\n"
                + "\n".join(body) + "\n")

    def desc(self):
        acc = (self.nvgpr + 3) // 4 * 4
        nfv = acc + self.nagpr if self.nagpr else self.nvgpr
        return f""".p2align 6
.amdhsa_kernel {self.name}
  .amdhsa_next_free_vgpr {nfv}
  .amdhsa_next_free_sgpr {self.nsgpr}
  .amdhsa_accum_offset {acc}
  .amdhsa_group_segment_fixed_size 0
  .amdhsa_kernarg_size 88
  .amdhsa_user_sgpr_count 2
  .amdhsa_user_sgpr_kernarg_segment_ptr 1
  .amdhsa_system_sgpr_workgroup_id_x 1
.end_amdhsa_kernel
"""


def reduce16(a, v, t, op="v_add_f32"):
    for mod in ("quad_perm:[1,0,3,2]", "quad_perm:[2,3,0,1]", "row_half_mirror", "row_mirror"):
        a(f"{op}_dpp v{v}, v{v}, v{v} {mod} row_mask:0xf bank_mask:0xf")


def reduce_x16(a, v, t, op="v_add_f32"):
    a(f"v_mov_b32 v{t}, v{v}")
    a(f"v_permlane16_swap_b32 v{v}, v{t}")
    a(f"{op} v{v}, v{v}, v{t}")


def reduce_x32(a, v, t, op="v_add_f32"):
    a(f"v_mov_b32 v{t}, v{v}")
    a(f"v_permlane32_swap_b32 v{v}, v{t}")
    a(f"{op} v{v}, v{v}, v{t}")


def round_bf16(a, v):
    a(f"v_cvt_pk_bf16_f32 v{v}, v{v}, v{v}")
    a(f"v_lshlrev_b32 v{v}, 16, v{v}")


def fbits(x):
    import struct
    return "0x%08x" % struct.unpack("<I", struct.pack("<f", x))[0]


class Waits:
    def __init__(self, a):
        self.a = a
        self.vm = []
        self.lg = []

    def ivm(self, text, tag=None):
        self.a(text); self.vm.append(tag)

    def ilg(self, text, tag=None):
        self.a(text); self.lg.append(tag)

    def _n(self, lst, tag):
        idx = [i for i, t in enumerate(lst) if t == tag]
        if not idx:
            return None
        return len(lst) - 1 - idx[-1]

    def wvm(self, tag):
        n = self._n(self.vm, tag)
        if n is None:
            return
        n = min(n, 63)
        self.a(f"s_waitcnt vmcnt({n})")
        self.vm = self.vm[len(self.vm) - n:] if n else []

    def wlg(self, tag):
        n = self._n(self.lg, tag)
        if n is None:
            return
        n = min(n, 15)
        self.a(f"s_waitcnt lgkmcnt({n})")
        self.lg = self.lg[len(self.lg) - n:] if n else []


import math
GC1 = -2.0 * math.log2(math.e) * math.sqrt(2.0 / math.pi)
GC2 = GC1 * 0.044715
QSCALE = math.log2(math.e) / math.sqrt(18.0)


def gelu_ops(x, t, sc1, sc2v):
    return [f"v_mul_f32 v{t}, v{x}, v{x}",
            f"v_fma_f32 v{t}, v{t}, v{sc2v}, s{sc1}",
            f"v_mul_f32 v{t}, v{t}, v{x}",
            f"v_exp_f32 v{t}, v{t}",
            f"v_add_f32 v{t}, 1.0, v{t}",
            f"v_rcp_f32 v{t}, v{t}",
            f"v_mul_f32 v{x}, v{x}, v{t}"]


def gelu_group(xs, temps, sc1, sc2v):
    seqs = [gelu_ops(x, t, sc1, sc2v) for x, t in zip(xs, temps)]
    out = []
    for step in range(7):
        for s in seqs:
            out.append(s[step])
    return out


import os
PROF = os.environ.get("PROF", "")
PROFOFF = 0x2600000


class Prof:
    def __init__(self, a, on, kidx=0, base=64):
        self.a, self.on, self.n, self.base, self.kidx = a, on, 2, base, kidx
        if on:
            a(f"s_memrealtime s[{base}:{base+1}]")

    def stamp(self):
        if not self.on:
            return
        self.a(f"s_memtime s[{self.base+2*self.n}:{self.base+2*self.n+1}]")
        self.n += 1

    def dump(self, sws, waves, swg="s2", vt=1):
        if not self.on:
            return
        a = self.a
        a("s_mov_b64 exec, -1")
        a("s_waitcnt vmcnt(0)")
        self.stamp()
        a(f"s_memrealtime s[{self.base+2}:{self.base+3}]")
        a(f"v_lshrrev_b32 v{vt}, 6, v0")
        a(f"v_lshlrev_b32 v{vt}, 7, v{vt}")
        a("s_waitcnt lgkmcnt(0)")
        a("s_mov_b64 exec, 1")
        a(f"s_mul_i32 s{self.base-2}, {swg}, {waves*128}")
        a(f"s_add_u32 s{self.base-2}, s{self.base-2}, {PROFOFF + self.kidx*0x80000}")
        for i in range(self.n):
            a(f"v_mov_b32 v{vt+1}, s{self.base+2*i}")
            a(f"buffer_store_dword v{vt+1}, v{vt}, s[{sws}:{sws+3}], s{self.base-2} offen offset:{4*i}")
            a("s_nop 1")
```

```python
from common import *
from k3 import poll

STG = 17408


def gemm2_body(a, pf, sid, sws, swsp, sbsp, L="G2", loop_prio=0, mega=False, z1reg=None):
    ACC = 16
    FA = [88, 124]
    FB = [160, 168]
    Z1 = 176
    TMP = 212
    vL16 = 2
    rB = 3
    rA = [4, 5, 6, 7]
    rX = [8, 9]
    dT, dT2 = 10, 11
    vU, vU9 = 12, 13
    WIN = int(os.environ.get('WIN', '16')); RM = int(os.environ.get('RM', '0'))
    a(f"""
    v_and_b32 v1, 63, v0
    v_lshrrev_b32 v{TMP}, 6, v0
    s_and_b32 s28, {sid}, 7
    s_lshr_b32 s29, {sid}, 3
    s_and_b32 s30, s28, 1
    s_lshl_b32 s30, s30, 3
    s_and_b32 s31, s29, 7
    s_add_u32 s30, s30, s31           ; tb
    s_lshr_b32 s31, s28, 1
    s_lshl_b32 s31, s31, 2
    s_lshr_b32 s32, s29, 3
    s_add_u32 s31, s31, s32           ; fb
    v_readfirstlane_b32 s32, v{TMP}   ; wave
    v_lshlrev_b32 v{vL16}, 4, v1
    v_lshrrev_b32 v{TMP+1}, 2, v1
    v_lshrrev_b32 v{TMP+3}, 4, v1                 ; q = r>>2
    v_lshlrev_b32 v{TMP+4}, 1, v{TMP+3}
    v_and_b32 v{TMP+4}, 3, v{TMP+4}
    v_lshrrev_b32 v{TMP+3}, 1, v{TMP+3}
    v_mul_u32_u24 v{TMP+3}, 3, v{TMP+3}
    v_xor_b32 v{TMP+3}, v{TMP+3}, v{TMP+4}
    v_and_b32 v{TMP+2}, 3, v1
    v_xor_b32 v{TMP+2}, v{TMP+2}, v{TMP+3}
    s_lshl_b32 s38, s32, 11
    s_add_u32 s39, s38, 8192
    s_lshl_b32 s40, s32, 8
    s_add_u32 s41, s40, 8192
    s_add_u32 s40, s40, 16384
    s_lshl_b32 s44, s30, 7
    s_lshl_b32 s45, s32, 5
    s_add_u32 s44, s44, s45
    v_add_u32 v{TMP+1}, s44, v{TMP+1}
    v_lshlrev_b32 v{dT}, 12, v{TMP+1}
    v_lshl_add_u32 v{dT}, v{TMP+2}, 4, v{dT}
    v_add_u32 v{dT2}, {16*4096 - 1024}, v{dT}
    s_mul_i32 s43, s31, {64*9216}
    s_add_u32 s43, s43, {Z2N}
    s_add_u32 s46, s43, s41
    s_add_u32 s43, s43, s38
    s_mov_b32 s42, 0
    """)

    ZS = " sc1" if mega else ""
    WN = " nt" if os.environ.get("WSPNT", "0") == "1" else ""

    def dma_sp(sl):
        o = sl * STG
        return [f"s_add_u32 m0, s39, {o}\nbuffer_load_dwordx4 v{vL16}, s[{sws}:{sws+3}], s43 offen{ZS} lds",
                f"buffer_load_dwordx4 v{vL16}, s[{sws}:{sws+3}], s43 offen offset:1024{ZS} lds\ns_add_u32 s43, s43, 9216",
                f"s_add_u32 m0, s40, {o}\ns_mov_b64 exec, 0xffff\nbuffer_load_dwordx4 v{vL16}, s[{sws}:{sws+3}], s46 offen{ZS} lds\n"
                f"s_mov_b64 exec, -1\ns_add_u32 s46, s46, 9216",
                f"s_add_u32 m0, s38, {o}\nbuffer_load_dwordx4 v{dT}, s[{swsp}:{swsp+3}], s42 offen{WN} lds",
                f"buffer_load_dwordx4 v{dT2}, s[{swsp}:{swsp+3}], s42 offen offset:1024{WN} lds\ns_add_u32 s42, s42, 64"]

    GD = int(os.environ.get("GD", "1"))
    for st in range(0, 4 - 3 * GD if GD < 2 else 1):
        if GD != 1:
            a.ext(dma_sp(st))
    a(f"""
    v_and_b32 v{TMP+1}, 15, v1
    v_bfe_u32 v{TMP+3}, v1, 2, 2
    v_lshlrev_b32 v{TMP+4}, 1, v{TMP+3}
    v_and_b32 v{TMP+4}, 3, v{TMP+4}
    v_lshrrev_b32 v{TMP+3}, 1, v{TMP+3}
    v_mul_u32_u24 v{TMP+3}, 3, v{TMP+3}
    v_xor_b32 v{TMP+3}, v{TMP+3}, v{TMP+4}
    v_lshrrev_b32 v{TMP+2}, 4, v1                 ; g
    v_xor_b32 v{TMP+3}, v{TMP+3}, v{TMP+2}
    v_lshl_add_u32 v{TMP+3}, v{TMP+1}, 2, v{TMP+3}
    v_lshlrev_b32 v{rB}, 4, v{TMP+3}
    v_add_u32 v{rB}, s38, v{rB}
    v_lshlrev_b32 v{vU}, 9, v{TMP+2}
    v_lshl_add_u32 v{vU}, v{TMP+1}, 4, v{vU}
    v_lshrrev_b32 v{TMP+3}, 1, v{TMP+2}
    v_lshlrev_b32 v{vU9}, 9, v{TMP+3}
    v_lshl_add_u32 v{vU9}, v{TMP+1}, 4, v{vU9}
    v_and_b32 v{TMP+3}, 1, v{TMP+2}
    v_lshl_add_u32 v{vU9}, v{TMP+3}, 3, v{vU9}
    v_bfe_u32 v{TMP+3}, v1, 2, 2
    v_lshl_add_u32 v{TMP+3}, v{TMP+2}, 3, v{TMP+3}   ; s (i = 0)
    v_and_b32 v{TMP+4}, 1, v1
    v_lshlrev_b32 v{TMP+5}, 2, v{TMP+4}
    v_xor_b32 v{TMP+5}, v{TMP+5}, v{TMP+3}
    v_lshlrev_b32 v{TMP+5}, 4, v{TMP+5}
    v_and_b32 v{TMP+6}, 3, v1
    v_lshl_add_u32 v{TMP+5}, v{TMP+6}, 9, v{TMP+5}
    v_bfe_u32 v{TMP+6}, v1, 1, 1
    v_lshl_add_u32 v{TMP+5}, v{TMP+6}, 3, v{TMP+5}
    v_add_u32 v{rA[0]}, 8192, v{TMP+5}
    v_xor_b32 v{rA[1]}, 64, v{rA[0]}
    v_xor_b32 v{rA[2]}, 8, v{rA[0]}
    v_xor_b32 v{rA[3]}, 8, v{rA[1]}
    v_lshlrev_b32 v{TMP+5}, 2, v{TMP+6}
    v_xor_b32 v{TMP+5}, v{TMP+5}, v{TMP+3}
    v_lshlrev_b32 v{TMP+5}, 4, v{TMP+5}
    v_lshl_add_u32 v{TMP+5}, v{TMP+6}, 9, v{TMP+5}
    v_lshl_add_u32 v{TMP+5}, v{TMP+4}, 3, v{TMP+5}
    v_add_u32 v{rX[0]}, 16384, v{TMP+5}
    v_xor_b32 v{rX[1]}, 64, v{rX[0]}
    s_lshl_b32 s48, s30, 2
    s_add_u32 s48, s48, s32
    s_mul_i32 s48, s48, 144
    s_mul_i32 s49, s31, 9
    s_add_u32 s48, s48, s49
    s_lshl_b32 s48, s48, 10
    s_add_u32 s48, s48, {UF}
    s_add_u32 s49, s48, 4096
    s_add_u32 s50, s48, 8192
    s_lshl_b32 s44, s44, 1
    v_lshlrev_b32 v{TMP+21}, 1, v{TMP+1}
    """)

    def reads(sl, k):
        o = sl * STG
        fa, fb = FA[k], FB[k]
        out = [f"ds_read_b128 v[{fb}:{fb+3}], v{rB} offset:{o}", f"ds_read_b128 v[{fb+4}:{fb+7}], v{rB} offset:{o+1024}"]
        for tau in range(9):
            for i in range(2):
                reg = rA[2 * (tau % 2) + i] if tau < 8 else rX[i]
                off = o + (tau // 2) * 2048 if tau < 8 else o
                out.append(f"ds_read_b64_tr_b16 v[{fa+4*tau+2*i}:{fa+4*tau+2*i+1}], v{reg} offset:{off}")
        return out

    def mfmas(k):
        fa, fb = FA[k], FB[k]
        out = []
        for tau in range(9):
            for b in range(2):
                d = ACC + 4 * (2 * tau + b)
                out.append(f"v_mfma_f32_16x16x32_bf16 v[{d}:{d+3}], v[{fa+4*tau}:{fa+4*tau+3}], v[{fb+4*b}:{fb+4*b+3}], v[{d}:{d+3}]")
        return out

    def uop(op, P, b, sc=""):
        if P < 4:
            z = Z1 + 4 * (2 * P + b)
            return f"buffer_{op}_dwordx4 v[{z}:{z+3}], v{vU}, s[{sws}:{sws+3}], s{48 + P // 2} offen offset:{(P % 2) * 2048 + b * 256}{sc}"
        z = Z1 + 32 + 2 * b
        return f"buffer_{op}_dwordx2 v[{z}:{z+1}], v{vU9}, s[{sws}:{sws+3}], s50 offen offset:{b * 256}{sc}"

    for i in range(72):
        a(f"v_mov_b32 v{ACC+i}, 0")
    if mega:
        from mkz import flag_store
        a(f"""
        s_lshl_b32 s51, s31, 7
        s_add_u32 s51, s51, {FL_Z}
        s_lshl_b32 s52, s30, 2
        s_add_u32 s52, s52, s51
        s_lshl_b32 s53, s30, 7
        s_lshl_b32 s54, s31, 2
        s_add_u32 s53, s53, s54
        s_add_u32 s53, s53, {FL_U + 64}
        v_mov_b32 v{TMP+10}, 0
        """)
        if z1reg:
            z1reg[0]()
        a("s_waitcnt vmcnt(0)\ns_barrier")
        flag_store(a, f"{L}_NOSIG", sws, 52, TMP + 8, TMP + 9)
        pf.stamp()
        for st in range(4):
            a.ext(dma_sp(st)[3:])
        if z1reg:
            z1reg[1]()
        a(f"""
        s_cmp_lg_u32 s32, 0
        s_cbranch_scc1 {L}Z_OK
        v_lshlrev_b32 v{TMP+8}, 2, v{TMP+1}
        """)
        poll(a, f"{L}Z", TMP + 9, TMP + 8, sws, 51, sleep=6)
        a("s_barrier")
        for st in range(4):
            a.ext(dma_sp(st)[:3])
        pf.stamp()
        a(f"s_waitcnt vmcnt(3)\ns_barrier")
    else:
        for st in range(4):
            if GD == 1 or (GD == 2 and st >= 1):
                a.ext(dma_sp(st))
        pf.stamp()
        a(f"s_waitcnt vmcnt(15)\ns_barrier")
    a.ext(reads(0, 0))
    pf.stamp()

    def body(sl, vm, dma, rdnext, extra=None):
        ms = mfmas(sl % 2)
        rd = reads((sl + 1) % 4, (sl + 1) % 2) if rdnext else []
        dm = dma_sp(sl) if dma else []
        extra = list(extra or [])
        a(f"s_waitcnt vmcnt({vm}) lgkmcnt(0)\ns_barrier")
        GS_ = int(os.environ.get("GSCHED", "4"))
        if GS_ == 0:
            for q in range(18):
                a(ms[q])
                if q < 10 and rd:
                    a.ext(rd[2 * q:2 * q + 2])
                if q >= 8 and q % 2 == 0 and dm:
                    a(dm.pop(0))
                if extra:
                    a(extra.pop(0))
        elif GS_ == 1:
            a.ext(dm); a.ext(extra); a.ext(rd); a.ext(ms)
        elif GS_ == 2:
            a.ext(dm); a.ext(extra)
            for q in range(18):
                a(ms[q])
                if rd:
                    a(rd.pop(0))
            a.ext(rd)
        elif GS_ == 4:
            a.ext(rd[:4]); rd = rd[4:]
            for q in range(18):
                a(ms[q])
                if q % 4 == 1 and dm:
                    a(dm.pop(0))
                elif rd:
                    a(rd.pop(0))
                    if q < 4 and rd:
                        a(rd.pop(0))
            a.ext(rd); a.ext(dm); a.ext(extra)
        elif GS_ == 3:
            a.ext(rd[:8]); rd = rd[8:]
            for q in range(18):
                a(ms[q])
                if rd:
                    a(rd.pop(0))
            a.ext(dm); a.ext(extra)

    zl = ([] if z1reg else [uop("load", P, b, ZS) for P in range(5) for b in range(2)]) + \
         [f"buffer_load_ushort v{TMP+18}, v{TMP+21}, s[{sbsp}:{sbsp+3}], s44 offen",
          f"buffer_load_ushort v{TMP+19}, v{TMP+21}, s[{sbsp}:{sbsp+3}], s44 offen offset:32"]
    a(f"s_mov_b32 s47, {14 if mega and not z1reg else 15}\ns_setprio {loop_prio}")
    a.label(f"{L}_LOOP")
    for sl in range(4):
        body(sl, 10, True, True)
    a(f"""
    s_sub_u32 s47, s47, 1
    s_cmp_lg_u32 s47, 0
    s_cbranch_scc1 {L}_LOOP
    """)
    if mega and not z1reg:
        body(0, 10, True, True, [f"buffer_load_dword v{TMP+11}, v{TMP+10}, s[{sws}:{sws+3}], s53 offen sc1"])
        body(1, 10, True, True)
        body(2, 10, True, True)
        body(3, 10, True, True)
        a(f"""
        v_readfirstlane_b32 s54, v{TMP+11}
        s_cmp_lg_u32 s54, 0
        s_cbranch_scc1 {L}Z1_OK
        """)
        poll(a, f"{L}Z1", TMP + 11, TMP + 10, sws, 53, sleep=6)
    for sl in range(4):
        body(sl, max(0, 10 - 5 * sl) + (len(zl) if sl > 0 else 0), False, sl < 3, zl if sl == 0 else None)
    pf.stamp()
    a(f"""
    s_setprio 3
    s_waitcnt vmcnt(0)
    v_lshlrev_b32 v{TMP+18}, 16, v{TMP+18}
    v_lshlrev_b32 v{TMP+19}, 16, v{TMP+19}
    """)
    for P in range(5):
        for b in range(2):
            if P < 4:
                src = [ACC + 4 * (2 * (2 * P) + b) + i for i in range(4)] + [ACC + 4 * (2 * (2 * P + 1) + b) + i for i in range(4)]
                z = Z1 + 4 * (2 * P + b)
            else:
                src = [ACC + 4 * (16 + b) + i for i in range(4)]
                z = Z1 + 32 + 2 * b
            n = len(src)
            for r in src:
                a(f"v_add_f32 v{r}, v{r}, v{TMP+18+b}")
            for i in range(n // 2):
                a(f"v_lshlrev_b32 v{TMP+2+2*i}, 16, v{z+i}")
                a(f"v_and_b32 v{TMP+3+2*i}, 0xffff0000, v{z+i}")
            for i, r in enumerate(src):
                a(f"v_mul_f32 v{r}, v{r}, v{TMP+2+i}")
            for i in range(n // 2):
                a(f"v_cvt_pk_bf16_f32 v{z+i}, v{src[2*i]}, v{src[2*i+1]}")
            a(uop("store", P, b, " sc1"))
```

```python
from common import *

WSL = 4096
PART = 80 * 256
NT3 = 234


def tile_setup(a, sid, Lend, TMP, ring_bytes):
    a(f"""
    ; L = (id&7)*30 + (id>>3) ; rb = L/9 ; cb = L%9
    s_and_b32 s36, {sid}, 7
    s_lshr_b32 s37, {sid}, 3
    s_cmp_ge_u32 s37, 30
    s_cbranch_scc1 {Lend}
    s_mul_i32 s36, s36, 30
    s_add_u32 s36, s36, s37
    s_cmp_ge_u32 s36, {NT3}
    s_cbranch_scc1 {Lend}
    s_mul_i32 s38, s36, 7282
    s_lshr_b32 s38, s38, 16           ; rb
    s_mul_i32 s39, s38, 9
    s_sub_u32 s39, s36, s39           ; cb
    v_and_b32 v1, 63, v0
    v_lshrrev_b32 v{TMP}, 6, v0
    s_lshl_b32 s41, s39, 7
    v_lshrrev_b32 v{TMP+1}, 3, v1
    v_readfirstlane_b32 s40, v{TMP}   ; wave
    v_and_b32 v{TMP+2}, 7, v1
    v_and_b32 v{TMP+3}, 2, v{TMP+1}
    v_xor_b32 v{TMP+2}, v{TMP+2}, v{TMP+3}
    v_lshlrev_b32 v{TMP+2}, 4, v{TMP+2}
    v_add_u32 v{TMP+2}, s41, v{TMP+2}
    v_mul_u32_u24 v{TMP+3}, 1152, v{TMP+1}
    v_add_u32 v12, v{TMP+3}, v{TMP+2}             ; i = 0
    v_xor_b32 v13, 64, v12
    v_add_u32 v13, {8*1152 - 1024}, v13           ; i = 1 (imm 1024)
    v_add_u32 v14, {16*1152 - 2048}, v12          ; i = 2
    v_add_u32 v15, {16*1152 - 2048}, v13          ; i = 3
    v_lshrrev_b32 v{TMP+3}, 1, v{TMP+1}
    v_mul_u32_u24 v{TMP+3}, 18, v{TMP+3}
    v_and_b32 v{TMP+4}, 1, v{TMP+1}
    v_add3_u32 v{TMP+3}, v{TMP+3}, v{TMP+4}, 16
    v_mul_u32_u24 v{TMP+3}, 1152, v{TMP+3}
    v_add_u32 v18, v{TMP+3}, v{TMP+2}
    v_xor_b32 v19, 64, v18
    v_add_u32 v19, {72*1152 - 1024}, v19
    v_and_b32 v{TMP+2}, 7, v1
    v_mul_u32_u24 v7, 1152, v{TMP+1}
    v_lshl_add_u32 v7, v{TMP+2}, 4, v7
    v_lshrrev_b32 v{TMP+1}, 4, v1
    v_and_b32 v{TMP+2}, 15, v1
    v_lshlrev_b32 v6, 9, v{TMP+1}
    v_lshl_add_u32 v6, v{TMP+2}, 4, v6
    v_bfe_u32 v{TMP+2}, v1, 2, 2
    v_lshl_add_u32 v{TMP+3}, v{TMP+1}, 3, v{TMP+2}
    v_lshlrev_b32 v{TMP+3}, 7, v{TMP+3}
    v_and_b32 v{TMP+4}, 3, v1
    v_lshl_add_u32 v{TMP+3}, v{TMP+4}, 3, v{TMP+3}
    v_bfe_u32 v{TMP+4}, v1, 3, 2
    v_lshl_add_u32 v{TMP+3}, v{TMP+4}, 5, v{TMP+3}
    s_mul_i32 s42, s40, {ring_bytes}
    v_add_u32 v8, s42, v{TMP+3}
    v_xor_b32 v9, 32, v8
    v_xor_b32 v10, 64, v8
    v_xor_b32 v11, 96, v8
    s_mul_i32 s46, s38, 5
    s_mul_i32 s59, s38, 80
    s_mul_i32 s58, s40, 20
    s_add_u32 s59, s59, s58
    s_mul_i32 s59, s59, 1152
    s_add_u32 s59, s59, s41
    s_add_u32 s60, s59, {8*1152}
    s_add_u32 s61, s59, {16*1152}
    """)


def tok_bases(a, tile_bytes):
    for i in range(5):
        a(f"""
        s_add_u32 s47, s46, {i}
        s_and_b32 s58, s47, 1
        s_lshl_b32 s58, s58, 8
        s_lshr_b32 s47, s47, 1
        s_mul_i32 s{48+i}, s47, {tile_bytes}
        s_add_u32 s{48+i}, s{48+i}, s58
        """)


def reduce_write(a, ACC, TMP, mid=None, addr=True):
    if addr:
        a(f"""
        v_and_b32 v{TMP+1}, 15, v1
        v_lshlrev_b32 v{TMP+1}, 8, v{TMP+1}
        v_lshrrev_b32 v{TMP+2}, 4, v1
        v_and_b32 v{TMP+3}, 7, v1
        v_xor_b32 v{TMP+2}, v{TMP+2}, v{TMP+3}
        v_lshl_add_u32 v{TMP+1}, v{TMP+2}, 4, v{TMP+1}
        s_mul_i32 s58, s40, {PART}
        v_add_u32 v12, s58, v{TMP+1}
        v_xor_b32 v13, 64, v12
        """)
    for nt in range(4):
        for i in range(5):
            d = ACC + 20 * nt + 4 * i
            a(f"ds_write_b128 v{12 + nt % 2}, v[{d}:{d+3}] offset:{i*4096 + (nt//2)*128}")
    if addr:
        a(f"""
        v_lshrrev_b32 v{TMP+1}, 3, v1
        s_mul_i32 s58, s40, 20
        v_add_u32 v{TMP+1}, s58, v{TMP+1}
        v_and_b32 v{TMP+2}, 7, v{TMP+1}
        v_and_b32 v{TMP+3}, 7, v1
        v_lshlrev_b32 v{TMP+3}, 1, v{TMP+3}
        v_xor_b32 v{TMP+3}, v{TMP+3}, v{TMP+2}
        v_lshlrev_b32 v{TMP+1}, 8, v{TMP+1}
        v_lshl_add_u32 v16, v{TMP+3}, 4, v{TMP+1}
        v_xor_b32 v17, 16, v16
        v_add_u32 v18, 4096, v16
        v_add_u32 v19, 4096, v17
        """)
    if mid:
        mid()
    a("s_waitcnt lgkmcnt(0)\ns_barrier")


def rreg(R, rd, p):
    return R[4 * rd + p]


def reduce_read(a, R):
    for rd in range(3):
        if rd == 2:
            a("s_mov_b32 exec_hi, 0")
        for p in range(4):
            for hf in range(2):
                d = rreg(R, rd, p) + 4 * hf
                a(f"ds_read_b128 v[{d}:{d+3}], v{16 + hf + (2 if rd == 2 else 0)} offset:{p*PART + (rd % 2)*2048}")
    a("s_mov_b32 exec_hi, -1")


def reduce_sum(a, R, rd, wait=True):
    b0, b1, b2, b3 = [rreg(R, rd, p) for p in range(4)]
    if wait:
        a(f"s_waitcnt lgkmcnt({min(15, 8*(2-rd))})")
    for e in range(8):
        a(f"v_add_f32 v{b0+e}, v{b0+e}, v{b1+e}")
        a(f"v_add_f32 v{b2+e}, v{b2+e}, v{b3+e}")
    for e in range(8):
        a(f"v_add_f32 v{b0+e}, v{b0+e}, v{b2+e}")


SFL = FL_S


def poll(a, L, vdst, vaddr, sws, soff, first=True, sleep=6):
    if sleep == 6:
        sleep = int(os.environ.get("PSL", "6"))
    a("s_mov_b32 s47, 0")
    if first:
        a(f"buffer_load_dword v{vdst}, v{vaddr}, s[{sws}:{sws+3}], s{soff} offen sc1")
    a(f"""
    {L}_P:
    s_waitcnt vmcnt(0)
    v_cmp_eq_u32 vcc, 0, v{vdst}
    s_cmp_eq_u64 vcc, 0
    s_cbranch_scc1 {L}_OK
    s_add_u32 s47, s47, 1
    s_cmp_ge_u32 s47, 0x40000
    s_cbranch_scc1 {L}_OK
    s_sleep {sleep}
    buffer_load_dword v{vdst}, v{vaddr}, s[{sws}:{sws+3}], s{soff} offen sc1
    s_branch {L}_P
    {L}_OK:
    """)


def outproj_body(a, pf, sid, sws, swout, sx, sout, Lend, L="OP", DEPTH=int(os.environ.get("OPD", "4")), prio=0, swo=None):
    RING = 5
    if swo is not None:
        DEPTH = 3
    TRING = DEPTH + 1
    w = Waits(a)
    ACC = 24
    TOK = ACC + 80
    WFR = TOK + 100
    SR_ = WFR + 16
    XR = SR_ + 12
    TMP = XR + 12
    assert TMP + 8 <= 256 and TRING <= 5
    tile_setup(a, sid, Lend, TMP, RING * WSL)
    tok_bases(a, 144 * 1024)
    a(f"""
    s_mul_i32 s43, s40, {576*1152}
    s_mul_i32 s58, s40, {36*1024}
    s_add_u32 s58, s58, {UF}
    v_add_u32 v20, s58, v6
    """)
    NS = 18

    def issue_w(n):
        sl = n % RING
        ops = []
        for i in range(4):
            def f(i=i):
                if i == 0:
                    a(f"s_add_u32 m0, s42, {sl*WSL}")
                w.ivm(f"buffer_load_dwordx4 v{12+i}, s[{swout}:{swout+3}], s43 offen offset:{1024*i} lds", ("W", n))
                if i == 3:
                    a(f"s_add_u32 s43, s43, {32*1152}")
            ops.append(f)
        return ops

    def issue_t(n):
        tk = TOK + 20 * (n % TRING)
        ops = []
        for i in range(5):
            def f(i=i):
                w.ivm(f"buffer_load_dwordx4 v[{tk+4*i}:{tk+4*i+3}], v20, s[{sws}:{sws+3}], s{48 + i} offen offset:{(n%2)*2048} sc1", ("T", n))
                if i == 4 and n % 2 == 1:
                    a(f"v_add_u32 v20, 4096, v20")
            ops.append(f)
        return ops

    def wreads(n, nt):
        o = (n % RING) * WSL
        w.ilg(f"ds_read_b64_tr_b16 v[{WFR+4*nt}:{WFR+4*nt+1}], v{8+nt} offset:{o}", (n, nt))
        w.ilg(f"ds_read_b64_tr_b16 v[{WFR+4*nt+2}:{WFR+4*nt+3}], v{8+nt} offset:{o + 512}", (n, nt))

    for n in range(RING - 1):
        for f in issue_w(n):
            f()
    for i in range(3):
        if i == 2:
            a("s_mov_b32 exec_hi, 0")
        a(f"buffer_load_dwordx4 v[{XR+4*i}:{XR+4*i+3}], v7, s[{sx}:{sx+3}], s{59+i} offen")
    a("s_mov_b32 exec_hi, -1")
    a(f"""
    s_lshl_b32 s56, s36, 7
    s_add_u32 s56, s56, {SFL}
    v_mov_b32 v23, 0
    s_add_u32 s53, s59, {GF}
    s_add_u32 s54, s60, {GF}
    s_add_u32 s55, s61, {GF}
    s_cmp_lg_u32 s40, 0
    s_cbranch_scc1 {L}U_OK
    s_mul_i32 s44, s38, 80
    s_add_u32 s45, s44, 79
    s_min_u32 s45, s45, 2047
    s_lshr_b32 s44, s44, 7
    s_lshr_b32 s45, s45, 7
    s_sub_u32 s45, s45, s44
    s_lshl_b32 s45, s45, 7
    s_lshl_b32 s44, s44, 7
    s_add_u32 s44, s44, {FLG}
    v_and_b32 v21, 15, v1
    v_lshlrev_b32 v21, 2, v21
    v_bfe_u32 v22, v1, 4, 1
    v_mul_lo_u32 v22, v22, s45
    v_add_u32 v21, v21, v22
    """)
    poll(a, f"{L}U", 22, 21, sws, 44, sleep=6)
    a("s_waitcnt vmcnt(0)\ns_barrier")
    if swo is not None:
        a(f"""
        s_mul_i32 s44, s38, 80
        s_add_u32 s45, s44, 79
        s_min_u32 s45, s45, 2047
        s_lshr_b32 s56, s44, 8
        s_lshr_b32 s57, s45, 8
        s_sub_u32 s57, s57, s56
        s_lshl_b32 s57, s57, 7
        s_lshl_b32 s56, s56, 7
        s_add_u32 s56, s56, {FL_O}
        v_and_b32 v23, 31, v1
        v_lshlrev_b32 v23, 2, v23
        v_lshrrev_b32 v22, 5, v1
        v_mul_lo_u32 v22, v22, s57
        v_add_u32 v23, v23, v22
        """)
        for i in range(20):
            a(f"v_mov_b32 v{TOK+80+i}, 0")
    a(f"s_setprio {prio}")
    w.vm = []
    pf.stamp()
    for n in range(DEPTH):
        for f in issue_t(n):
            f()
    for nt in range(4):
        wreads(0, nt)
    for n in range(NS):
        if n + 1 < NS:
            w.wvm(("W", n + 1))
        w.wvm(("T", n))
        pend = (issue_t(n + DEPTH) if n + DEPTH < NS else []) + (issue_w(n + RING - 1) if n + RING - 1 < NS else [])
        if n == NS - 2:
            pend = [lambda: w.ivm(f"buffer_load_dword v22, v23, s[{sws}:{sws+3}], s56 offen sc1", "SF")]
        tk = TOK + 20 * (n % TRING)
        q = 0
        for nt in range(4):
            w.wlg((n, nt))
            for i in range(5):
                d = ACC + 20 * nt + 4 * i
                c = "0" if n == 0 else f"v[{d}:{d+3}]"
                a(f"v_mfma_f32_16x16x32_bf16 v[{d}:{d+3}], v[{WFR+4*nt}:{WFR+4*nt+3}], v[{tk+4*i}:{tk+4*i+3}], {c}")
                q += 1
                if q % 2 == 0 and pend:
                    pend.pop(0)()
            if n + 1 < NS:
                wreads(n + 1, nt)
        for f in pend:
            f()
    pf.stamp()
    a("s_setprio 3")
    if swo is not None:
        sing_tail(a, pf, w, L, sws, swo, sout, ACC, TOK, WFR, SR_, XR, TMP)
        return

    def s_loads():
        for i in range(3):
            if i == 2:
                a("s_mov_b32 exec_hi, 0")
            a(f"buffer_load_dwordx4 v[{SR_+4*i}:{SR_+4*i+3}], v7, s[{sws}:{sws+3}], s{53+i} offen sc1")
        a("s_mov_b32 exec_hi, -1")

    def early():
        a(f"""
        s_waitcnt vmcnt(0)
        v_readfirstlane_b32 s57, v22
        s_cmp_eq_u32 s57, 0
        s_cbranch_scc1 {L}_LATE
        """)
        s_loads()
        a.label(f"{L}_LATE")
    reduce_write(a, ACC, TMP, mid=early)
    R = [TOK + 8 * i for i in range(12)]
    reduce_read(a, R)
    a(f"s_mov_b32 s58, {fbits(-math.log2(math.e))}")
    for rd in range(3):
        reduce_sum(a, R, rd)
        b, t = rreg(R, rd, 0), rreg(R, rd, 1)
        for e in range(8):
            a(f"v_mul_f32 v{t+e}, s58, v{b+e}")
        for e in range(8):
            a(f"v_exp_f32 v{t+e}, v{t+e}")
        for e in range(8):
            a(f"v_add_f32 v{t+e}, 1.0, v{t+e}")
        for e in range(8):
            a(f"v_rcp_f32 v{t+e}, v{t+e}")
        U = ACC + 16 * rd
        for e in range(4):
            a(f"v_lshlrev_b32 v{U+2*e}, 16, v{XR+4*rd+e}")
            a(f"v_and_b32 v{U+2*e+1}, 0xffff0000, v{XR+4*rd+e}")
        for e in range(8):
            a(f"v_mul_f32 v{b+e}, v{b+e}, v{t+e}")
    pf.stamp()
    a(f"""
    s_cmp_lg_u32 s57, 0
    s_cbranch_scc1 {L}_HAVE
    """)
    poll(a, f"{L}S", 22, 23, sws, 56, sleep=12)
    s_loads()
    a.label(f"{L}_HAVE")
    a("s_waitcnt vmcnt(0)")
    for rd in range(3):
        b = rreg(R, rd, 0)
        U = ACC + 16 * rd
        for e in range(4):
            a(f"v_lshlrev_b32 v{U+8+2*e}, 16, v{SR_+4*rd+e}")
            a(f"v_and_b32 v{U+8+2*e+1}, 0xffff0000, v{SR_+4*rd+e}")
        for e in range(8):
            a(f"v_fmac_f32 v{U+e}, v{b+e}, v{U+8+e}")
        for e in range(4):
            a(f"v_cvt_pk_bf16_f32 v{XR+4*rd+e}, v{U+2*e}, v{U+2*e+1}")
        if rd == 2:
            a("s_mov_b32 exec_hi, 0")
        a(f"buffer_store_dwordx4 v[{XR+4*rd}:{XR+4*rd+3}], v7, s[{sout}:{sout+3}], s{59+rd} offen")
    a("s_mov_b32 exec_hi, -1")


def sproj_body(a, pf, sid, sws, swo, Lend, L="SP"):
    w = Waits(a)
    ACC = 24
    TOK = ACC + 80
    WFR = TOK + 100
    TMP = WFR + 16
    tile_setup(a, sid, Lend, TMP, 5 * WSL)
    tok_bases(a, 36 * 1024)
    a(f"""
    v_add_u32 v14, 2304, v14
    v_add_u32 v15, 2304, v15
    s_mul_i32 s44, s40, {144*1152}
    s_mov_b32 s45, s44
    """)
    for n in range(5):
        a(f"s_add_u32 m0, s42, {n*WSL}")
        regs = [12, 13, 14, 15] if n < 4 else [18, 19, 14, 15]
        for i in range(4):
            a(f"buffer_load_dwordx4 v{regs[i]}, s[{swo}:{swo+3}], s{44 if n < 4 else 45} offen offset:{1024*i} lds")
        if n < 4:
            a(f"s_add_u32 s44, s44, {36*1152}")
    a(f"""
    s_lshl_b32 s58, s40, 13
    s_add_u32 s58, s58, {OF}
    v_add_u32 v21, s58, v6            ; o mains
    v_add_u32 v20, 4096, v21
    s_lshl_b32 s58, s40, 10
    s_add_u32 s58, s58, {OF + 32*1024}
    v_add_u32 v6, s58, v6             ; o tails
    s_add_u32 s59, s59, {GF}
    s_add_u32 s60, s60, {GF}
    s_add_u32 s61, s61, {GF}
    """)
    for i in range(20):
        a(f"v_mov_b32 v{TOK+80+i}, 0")
    a(f"""
    s_cmp_lg_u32 s40, 0
    s_cbranch_scc1 {L}O_OK
    s_mul_i32 s44, s38, 80
    s_add_u32 s45, s44, 79
    s_min_u32 s45, s45, 2047
    s_lshr_b32 s56, s44, 8
    s_lshr_b32 s57, s45, 8
    s_sub_u32 s57, s57, s56
    s_lshl_b32 s57, s57, 7
    s_lshl_b32 s56, s56, 7
    s_add_u32 s56, s56, {FLG + 2048}
    v_and_b32 v23, 31, v1
    v_lshlrev_b32 v23, 2, v23
    v_lshrrev_b32 v22, 5, v1
    v_mul_lo_u32 v22, v22, s57
    v_add_u32 v23, v23, v22
    """)
    poll(a, f"{L}O", 22, 23, sws, 56, sleep=8)
    a("s_waitcnt vmcnt(0)\ns_barrier")
    pf.stamp()
    for n in range(5):
        tk = TOK + 20 * n
        if n == 4:
            a("s_mov_b32 exec_hi, 0")
        for i in range(5):
            if n < 4:
                w.ivm(f"buffer_load_dwordx4 v[{tk+4*i}:{tk+4*i+3}], v{21 if n < 2 else 20}, s[{sws}:{sws+3}], s{48 + i} offen offset:{(n%2)*2048} sc1", ("T", n))
            else:
                w.ivm(f"buffer_load_dwordx4 v[{tk+4*i}:{tk+4*i+3}], v6, s[{sws}:{sws+3}], s{48 + i} offen sc1", ("T", n))
    a("s_mov_b32 exec_hi, -1")

    def wreads(n, nt):
        o = n * WSL
        w.ilg(f"ds_read_b64_tr_b16 v[{WFR+4*nt}:{WFR+4*nt+1}], v{8+nt} offset:{o}", (n, nt))
        w.ilg(f"ds_read_b64_tr_b16 v[{WFR+4*nt+2}:{WFR+4*nt+3}], v{8+nt} offset:{o + 512}", (n, nt))
    for nt in range(4):
        wreads(0, nt)
    for n in range(5):
        w.wvm(("T", n))
        tk = TOK + 20 * n
        for nt in range(4):
            w.wlg((n, nt))
            for i in range(5):
                d = ACC + 20 * nt + 4 * i
                c = "0" if n == 0 else f"v[{d}:{d+3}]"
                a(f"v_mfma_f32_16x16x32_bf16 v[{d}:{d+3}], v[{WFR+4*nt}:{WFR+4*nt+3}], v[{tk+4*i}:{tk+4*i+3}], {c}")
            if n + 1 < 5:
                wreads(n + 1, nt)
    reduce_write(a, ACC, TMP)
    R = [TOK + 8 * i for i in range(12)]
    reduce_read(a, R)
    for rd in range(3):
        reduce_sum(a, R, rd)
        b, t = rreg(R, rd, 0), rreg(R, rd, 1)
        for e in range(4):
            a(f"v_cvt_pk_bf16_f32 v{t+e}, v{b+2*e}, v{b+2*e+1}")
        if rd == 2:
            a("s_mov_b32 exec_hi, 0")
        a(f"buffer_store_dwordx4 v[{t}:{t+3}], v7, s[{sws}:{sws+3}], s{59+rd} offen sc1")
    a(f"""
    s_mov_b64 exec, -1
    s_lshl_b32 s56, s36, 7
    s_add_u32 s56, s56, {SFL}
    v_mov_b32 v2, 0
    v_mov_b32 v3, 1
    s_waitcnt vmcnt(0)
    s_barrier
    s_cmp_lg_u32 s40, 0
    s_cbranch_scc1 {L}_DONE
    s_mov_b64 exec, 1
    buffer_store_dword v3, v2, s[{sws}:{sws+3}], s56 offen sc1
    s_mov_b64 exec, -1
    {L}_DONE:
    """)


def sing_tail(a, pf, w, L, sws, swo, sout, ACC, TOK, WFR, GS, XR, TMP):
    a(f"""
    v_mov_b32 v2, v12
    v_mov_b32 v3, v13
    v_add_u32 v4, 2304, v14
    v_add_u32 v5, 2304, v15
    v_mov_b32 v{TMP+6}, v18
    v_mov_b32 v{TMP+7}, v19
    """)
    tok_bases(a, 36 * 1024)
    a(f"""
    s_mul_i32 s44, s40, {144*1152}
    s_mov_b32 s45, s44
    s_lshl_b32 s58, s40, 13
    s_add_u32 s58, s58, {OF}
    v_add_u32 v21, s58, v6            ; o mains
    v_add_u32 v20, 4096, v21
    s_lshl_b32 s58, s40, 10
    s_add_u32 s58, s58, {OF + 32*1024}
    v_add_u32 v6, s58, v6             ; o tails
    """)

    def o_loads():
        for n in range(5):
            tk = TOK + 20 * n
            if n == 4:
                a("s_mov_b32 exec_hi, 0")
            for i in range(5):
                if n < 4:
                    a(f"buffer_load_dwordx4 v[{tk+4*i}:{tk+4*i+3}], v{21 if n < 2 else 20}, s[{sws}:{sws+3}], s{48 + i} offen offset:{(n%2)*2048} sc1")
                else:
                    a(f"buffer_load_dwordx4 v[{tk+4*i}:{tk+4*i+3}], v6, s[{sws}:{sws+3}], s{48 + i} offen sc1")
        a("s_mov_b32 exec_hi, -1")

    def early():
        a(f"""
        s_waitcnt vmcnt(0)
        v_cmp_eq_u32 vcc, 0, v22
        s_cmp_eq_u64 vcc, 0
        s_cselect_b32 s57, 1, 0
        s_cbranch_scc0 {L}_LATE
        """)
        o_loads()
        a.label(f"{L}_LATE")
    reduce_write(a, ACC, TMP, mid=early)
    R = [ACC + 8 * i for i in range(10)] + [WFR, WFR + 8]
    reduce_read(a, R)
    a("s_waitcnt lgkmcnt(0)\ns_barrier")
    for n in range(5):
        a(f"s_add_u32 m0, s42, {n*WSL}")
        regs = [2, 3, 4, 5] if n < 4 else [TMP + 6, TMP + 7, 4, 5]
        for i in range(4):
            a(f"buffer_load_dwordx4 v{regs[i]}, s[{swo}:{swo+3}], s{44 if n < 4 else 45} offen offset:{1024*i} lds")
        if n < 4:
            a(f"s_add_u32 s44, s44, {36*1152}")
    a(f"s_mov_b32 s58, {fbits(-math.log2(math.e))}")
    for rd in (2, 0, 1):
        reduce_sum(a, R, rd, wait=False)
        b, t = rreg(R, rd, 0), rreg(R, rd, 1)
        for e in range(8):
            a(f"v_mul_f32 v{t+e}, s58, v{b+e}")
        for e in range(8):
            a(f"v_exp_f32 v{t+e}, v{t+e}")
        for e in range(8):
            a(f"v_add_f32 v{t+e}, 1.0, v{t+e}")
        for e in range(8):
            a(f"v_rcp_f32 v{t+e}, v{t+e}")
        for e in range(8):
            a(f"v_mul_f32 v{b+e}, v{b+e}, v{t+e}")
        for e in range(4):
            a(f"v_cvt_pk_bf16_f32 v{GS+4*rd+e}, v{b+2*e}, v{b+2*e+1}")
    pf.stamp()
    a(f"""
    s_cmp_lg_u32 s57, 0
    s_cbranch_scc1 {L}_HAVE
    """)
    poll(a, f"{L}O", 22, 23, sws, 56, sleep=int(os.environ.get("OSL", "4")))
    o_loads()
    a(f"""
    {L}_HAVE:
    s_waitcnt vmcnt(15)
    """)
    pf.stamp()
    w.lg = []

    def wreads(n, nt):
        o = n * WSL
        w.ilg(f"ds_read_b64_tr_b16 v[{WFR+4*nt}:{WFR+4*nt+1}], v{8+nt} offset:{o}", (1, n, nt))
        w.ilg(f"ds_read_b64_tr_b16 v[{WFR+4*nt+2}:{WFR+4*nt+3}], v{8+nt} offset:{o + 512}", (1, n, nt))
    for nt in range(4):
        wreads(0, nt)
    for n in range(5):
        a(f"s_waitcnt vmcnt({max(0, min(20 - 5*n, 12 - 4*n))})")
        tk = TOK + 20 * n
        for nt in range(4):
            w.wlg((1, n, nt))
            for i in range(5):
                d = ACC + 20 * nt + 4 * i
                c = "0" if n == 0 else f"v[{d}:{d+3}]"
                a(f"v_mfma_f32_16x16x32_bf16 v[{d}:{d+3}], v[{WFR+4*nt}:{WFR+4*nt+3}], v[{tk+4*i}:{tk+4*i+3}], {c}")
            if n + 1 < 5:
                wreads(n + 1, nt)
    reduce_write(a, ACC, TMP, addr=False)
    R = [TOK + 8 * i for i in range(12)]
    reduce_read(a, R)
    for rd in range(3):
        b = rreg(R, rd, 0)
        U = ACC + 16 * rd
        for e in range(4):
            a(f"v_lshlrev_b32 v{U+2*e}, 16, v{XR+4*rd+e}")
            a(f"v_and_b32 v{U+2*e+1}, 0xffff0000, v{XR+4*rd+e}")
            a(f"v_lshlrev_b32 v{U+8+2*e}, 16, v{GS+4*rd+e}")
            a(f"v_and_b32 v{U+8+2*e+1}, 0xffff0000, v{GS+4*rd+e}")
        reduce_sum(a, R, rd)
        for e in range(8):
            a(f"v_fmac_f32 v{U+e}, v{b+e}, v{U+8+e}")
        for e in range(4):
            a(f"v_cvt_pk_bf16_f32 v{XR+4*rd+e}, v{U+2*e}, v{U+2*e+1}")
        if rd == 2:
            a("s_mov_b32 exec_hi, 0")
        a(f"buffer_store_dwordx4 v[{XR+4*rd}:{XR+4*rd+3}], v7, s[{sout}:{sout+3}], s{59+rd} offen")
    a("s_mov_b32 exec_hi, -1")
```

```python
from common import *
from k2a import attn_body
from k2b import gemm2_body
from k3 import outproj_body, sproj_body
from mkz import z2_body
from mkq import qkv_body

def build_k2(prio_attn=1, prio_gemm=0, kidx=1):
    k = Kernel("k2_mix_kernel", 512, 256, 81920, 256, nsgpr=102)
    a = k.a
    pf = Prof(a, bool(PROF), kidx)
    pf.stamp()
    a(f"""
    s_cmp_ge_u32 s2, 512
    s_cbranch_scc1 K2_END
    s_load_dwordx4 s[4:7], s[0:1], {KA_WSP}
    s_load_dwordx2 s[24:25], s[0:1], {KA_WOUT}
    s_load_dwordx2 s[26:27], s[0:1], {KA_WS}
    s_load_dwordx2 s[60:61], s[0:1], {KA_WO}
    s_waitcnt lgkmcnt(0)
    """)
    srd(a, 12, 4, SZ_WSP)
    srd(a, 16, 6, SZ_BSP)
    srd(a, 20, 26, WS_USED)
    SWAP = int(os.environ.get("SWAP", "1"))
    a(f"""
    s_and_b32 s3, s2, 255
    s_cmp_{'ge' if SWAP else 'lt'}_u32 s2, 256
    s_cbranch_scc1 K2_ATT
    """)
    if prio_gemm:
        a(f"s_setprio {prio_gemm}")
    n0 = pf.n
    srd(a, 8, 24, SZ_WOUT)
    z2_body(a, pf, "s3", 20)
    gemm2_body(a, pf, "s3", 20, 12, 16, loop_prio=int(os.environ.get("GLP", "2")), mega=True)
    a(f"""
    s_waitcnt vmcnt(0)
    s_barrier
    s_cmp_lg_u32 s32, 0
    s_cbranch_scc1 K2_NOSIG
    s_lshl_b32 s30, s30, 7
    s_lshl_b32 s31, s31, 2
    s_add_u32 s30, s30, s31
    s_add_u32 s30, s30, {FLG}
    v_mov_b32 v1, 0
    v_mov_b32 v2, 1
    s_mov_b64 exec, 1
    buffer_store_dword v2, v1, s[20:23], s30 offen sc1
    s_mov_b64 exec, -1
    K2_NOSIG:
    """)
    pf.stamp()
    a(f"""
    s_load_dwordx2 s[4:5], s[0:1], {KA_X}
    s_load_dwordx2 s[24:25], s[0:1], {KA_OUT}
    s_load_dwordx2 s[6:7], s[0:1], {KA_WO}
    s_waitcnt lgkmcnt(0)
    """)
    SING = int(os.environ.get("SING", "1"))
    srd(a, 16, 6, SZ_WO)
    srd(a, 12, 4, SZ_X)
    srd(a, 4, 24, SZ_X)
    outproj_body(a, pf, "s3", 20, 8, 12, 4, "K2_END", prio=int(os.environ.get("OPP", "0")), swo=16 if SING else None)
    pf.dump(20, 4)
    a("s_endpgm")
    a.label("K2_ATT")
    if os.environ.get("NOATT"):
        a("s_endpgm")
    pf.n = n0
    if prio_attn:
        a(f"s_setprio {prio_attn}")
    srd(a, 8, 60, SZ_WO)
    srd(a, 12, 24, SZ_WOUT)
    a(f"s_setprio {int(os.environ.get('PQ', '1'))}")
    m1, m2 = qkv_body(a, pf, "s3", 20)
    a(f"s_setprio {prio_attn}")
    pf.stamp()
    attn_body(a, pf, "s3", 20, pfw=(12, 8) if int(os.environ.get("PFA", "1")) else None, mega=True, mid=m1, mid2=m2, late_flag=60)
    a(f"""
    s_waitcnt vmcnt(0)
    s_barrier
    s_cmp_lg_u32 s32, 0
    s_cbranch_scc1 K2_NOSIG2
    s_lshl_b32 s31, s31, 7
    s_lshl_b32 s30, s30, 2
    s_add_u32 s30, s30, s31
    s_add_u32 s30, s30, {FLG + 2048}
    v_mov_b32 v1, 0
    v_mov_b32 v2, 1
    s_mov_b64 exec, 1
    buffer_store_dword v2, v1, s[20:23], s30 offen sc1
    s_mov_b64 exec, -1
    K2_NOSIG2:
    """)
    pf.stamp()
    if not SING:
        sproj_body(a, pf, "s3", 20, 8, "K2_END")
    pf.dump(20, 4)
    a("K2_END:\ns_endpgm")
    return k
```

```python
from common import *

NT = " nt" if os.environ.get("NT0", "1") == "1" else ""
NT2 = " nt" if os.environ.get("NTX", "0") == "1" else ""
SC = " sc1" if os.environ.get("SC1", "1") == "1" else ""

def ln_finish(a, f, n, vmean, vvar, t, pk):
    round_bf16(a, vmean)
    round_bf16(a, vvar)
    a(f"v_add_f32 v{vvar}, {fbits(1e-5)}, v{vvar}")
    round_bf16(a, vvar)
    a(f"v_sqrt_f32 v{vvar}, v{vvar}")
    round_bf16(a, vvar)
    a(f"v_rcp_f32 v{vvar}, v{vvar}")
    for i in range(n):
        a(f"v_sub_f32 v{f+i}, v{f+i}, v{vmean}")
    for i in range(n // 2):
        a(f"v_cvt_pk_bf16_f32 v{pk+i}, v{f+2*i}, v{f+2*i+1}")
    for i in range(n // 2):
        a(f"v_lshlrev_b32 v{f+2*i}, 16, v{pk+i}")
        a(f"v_and_b32 v{f+2*i+1}, 0xffff0000, v{pk+i}")
    for i in range(n):
        a(f"v_mul_f32 v{f+i}, v{f+i}, v{vvar}")
    for i in range(n // 2):
        a(f"v_cvt_pk_bf16_f32 v{pk+i}, v{f+2*i}, v{f+2*i+1}")


def build_k0():
    NCV, NLN, NWB, NPF = 144, 256, 288, (16 if os.environ.get('CPF', '1') == '1' else 0)
    NSP = 128 if os.environ.get("K0SP", "1") == "1" else 0
    k = Kernel("k0_prep_kernel", NCV + NLN + NWB + NPF + NSP, 256, 36864, 64)
    a = k.a
    pf = Prof(a, bool(PROF), 0)
    pf.stamp()
    a(f"""
    s_cmp_lt_u32 s2, {NPF}
    s_cbranch_scc1 K0_CPF
    s_sub_u32 s2, s2, {NPF}
    s_cmp_ge_u32 s2, {NCV+NLN+NWB}
    s_cbranch_scc1 K0_SP
    s_load_dwordx4 s[4:7], s[0:1], {KA_X}
    s_load_dwordx2 s[24:25], s[0:1], {KA_WIN}
    s_load_dwordx2 s[26:27], s[0:1], {KA_WS}
    v_and_b32 v1, 63, v0
    v_lshrrev_b32 v2, 6, v0
    s_waitcnt lgkmcnt(0)
    """)
    pf.stamp()
    srd(a, 8, 4, SZ_X)
    srd(a, 12, 6, SZ_WQKV)
    srd(a, 16, 24, SZ_WIN)
    srd(a, 20, 26, WS_USED)
    a(f"""
    s_cmp_ge_u32 s2, {NCV}
    s_cbranch_scc1 K0_NOTCV
    s_lshr_b32 s28, s2, 3             ; kp
    s_and_b32 s29, s2, 7              ; q
    v_readfirstlane_b32 s30, v2       ; wave
    s_mul_i32 s31, s28, {32*4*FH}
    s_mul_i32 s32, s29, 576
    s_add_u32 s31, s31, s32
    s_mul_i32 s33, s30, 9216
    s_mul_i32 s34, s30, {8*4*FH}
    s_add_u32 s31, s31, s34
    """)
    for i in range(9):
        a(f"""
        v_add_u32 v3, {64*i}, v1
        v_mul_u32_u24 v4, 1821, v3
        v_lshrrev_b32 v4, 16, v4
        v_mul_u32_u24 v5, 36, v4
        v_sub_u32 v5, v3, v5              ; chunk
        v_mul_u32_u24 v4, {2*FH}, v4
        v_lshl_add_u32 v4, v5, 4, v4
        s_add_u32 m0, s33, {1024*i}
        buffer_load_dwordx4 v4, s[16:19], s31 offen{NT} lds
        """)
    a(f"""
    s_lshr_b32 s35, s30, 1
    s_and_b32 s36, s30, 1
    s_lshl_b32 s37, s29, 1
    s_add_u32 s42, s37, s35           ; group
    s_mul_i32 s37, s35, 288
    v_lshlrev_b32 v7, 4, v1
    s_cmp_lg_u32 s36, 0
    s_cbranch_scc1 K0_CVZ1
    v_lshrrev_b32 v3, 4, v1
    v_bfe_u32 v4, v1, 2, 2
    v_lshl_add_u32 v3, v3, 3, v4
    v_mul_u32_u24 v3, 1152, v3
    s_add_u32 s37, s37, 576
    v_add_u32 v3, s37, v3
    v_and_b32 v4, 3, v1
    v_lshl_add_u32 v6, v4, 3, v3
    v_lshl_add_u32 v5, v4, 4, v3
    v_bfe_u32 v4, v1, 1, 1
    v_lshl_add_u32 v5, v4, 3, v5      ; parity 0
    v_xor_b32 v46, 8, v5              ; parity 1
    s_mul_i32 s37, s42, {WZG}
    s_mul_i32 s38, s28, 9216
    s_add_u32 s39, s37, s38
    s_add_u32 s39, s39, {WZ}
    s_add_u32 s40, s39, 4096
    s_add_u32 s41, s39, 8192
    s_waitcnt vmcnt(0)
    s_barrier
    """)
    for t in range(9):
        reg, off = ((5 if t % 2 == 0 else 46), 64 * (t // 2)) if t < 8 else (6, 256)
        a(f"ds_read_b64_tr_b16 v[{8+4*t}:{9+4*t}], v{reg} offset:{off}")
        a(f"ds_read_b64_tr_b16 v[{10+4*t}:{11+4*t}], v{reg} offset:{off + 4*1152}")
    for t in range(9):
        a(f"s_waitcnt lgkmcnt({min(15, 2*(8-t))})")
        a(f"buffer_store_dwordx4 v[{8+4*t}:{11+4*t}], v7, s[20:23], s{39 + t // 4} offen offset:{1024*(t % 4)}{SC}")
    a(f"""
    s_branch K0_CVEND
    K0_CVZ1:
    v_lshrrev_b32 v3, 5, v1
    v_bfe_u32 v4, v1, 2, 2
    v_lshl_add_u32 v3, v3, 3, v4
    v_mul_u32_u24 v3, 1152, v3
    v_add_u32 v3, s37, v3
    v_and_b32 v4, 1, v1
    v_lshl_add_u32 v3, v4, 4, v3
    v_bfe_u32 v4, v1, 1, 1
    v_lshl_add_u32 v6, v4, 3, v3      ; mixed (+256)
    v_bfe_u32 v4, v1, 4, 1
    v_lshl_add_u32 v5, v4, 5, v6
    s_mul_i32 s37, s42, {WQG}
    s_lshl_b32 s38, s28, 14
    s_add_u32 s39, s37, s38
    s_add_u32 s39, s39, {WQ + 4096}
    s_add_u32 s40, s39, 8192
    s_sub_u32 s41, s39, 1024
    s_sub_u32 s43, s40, 1024
    s_waitcnt vmcnt(0)
    s_barrier
    """)
    lst = [(ks, T) for ks in range(2) for T in range(5)]
    for i, (ks, T) in enumerate(lst):
        reg, off = (5, 64 * T) if T < 4 else (6, 256)
        off += ks * 16 * 1152
        a(f"ds_read_b64_tr_b16 v[{8+4*i}:{9+4*i}], v{reg} offset:{off}")
        a(f"ds_read_b64_tr_b16 v[{10+4*i}:{11+4*i}], v{reg} offset:{off + 4*1152}")
    a("s_waitcnt lgkmcnt(0)")
    for i, (ks, T) in enumerate(lst):
        if T < 4:
            a(f"buffer_store_dwordx4 v[{8+4*i}:{11+4*i}], v7, s[20:23], s{39 + ks} offen offset:{1024*T}{SC}")
    a("s_mov_b32 exec_lo, 0xffff0000\ns_mov_b32 exec_hi, 0xffff0000")
    for i, (ks, T) in enumerate(lst):
        if T == 4:
            a(f"buffer_store_dwordx4 v[{8+4*i}:{11+4*i}], v7, s[20:23], s{41 if ks == 0 else 43} offen{SC}")
    a("K0_CVEND:")
    pf.stamp()
    pf.dump(20, 4)
    pf.n -= 2
    a(f"""
    s_endpgm
    K0_NOTCV:
    s_cmp_ge_u32 s2, {NCV+NLN}
    s_cbranch_scc1 K0_WB
    v_lshrrev_b32 v3, 5, v1
    v_lshl_add_u32 v3, v2, 1, v3
    s_sub_u32 s28, s2, {NCV}
    s_lshl_b32 s28, s28, 3
    v_add_u32 v3, s28, v3            ; row
    v_and_b32 v4, 31, v1             ; c0
    v_mul_u32_u24 v5, 1152, v3
    v_lshl_add_u32 v5, v4, 4, v5
    """)
    for i in range(12):
        a(f"v_mov_b32 v{8+i}, 0")
    a(f"""
    s_mov_b32 s30, 0x00ffffff
    s_mov_b32 s31, 0x00ffffff
    s_mov_b64 exec, s[30:31]
    buffer_load_dwordx4 v[8:11], v5, s[8:11], 0 offen{NT2}
    buffer_load_dwordx4 v[12:15], v5, s[8:11], 0 offen offset:384{NT2}
    buffer_load_dwordx4 v[16:19], v5, s[8:11], 0 offen offset:768{NT2}
    s_mov_b64 exec, -1
    v_lshlrev_b32 v6, 2, v0
    v_mov_b32 v7, -1.0
    s_lshl_b32 s29, s28, 7
    s_add_u32 s29, s29, {STT}
    buffer_store_dword v7, v6, s[20:23], s29 offen
    s_cmp_ge_u32 s28, {40*8}
    s_cbranch_scc1 K0_NOFLG
    v_mov_b32 v7, 0
    s_add_u32 s29, s29, {FLG - STT}
    buffer_store_dword v7, v6, s[20:23], s29 offen
    s_waitcnt vmcnt(0)
    K0_NOFLG:
    v_lshrrev_b32 v6, 5, v3
    v_mul_u32_u24 v6, 36, v6
    v_lshrrev_b32 v7, 1, v4
    v_add_u32 v6, v6, v7
    v_lshlrev_b32 v6, 10, v6
    v_and_b32 v7, 1, v4
    v_lshlrev_b32 v7, 5, v7
    v_and_b32 v20, 31, v3
    v_add_u32 v7, v7, v20
    v_lshl_add_u32 v6, v7, 4, v6
    s_waitcnt vmcnt(1)
    """)
    F = 24
    pf.stamp()
    for i in range(12):
        a(f"v_lshlrev_b32 v{F+2*i}, 16, v{8+i}")
        a(f"v_and_b32 v{F+2*i+1}, 0xffff0000, v{8+i}")
    a(f"v_add_f32 v50, v{F}, v{F+1}")
    a(f"v_add_f32 v51, v{F+2}, v{F+3}")
    for i in range(4, 24, 2):
        a(f"v_add_f32 v50, v50, v{F+i}")
        a(f"v_add_f32 v51, v51, v{F+i+1}")
    a("v_add_f32 v50, v50, v51")
    reduce16(a, 50, 52)
    reduce_x16(a, 50, 52)
    a(f"v_mul_f32 v50, {fbits(1.0/576)}, v50")
    a("v_mov_b32 v51, 0\nv_mov_b32 v53, 0\ns_mov_b64 exec, s[30:31]")
    for i in range(24):
        a(f"v_sub_f32 v52, v{F+i}, v50")
        a(f"v_fmac_f32 v{51 if i % 2 == 0 else 53}, v52, v52")
    a("s_mov_b64 exec, -1\nv_add_f32 v51, v51, v53")
    reduce16(a, 51, 52)
    reduce_x16(a, 51, 52)
    a(f"v_mul_f32 v51, {fbits(1.0/576)}, v51")
    ln_finish(a, F, 24, 50, 51, 52, 8)
    a(f"""
    s_mov_b64 exec, s[30:31]
    s_mov_b32 s32, {XF}
    s_mov_b32 s33, {XF + 12*1024}
    s_mov_b32 s34, {XF + 24*1024}
    buffer_store_dwordx4 v[8:11], v6, s[20:23], s32 offen
    buffer_store_dwordx4 v[12:15], v6, s[20:23], s33 offen
    buffer_store_dwordx4 v[16:19], v6, s[20:23], s34 offen
    """)
    pf.dump(20, 4)
    pf.n -= 2
    a("s_endpgm")
    a.label("K0_WB")
    a(f"""
    s_sub_u32 s28, s2, {NCV+NLN}      ; j in 0..287
    s_mul_i32 s29, s28, 3641          ; j/18 = (j*3641)>>16 for j<288
    s_lshr_b32 s29, s29, 16           ; g
    s_mul_i32 s30, s29, 18
    s_sub_u32 s30, s28, s30
    v_readfirstlane_b32 s31, v2       ; T = wave
    v_and_b32 v3, 31, v1              ; m
    v_lshrrev_b32 v4, 5, v1           ; h
    v_and_b32 v5, 19, v3
    v_and_b32 v6, 4, v3
    v_lshlrev_b32 v6, 1, v6
    v_or_b32 v5, v5, v6
    v_and_b32 v6, 8, v3
    v_lshrrev_b32 v6, 1, v6
    v_or_b32 v5, v5, v6               ; phi
    s_lshl_b32 s32, s30, 5
    v_lshlrev_b32 v6, 3, v4
    v_add_u32 v6, s32, v6             ; k row
    s_mul_i32 s33, s29, 36            ; 36 g
    """)
    for i in range(16):
        a(f"v_mov_b32 v{16+i}, 0")
    a(f"""
    s_cmp_eq_u32 s31, 3
    s_cbranch_scc1 K0_WB3
    s_mul_i32 s34, s31, 576
    s_add_u32 s34, s34, s33
    v_lshrrev_b32 v7, 4, v5
    v_mul_u32_u24 v7, 18, v7
    v_and_b32 v8, 15, v5
    v_add3_u32 v7, v7, v8, s34
    s_branch K0_WBQ
    K0_WB3:
    v_lshrrev_b32 v10, 3, v5
    v_bfe_u32 v11, v5, 1, 2
    v_and_b32 v12, 1, v5
    v_mul_u32_u24 v7, 576, v11
    v_mul_u32_u24 v10, 18, v10
    v_add3_u32 v7, v7, v10, v12
    v_add3_u32 v7, v7, s33, 16
    v_cmp_gt_u32 vcc, 16, v5
    v_cmp_ne_u32 s[38:39], 3, v11
    s_and_b64 vcc, vcc, s[38:39]
    s_mov_b64 exec, vcc
    K0_WBQ:
    v_mul_u32_u24 v9, {3*D}, v6
    v_add_lshl_u32 v9, v9, v7, 1
    """)
    for ks in range(2):
        for j in range(8):
            r = 16 * ks + j
            a(f"s_mov_b32 s38, {r * 3 * D * 2}")
            a(f"buffer_load_ushort v{(24 if j % 2 else 16)+4*ks+j//2}, v9, s[12:15], s38 offen{NT2}")
    a(f"""
    s_mov_b64 exec, -1
    s_mul_i32 s34, s29, {WQG}
    s_lshl_b32 s35, s30, 4
    s_add_u32 s35, s35, s31
    s_lshl_b32 s35, s35, 10
    s_add_u32 s34, s34, s35
    s_add_u32 s34, s34, {WQ}
    s_add_u32 s35, s34, 8192
    v_lshlrev_b32 v9, 4, v1
    s_waitcnt vmcnt(0)
    """)
    pf.stamp()
    for i in range(8):
        a(f"v_lshl_or_b32 v{16+i}, v{24+i}, 16, v{16+i}")
    a(f"""
    s_cmp_eq_u32 s31, 3
    s_cselect_b32 exec_lo, 0xffff, -1
    s_cselect_b32 exec_hi, 0xffff, -1
    buffer_store_dwordx4 v[16:19], v9, s[20:23], s34 offen{SC}
    buffer_store_dwordx4 v[20:23], v9, s[20:23], s35 offen{SC}
    """)
    pf.dump(20, 4)
    a(f"""
    K0_END:
    s_endpgm
    K0_SP:
    s_sub_u32 s2, s2, {NCV+NLN+NWB}
    s_cmp_ge_u32 s2, {NSP}
    s_cbranch_scc1 K0_END
    s_load_dwordx2 s[4:5], s[0:1], {KA_WSP}
    v_lshlrev_b32 v1, 7, v0
    s_lshl_b32 s12, s2, 16
    s_add_u32 s13, s12, 32768
    s_waitcnt lgkmcnt(0)
    """)
    srd(a, 8, 4, SZ_WSP)
    a("""
    buffer_load_dword v2, v1, s[8:11], s12 offen
    buffer_load_dword v3, v1, s[8:11], s13 offen
    s_endpgm
    K0_CPF:
    s_getpc_b64 s[4:5]
    K0_PC:
    s_lshr_b32 s6, s2, 3
    s_lshl_b32 s6, s6, 15
    v_lshlrev_b32 v1, 7, v0
    v_add_u32 v1, s6, v1
    v_min_u32 v1, ALL_CODE_END-K0_PC-4, v1
    global_load_dword v2, v1, s[4:5]
    s_endpgm
    """)
    return k
```

```python
from common import *
from k3 import poll
from mkz import idmap

STG = 17408


def gemm2_body(a, pf, sid, sws, swsp, sbsp, L="G2", loop_prio=0, mega=False, z1reg=None):
    ACC = 16
    FA = [88, 124]
    FB = [160, 168]
    Z1 = 176
    TMP = 212
    vL16 = 2
    rB = 3
    rA = [4, 5, 6, 7]
    rX = [8, 9]
    dT, dT2 = 10, 11
    vU, vU9 = 12, 13
    WIN = int(os.environ.get('WIN', '16')); RM = int(os.environ.get('RM', '0'))
    a(f"""
    v_and_b32 v1, 63, v0
    v_lshrrev_b32 v{TMP}, 6, v0
    s_and_b32 s28, {sid}, 7
    s_lshr_b32 s29, {sid}, 3
    {idmap()}
    v_readfirstlane_b32 s32, v{TMP}   ; wave
    v_lshlrev_b32 v{vL16}, 4, v1
    v_lshrrev_b32 v{TMP+1}, 2, v1
    v_lshrrev_b32 v{TMP+3}, 4, v1                 ; q = r>>2
    v_lshlrev_b32 v{TMP+4}, 1, v{TMP+3}
    v_and_b32 v{TMP+4}, 3, v{TMP+4}
    v_lshrrev_b32 v{TMP+3}, 1, v{TMP+3}
    v_mul_u32_u24 v{TMP+3}, 3, v{TMP+3}
    v_xor_b32 v{TMP+3}, v{TMP+3}, v{TMP+4}
    v_and_b32 v{TMP+2}, 3, v1
    v_xor_b32 v{TMP+2}, v{TMP+2}, v{TMP+3}
    s_lshl_b32 s38, s32, 11
    s_add_u32 s39, s38, 8192
    s_lshl_b32 s40, s32, 8
    s_add_u32 s41, s40, 8192
    s_add_u32 s40, s40, 16384
    s_lshl_b32 s44, s30, 7
    s_lshl_b32 s45, s32, 5
    s_add_u32 s44, s44, s45
    v_add_u32 v{TMP+1}, s44, v{TMP+1}
    v_lshlrev_b32 v{dT}, 12, v{TMP+1}
    v_lshl_add_u32 v{dT}, v{TMP+2}, 4, v{dT}
    v_add_u32 v{dT2}, {16*4096 - 1024}, v{dT}
    s_mul_i32 s43, s31, {64*9216}
    s_add_u32 s43, s43, {Z2N}
    s_add_u32 s46, s43, s41
    s_add_u32 s43, s43, s38
    s_mov_b32 s42, 0
    """)

    ZS = " sc1" if mega else ""
    WN = " nt" if os.environ.get("WSPNT", "0") == "1" else ""

    def dma_sp(sl):
        o = sl * STG
        return [f"s_add_u32 m0, s39, {o}\nbuffer_load_dwordx4 v{vL16}, s[{sws}:{sws+3}], s43 offen{ZS} lds",
                f"buffer_load_dwordx4 v{vL16}, s[{sws}:{sws+3}], s43 offen offset:1024{ZS} lds\ns_add_u32 s43, s43, 9216",
                f"s_add_u32 m0, s40, {o}\ns_mov_b64 exec, 0xffff\nbuffer_load_dwordx4 v{vL16}, s[{sws}:{sws+3}], s46 offen{ZS} lds\n"
                f"s_mov_b64 exec, -1\ns_add_u32 s46, s46, 9216",
                f"s_add_u32 m0, s38, {o}\nbuffer_load_dwordx4 v{dT}, s[{swsp}:{swsp+3}], s42 offen{WN} lds",
                f"buffer_load_dwordx4 v{dT2}, s[{swsp}:{swsp+3}], s42 offen offset:1024{WN} lds\ns_add_u32 s42, s42, 64"]

    GD = int(os.environ.get("GD", "1"))
    for st in range(0, 4 - 3 * GD if GD < 2 else 1):
        if GD != 1:
            a.ext(dma_sp(st))
    a(f"""
    v_and_b32 v{TMP+1}, 15, v1
    v_bfe_u32 v{TMP+3}, v1, 2, 2
    v_lshlrev_b32 v{TMP+4}, 1, v{TMP+3}
    v_and_b32 v{TMP+4}, 3, v{TMP+4}
    v_lshrrev_b32 v{TMP+3}, 1, v{TMP+3}
    v_mul_u32_u24 v{TMP+3}, 3, v{TMP+3}
    v_xor_b32 v{TMP+3}, v{TMP+3}, v{TMP+4}
    v_lshrrev_b32 v{TMP+2}, 4, v1                 ; g
    v_xor_b32 v{TMP+3}, v{TMP+3}, v{TMP+2}
    v_lshl_add_u32 v{TMP+3}, v{TMP+1}, 2, v{TMP+3}
    v_lshlrev_b32 v{rB}, 4, v{TMP+3}
    v_add_u32 v{rB}, s38, v{rB}
    v_lshlrev_b32 v{vU}, 9, v{TMP+2}
    v_lshl_add_u32 v{vU}, v{TMP+1}, 4, v{vU}
    v_lshrrev_b32 v{TMP+3}, 1, v{TMP+2}
    v_lshlrev_b32 v{vU9}, 9, v{TMP+3}
    v_lshl_add_u32 v{vU9}, v{TMP+1}, 4, v{vU9}
    v_and_b32 v{TMP+3}, 1, v{TMP+2}
    v_lshl_add_u32 v{vU9}, v{TMP+3}, 3, v{vU9}
    v_bfe_u32 v{TMP+3}, v1, 2, 2
    v_lshl_add_u32 v{TMP+3}, v{TMP+2}, 3, v{TMP+3}   ; s (i = 0)
    v_and_b32 v{TMP+4}, 1, v1
    v_lshlrev_b32 v{TMP+5}, 2, v{TMP+4}
    v_xor_b32 v{TMP+5}, v{TMP+5}, v{TMP+3}
    v_lshlrev_b32 v{TMP+5}, 4, v{TMP+5}
    v_and_b32 v{TMP+6}, 3, v1
    v_lshl_add_u32 v{TMP+5}, v{TMP+6}, 9, v{TMP+5}
    v_bfe_u32 v{TMP+6}, v1, 1, 1
    v_lshl_add_u32 v{TMP+5}, v{TMP+6}, 3, v{TMP+5}
    v_add_u32 v{rA[0]}, 8192, v{TMP+5}
    v_xor_b32 v{rA[1]}, 64, v{rA[0]}
    v_xor_b32 v{rA[2]}, 8, v{rA[0]}
    v_xor_b32 v{rA[3]}, 8, v{rA[1]}
    v_lshlrev_b32 v{TMP+5}, 2, v{TMP+6}
    v_xor_b32 v{TMP+5}, v{TMP+5}, v{TMP+3}
    v_lshlrev_b32 v{TMP+5}, 4, v{TMP+5}
    v_lshl_add_u32 v{TMP+5}, v{TMP+6}, 9, v{TMP+5}
    v_lshl_add_u32 v{TMP+5}, v{TMP+4}, 3, v{TMP+5}
    v_add_u32 v{rX[0]}, 16384, v{TMP+5}
    v_xor_b32 v{rX[1]}, 64, v{rX[0]}
    s_lshl_b32 s48, s30, 2
    s_add_u32 s48, s48, s32
    s_mul_i32 s48, s48, 144
    s_mul_i32 s49, s31, 9
    s_add_u32 s48, s48, s49
    s_lshl_b32 s48, s48, 10
    s_add_u32 s48, s48, {UF}
    s_add_u32 s49, s48, 4096
    s_add_u32 s50, s48, 8192
    s_lshl_b32 s44, s44, 1
    v_lshlrev_b32 v{TMP+21}, 1, v{TMP+1}
    """)

    def reads(sl, k):
        o = sl * STG
        fa, fb = FA[k], FB[k]
        out = [f"ds_read_b128 v[{fb}:{fb+3}], v{rB} offset:{o}", f"ds_read_b128 v[{fb+4}:{fb+7}], v{rB} offset:{o+1024}"]
        for tau in range(9):
            for i in range(2):
                reg = rA[2 * (tau % 2) + i] if tau < 8 else rX[i]
                off = o + (tau // 2) * 2048 if tau < 8 else o
                out.append(f"ds_read_b64_tr_b16 v[{fa+4*tau+2*i}:{fa+4*tau+2*i+1}], v{reg} offset:{off}")
        return out

    def mfmas(k):
        fa, fb = FA[k], FB[k]
        out = []
        for tau in range(9):
            for b in range(2):
                d = ACC + 4 * (2 * tau + b)
                out.append(f"v_mfma_f32_16x16x32_bf16 v[{d}:{d+3}], v[{fa+4*tau}:{fa+4*tau+3}], v[{fb+4*b}:{fb+4*b+3}], v[{d}:{d+3}]")
        return out

    def uop(op, P, b, sc=""):
        if P < 4:
            z = Z1 + 4 * (2 * P + b)
            return f"buffer_{op}_dwordx4 v[{z}:{z+3}], v{vU}, s[{sws}:{sws+3}], s{48 + P // 2} offen offset:{(P % 2) * 2048 + b * 256}{sc}"
        z = Z1 + 32 + 2 * b
        return f"buffer_{op}_dwordx2 v[{z}:{z+1}], v{vU9}, s[{sws}:{sws+3}], s50 offen offset:{b * 256}{sc}"

    for i in range(72):
        a(f"v_mov_b32 v{ACC+i}, 0")
    if mega:
        from mkz import flag_store
        a(f"""
        s_lshl_b32 s51, s31, 7
        s_add_u32 s51, s51, {FL_Z}
        s_lshl_b32 s52, s30, 2
        s_add_u32 s52, s52, s51
        s_lshl_b32 s53, s30, 7
        s_lshl_b32 s54, s31, 2
        s_add_u32 s53, s53, s54
        s_add_u32 s53, s53, {FL_U + 64}
        v_mov_b32 v{TMP+10}, 0
        """)
        if z1reg:
            z1reg[0]()
        a("s_waitcnt vmcnt(0)\ns_barrier")
        flag_store(a, f"{L}_NOSIG", sws, 52, TMP + 8, TMP + 9)
        pf.stamp()
        for st in range(4):
            a.ext(dma_sp(st)[3:])
        if z1reg:
            z1reg[1]()
        a(f"""
        s_cmp_lg_u32 s32, 0
        s_cbranch_scc1 {L}Z_OK
        v_lshlrev_b32 v{TMP+8}, 2, v{TMP+1}
        """)
        poll(a, f"{L}Z", TMP + 9, TMP + 8, sws, 51, sleep=6)
        a("s_barrier")
        for st in range(4):
            a.ext(dma_sp(st)[:3])
        pf.stamp()
        a(f"s_waitcnt vmcnt(3)\ns_barrier")
    else:
        for st in range(4):
            if GD == 1 or (GD == 2 and st >= 1):
                a.ext(dma_sp(st))
        pf.stamp()
        a(f"s_waitcnt vmcnt(15)\ns_barrier")
    a.ext(reads(0, 0))
    pf.stamp()

    def body(sl, vm, dma, rdnext, extra=None):
        ms = mfmas(sl % 2)
        rd = reads((sl + 1) % 4, (sl + 1) % 2) if rdnext else []
        dm = dma_sp(sl) if dma else []
        extra = list(extra or [])
        a(f"s_waitcnt vmcnt({vm}) lgkmcnt(0)\ns_barrier")
        GS_ = int(os.environ.get("GSCHED", "4"))
        if GS_ == 0:
            for q in range(18):
                a(ms[q])
                if q < 10 and rd:
                    a.ext(rd[2 * q:2 * q + 2])
                if q >= 8 and q % 2 == 0 and dm:
                    a(dm.pop(0))
                if extra:
                    a(extra.pop(0))
        elif GS_ == 1:
            a.ext(dm); a.ext(extra); a.ext(rd); a.ext(ms)
        elif GS_ == 2:
            a.ext(dm); a.ext(extra)
            for q in range(18):
                a(ms[q])
                if rd:
                    a(rd.pop(0))
            a.ext(rd)
        elif GS_ == 4:
            a.ext(rd[:4]); rd = rd[4:]
            for q in range(18):
                a(ms[q])
                if q % 4 == 1 and dm:
                    a(dm.pop(0))
                elif rd:
                    a(rd.pop(0))
                    if q < 4 and rd:
                        a(rd.pop(0))
            a.ext(rd); a.ext(dm); a.ext(extra)
        elif GS_ == 3:
            a.ext(rd[:8]); rd = rd[8:]
            for q in range(18):
                a(ms[q])
                if rd:
                    a(rd.pop(0))
            a.ext(dm); a.ext(extra)

    zl = ([] if z1reg else [uop("load", P, b, ZS) for P in range(5) for b in range(2)]) + \
         [f"buffer_load_ushort v{TMP+18}, v{TMP+21}, s[{sbsp}:{sbsp+3}], s44 offen",
          f"buffer_load_ushort v{TMP+19}, v{TMP+21}, s[{sbsp}:{sbsp+3}], s44 offen offset:32"]
    a(f"s_mov_b32 s47, {14 if mega and not z1reg else 15}\ns_setprio {loop_prio}")
    a.label(f"{L}_LOOP")
    for sl in range(4):
        body(sl, 10, True, True)
    a(f"""
    s_sub_u32 s47, s47, 1
    s_cmp_lg_u32 s47, 0
    s_cbranch_scc1 {L}_LOOP
    """)
    if mega and not z1reg:
        body(0, 10, True, True, [f"buffer_load_dword v{TMP+11}, v{TMP+10}, s[{sws}:{sws+3}], s53 offen sc1"])
        body(1, 10, True, True)
        body(2, 10, True, True)
        body(3, 10, True, True)
        a(f"""
        v_readfirstlane_b32 s54, v{TMP+11}
        s_cmp_lg_u32 s54, 0
        s_cbranch_scc1 {L}Z1_OK
        """)
        poll(a, f"{L}Z1", TMP + 11, TMP + 10, sws, 53, sleep=6)
    for sl in range(4):
        body(sl, max(0, 10 - 5 * sl) + (len(zl) if sl > 0 else 0), False, sl < 3, zl if sl == 0 else None)
    pf.stamp()
    a(f"""
    s_setprio 3
    s_waitcnt vmcnt(0)
    v_lshlrev_b32 v{TMP+18}, 16, v{TMP+18}
    v_lshlrev_b32 v{TMP+19}, 16, v{TMP+19}
    """)
    for P in range(5):
        for b in range(2):
            if P < 4:
                src = [ACC + 4 * (2 * (2 * P) + b) + i for i in range(4)] + [ACC + 4 * (2 * (2 * P + 1) + b) + i for i in range(4)]
                z = Z1 + 4 * (2 * P + b)
            else:
                src = [ACC + 4 * (16 + b) + i for i in range(4)]
                z = Z1 + 32 + 2 * b
            n = len(src)
            for r in src:
                a(f"v_add_f32 v{r}, v{r}, v{TMP+18+b}")
            for i in range(n // 2):
                a(f"v_lshlrev_b32 v{TMP+2+2*i}, 16, v{z+i}")
                a(f"v_and_b32 v{TMP+3+2*i}, 0xffff0000, v{z+i}")
            for i, r in enumerate(src):
                a(f"v_mul_f32 v{r}, v{r}, v{TMP+2+i}")
            for i in range(n // 2):
                a(f"v_cvt_pk_bf16_f32 v{z+i}, v{src[2*i]}, v{src[2*i+1]}")
            a(uop("store", P, b, " sc1"))
```

```python
from common import *

NT = " nt" if os.environ.get("NT0", "1") == "1" else ""
NT2 = " nt" if os.environ.get("NTX", "0") == "1" else ""
SC = " sc1" if os.environ.get("SC1", "0") == "1" else ""

def ln_finish(a, f, n, vmean, vvar, t, pk):
    round_bf16(a, vmean)
    round_bf16(a, vvar)
    a(f"v_add_f32 v{vvar}, {fbits(1e-5)}, v{vvar}")
    round_bf16(a, vvar)
    a(f"v_sqrt_f32 v{vvar}, v{vvar}")
    round_bf16(a, vvar)
    a(f"v_rcp_f32 v{vvar}, v{vvar}")
    for i in range(n):
        a(f"v_sub_f32 v{f+i}, v{f+i}, v{vmean}")
    for i in range(n // 2):
        a(f"v_cvt_pk_bf16_f32 v{pk+i}, v{f+2*i}, v{f+2*i+1}")
    for i in range(n // 2):
        a(f"v_lshlrev_b32 v{f+2*i}, 16, v{pk+i}")
        a(f"v_and_b32 v{f+2*i+1}, 0xffff0000, v{pk+i}")
    for i in range(n):
        a(f"v_mul_f32 v{f+i}, v{f+i}, v{vvar}")
    for i in range(n // 2):
        a(f"v_cvt_pk_bf16_f32 v{pk+i}, v{f+2*i}, v{f+2*i+1}")


def build_k0():
    NCV, NLN, NWB, NPF = 144, 256, 288, (16 if os.environ.get('CPF', '1') == '1' else 0)
    NSP = 128 if os.environ.get("K0SP", "1") == "1" else 0
    k = Kernel("k0_prep_kernel", NCV + NLN + NWB + NPF + NSP, 256, 36864, 64)
    a = k.a
    pf = Prof(a, bool(PROF), 0)
    pf.stamp()
    a(f"""
    s_cmp_lt_u32 s2, {NPF}
    s_cbranch_scc1 K0_CPF
    s_sub_u32 s2, s2, {NPF}
    s_cmp_ge_u32 s2, {NCV+NLN+NWB}
    s_cbranch_scc1 K0_SP
    s_load_dwordx4 s[4:7], s[0:1], {KA_X}
    s_load_dwordx2 s[24:25], s[0:1], {KA_WIN}
    s_load_dwordx2 s[26:27], s[0:1], {KA_WS}
    v_and_b32 v1, 63, v0
    v_lshrrev_b32 v2, 6, v0
    s_waitcnt lgkmcnt(0)
    """)
    pf.stamp()
    srd(a, 8, 4, SZ_X)
    srd(a, 12, 6, SZ_WQKV)
    srd(a, 16, 24, SZ_WIN)
    srd(a, 20, 26, WS_USED)
    a(f"""
    s_cmp_ge_u32 s2, {NCV}
    s_cbranch_scc1 K0_NOTCV
    s_lshr_b32 s28, s2, 3             ; kp
    s_and_b32 s29, s2, 7              ; q
    v_readfirstlane_b32 s30, v2       ; wave
    s_mul_i32 s31, s28, {32*4*FH}
    s_mul_i32 s32, s29, 576
    s_add_u32 s31, s31, s32
    s_mul_i32 s33, s30, 9216
    s_mul_i32 s34, s30, {8*4*FH}
    s_add_u32 s31, s31, s34
    """)
    for i in range(9):
        a(f"""
        v_add_u32 v3, {64*i}, v1
        v_mul_u32_u24 v4, 1821, v3
        v_lshrrev_b32 v4, 16, v4
        v_mul_u32_u24 v5, 36, v4
        v_sub_u32 v5, v3, v5              ; chunk
        v_mul_u32_u24 v4, {2*FH}, v4
        v_lshl_add_u32 v4, v5, 4, v4
        s_add_u32 m0, s33, {1024*i}
        buffer_load_dwordx4 v4, s[16:19], s31 offen{NT} lds
        """)
    a(f"""
    s_lshr_b32 s35, s30, 1
    s_and_b32 s36, s30, 1
    s_lshl_b32 s37, s29, 1
    s_add_u32 s42, s37, s35           ; group
    s_mul_i32 s37, s35, 288
    v_lshlrev_b32 v7, 4, v1
    s_cmp_lg_u32 s36, 0
    s_cbranch_scc1 K0_CVZ1
    v_lshrrev_b32 v3, 4, v1
    v_bfe_u32 v4, v1, 2, 2
    v_lshl_add_u32 v3, v3, 3, v4
    v_mul_u32_u24 v3, 1152, v3
    s_add_u32 s37, s37, 576
    v_add_u32 v3, s37, v3
    v_and_b32 v4, 3, v1
    v_lshl_add_u32 v6, v4, 3, v3
    v_lshl_add_u32 v5, v4, 4, v3
    v_bfe_u32 v4, v1, 1, 1
    v_lshl_add_u32 v5, v4, 3, v5      ; parity 0
    v_xor_b32 v46, 8, v5              ; parity 1
    s_mul_i32 s37, s42, {WZG}
    s_mul_i32 s38, s28, 9216
    s_add_u32 s39, s37, s38
    s_add_u32 s39, s39, {WZ}
    s_add_u32 s40, s39, 4096
    s_add_u32 s41, s39, 8192
    s_waitcnt vmcnt(0)
    s_barrier
    """)
    for t in range(9):
        reg, off = ((5 if t % 2 == 0 else 46), 64 * (t // 2)) if t < 8 else (6, 256)
        a(f"ds_read_b64_tr_b16 v[{8+4*t}:{9+4*t}], v{reg} offset:{off}")
        a(f"ds_read_b64_tr_b16 v[{10+4*t}:{11+4*t}], v{reg} offset:{off + 4*1152}")
    for t in range(9):
        a(f"s_waitcnt lgkmcnt({min(15, 2*(8-t))})")
        a(f"buffer_store_dwordx4 v[{8+4*t}:{11+4*t}], v7, s[20:23], s{39 + t // 4} offen offset:{1024*(t % 4)}{SC}")
    a(f"""
    s_branch K0_CVEND
    K0_CVZ1:
    v_lshrrev_b32 v3, 5, v1
    v_bfe_u32 v4, v1, 2, 2
    v_lshl_add_u32 v3, v3, 3, v4
    v_mul_u32_u24 v3, 1152, v3
    v_add_u32 v3, s37, v3
    v_and_b32 v4, 1, v1
    v_lshl_add_u32 v3, v4, 4, v3
    v_bfe_u32 v4, v1, 1, 1
    v_lshl_add_u32 v6, v4, 3, v3      ; mixed (+256)
    v_bfe_u32 v4, v1, 4, 1
    v_lshl_add_u32 v5, v4, 5, v6
    s_mul_i32 s37, s42, {WQG}
    s_lshl_b32 s38, s28, 14
    s_add_u32 s39, s37, s38
    s_add_u32 s39, s39, {WQ + 4096}
    s_add_u32 s40, s39, 8192
    s_sub_u32 s41, s39, 1024
    s_sub_u32 s43, s40, 1024
    s_waitcnt vmcnt(0)
    s_barrier
    """)
    lst = [(ks, T) for ks in range(2) for T in range(5)]
    for i, (ks, T) in enumerate(lst):
        reg, off = (5, 64 * T) if T < 4 else (6, 256)
        off += ks * 16 * 1152
        a(f"ds_read_b64_tr_b16 v[{8+4*i}:{9+4*i}], v{reg} offset:{off}")
        a(f"ds_read_b64_tr_b16 v[{10+4*i}:{11+4*i}], v{reg} offset:{off + 4*1152}")
    a("s_waitcnt lgkmcnt(0)")
    for i, (ks, T) in enumerate(lst):
        if T < 4:
            a(f"buffer_store_dwordx4 v[{8+4*i}:{11+4*i}], v7, s[20:23], s{39 + ks} offen offset:{1024*T}{SC}")
    a("s_mov_b32 exec_lo, 0xffff0000\ns_mov_b32 exec_hi, 0xffff0000")
    for i, (ks, T) in enumerate(lst):
        if T == 4:
            a(f"buffer_store_dwordx4 v[{8+4*i}:{11+4*i}], v7, s[20:23], s{41 if ks == 0 else 43} offen{SC}")
    a("K0_CVEND:")
    pf.stamp()
    pf.dump(20, 4)
    pf.n -= 2
    a(f"""
    s_endpgm
    K0_NOTCV:
    s_cmp_ge_u32 s2, {NCV+NLN}
    s_cbranch_scc1 K0_WB
    v_lshrrev_b32 v3, 5, v1
    v_lshl_add_u32 v3, v2, 1, v3
    s_sub_u32 s28, s2, {NCV}
    s_lshl_b32 s28, s28, 3
    v_add_u32 v3, s28, v3            ; row
    v_and_b32 v4, 31, v1             ; c0
    v_mul_u32_u24 v5, 1152, v3
    v_lshl_add_u32 v5, v4, 4, v5
    """)
    for i in range(12):
        a(f"v_mov_b32 v{8+i}, 0")
    a(f"""
    s_mov_b32 s30, 0x00ffffff
    s_mov_b32 s31, 0x00ffffff
    s_mov_b64 exec, s[30:31]
    buffer_load_dwordx4 v[8:11], v5, s[8:11], 0 offen{NT2}
    buffer_load_dwordx4 v[12:15], v5, s[8:11], 0 offen offset:384{NT2}
    buffer_load_dwordx4 v[16:19], v5, s[8:11], 0 offen offset:768{NT2}
    s_mov_b64 exec, -1
    v_lshlrev_b32 v6, 2, v0
    v_mov_b32 v7, -1.0
    s_lshl_b32 s29, s28, 7
    s_add_u32 s29, s29, {STT}
    buffer_store_dword v7, v6, s[20:23], s29 offen
    s_cmp_ge_u32 s28, {40*8}
    s_cbranch_scc1 K0_NOFLG
    v_mov_b32 v7, 0
    s_add_u32 s29, s29, {FLG - STT}
    buffer_store_dword v7, v6, s[20:23], s29 offen
    s_waitcnt vmcnt(0)
    K0_NOFLG:
    v_lshrrev_b32 v6, 5, v3
    v_mul_u32_u24 v6, 36, v6
    v_lshrrev_b32 v7, 1, v4
    v_add_u32 v6, v6, v7
    v_lshlrev_b32 v6, 10, v6
    v_and_b32 v7, 1, v4
    v_lshlrev_b32 v7, 5, v7
    v_and_b32 v20, 31, v3
    v_add_u32 v7, v7, v20
    v_lshl_add_u32 v6, v7, 4, v6
    s_waitcnt vmcnt(1)
    """)
    F = 24
    pf.stamp()
    for i in range(12):
        a(f"v_lshlrev_b32 v{F+2*i}, 16, v{8+i}")
        a(f"v_and_b32 v{F+2*i+1}, 0xffff0000, v{8+i}")
    a(f"v_add_f32 v50, v{F}, v{F+1}")
    a(f"v_add_f32 v51, v{F+2}, v{F+3}")
    for i in range(4, 24, 2):
        a(f"v_add_f32 v50, v50, v{F+i}")
        a(f"v_add_f32 v51, v51, v{F+i+1}")
    a("v_add_f32 v50, v50, v51")
    reduce16(a, 50, 52)
    reduce_x16(a, 50, 52)
    a(f"v_mul_f32 v50, {fbits(1.0/576)}, v50")
    a("v_mov_b32 v51, 0\nv_mov_b32 v53, 0\ns_mov_b64 exec, s[30:31]")
    for i in range(24):
        a(f"v_sub_f32 v52, v{F+i}, v50")
        a(f"v_fmac_f32 v{51 if i % 2 == 0 else 53}, v52, v52")
    a("s_mov_b64 exec, -1\nv_add_f32 v51, v51, v53")
    reduce16(a, 51, 52)
    reduce_x16(a, 51, 52)
    a(f"v_mul_f32 v51, {fbits(1.0/576)}, v51")
    ln_finish(a, F, 24, 50, 51, 52, 8)
    a(f"""
    s_mov_b64 exec, s[30:31]
    s_mov_b32 s32, {XF}
    s_mov_b32 s33, {XF + 12*1024}
    s_mov_b32 s34, {XF + 24*1024}
    buffer_store_dwordx4 v[8:11], v6, s[20:23], s32 offen
    buffer_store_dwordx4 v[12:15], v6, s[20:23], s33 offen
    buffer_store_dwordx4 v[16:19], v6, s[20:23], s34 offen
    """)
    pf.dump(20, 4)
    pf.n -= 2
    a("s_endpgm")
    a.label("K0_WB")
    a(f"""
    s_sub_u32 s28, s2, {NCV+NLN}      ; j in 0..287
    s_and_b32 s29, s28, 7
    s_lshl_b32 s29, s29, 1
    s_bfe_u32 s30, s28, 0x10003
    s_add_u32 s29, s29, s30           ; g
    s_lshr_b32 s30, s28, 4
    v_readfirstlane_b32 s31, v2       ; T = wave
    v_and_b32 v3, 31, v1              ; m
    v_lshrrev_b32 v4, 5, v1           ; h
    v_and_b32 v5, 19, v3
    v_and_b32 v6, 4, v3
    v_lshlrev_b32 v6, 1, v6
    v_or_b32 v5, v5, v6
    v_and_b32 v6, 8, v3
    v_lshrrev_b32 v6, 1, v6
    v_or_b32 v5, v5, v6               ; phi
    s_lshl_b32 s32, s30, 5
    v_lshlrev_b32 v6, 3, v4
    v_add_u32 v6, s32, v6             ; k row
    s_mul_i32 s33, s29, 36            ; 36 g
    """)
    for i in range(16):
        a(f"v_mov_b32 v{16+i}, 0")
    a(f"""
    s_cmp_eq_u32 s31, 3
    s_cbranch_scc1 K0_WB3
    s_mul_i32 s34, s31, 576
    s_add_u32 s34, s34, s33
    v_lshrrev_b32 v7, 4, v5
    v_mul_u32_u24 v7, 18, v7
    v_and_b32 v8, 15, v5
    v_add3_u32 v7, v7, v8, s34
    s_branch K0_WBQ
    K0_WB3:
    v_lshrrev_b32 v10, 3, v5
    v_bfe_u32 v11, v5, 1, 2
    v_and_b32 v12, 1, v5
    v_mul_u32_u24 v7, 576, v11
    v_mul_u32_u24 v10, 18, v10
    v_add3_u32 v7, v7, v10, v12
    v_add3_u32 v7, v7, s33, 16
    v_cmp_gt_u32 vcc, 16, v5
    v_cmp_ne_u32 s[38:39], 3, v11
    s_and_b64 vcc, vcc, s[38:39]
    s_mov_b64 exec, vcc
    K0_WBQ:
    v_mul_u32_u24 v9, {3*D}, v6
    v_add_lshl_u32 v9, v9, v7, 1
    """)
    for ks in range(2):
        for j in range(8):
            r = 16 * ks + j
            a(f"s_mov_b32 s38, {r * 3 * D * 2}")
            a(f"buffer_load_ushort v{(24 if j % 2 else 16)+4*ks+j//2}, v9, s[12:15], s38 offen{NT2}")
    a(f"""
    s_mov_b64 exec, -1
    s_mul_i32 s34, s29, {WQG}
    s_lshl_b32 s35, s30, 4
    s_add_u32 s35, s35, s31
    s_lshl_b32 s35, s35, 10
    s_add_u32 s34, s34, s35
    s_add_u32 s34, s34, {WQ}
    s_add_u32 s35, s34, 8192
    v_lshlrev_b32 v9, 4, v1
    s_waitcnt vmcnt(0)
    """)
    pf.stamp()
    for i in range(8):
        a(f"v_lshl_or_b32 v{16+i}, v{24+i}, 16, v{16+i}")
    a(f"""
    s_cmp_eq_u32 s31, 3
    s_cselect_b32 exec_lo, 0xffff, -1
    s_cselect_b32 exec_hi, 0xffff, -1
    buffer_store_dwordx4 v[16:19], v9, s[20:23], s34 offen{SC}
    buffer_store_dwordx4 v[20:23], v9, s[20:23], s35 offen{SC}
    """)
    pf.dump(20, 4)
    a(f"""
    K0_END:
    s_endpgm
    K0_SP:
    s_sub_u32 s2, s2, {NCV+NLN+NWB}
    s_cmp_ge_u32 s2, {NSP}
    s_cbranch_scc1 K0_END
    s_load_dwordx2 s[4:5], s[0:1], {KA_WSP}
    v_lshlrev_b32 v1, 7, v0
    s_lshl_b32 s12, s2, 16
    s_add_u32 s13, s12, 32768
    s_waitcnt lgkmcnt(0)
    """)
    srd(a, 8, 4, SZ_WSP)
    a("""
    buffer_load_dword v2, v1, s[8:11], s12 offen
    buffer_load_dword v3, v1, s[8:11], s13 offen
    """)
    if os.environ.get("K0WO", "0") == "1":
        a(f"""
        s_load_dwordx2 s[4:5], s[0:1], {KA_WOUT}
        s_load_dwordx2 s[6:7], s[0:1], {KA_WO}
        s_mul_i32 s20, s2, {162*128}
        s_mul_i32 s21, s2, {41*128}
        s_waitcnt lgkmcnt(0)
        """)
        srd(a, 12, 4, SZ_WOUT)
        srd(a, 16, 6, SZ_WO)
        a("""
        v_cmp_gt_u32 vcc, 162, v0
        s_and_saveexec_b64 s[22:23], vcc
        s_cbranch_execz K0_END
        buffer_load_dword v4, v1, s[12:15], s20 offen
        v_cmp_gt_u32 vcc, 41, v0
        s_and_b64 exec, exec, vcc
        s_cbranch_execz K0_END
        buffer_load_dword v5, v1, s[16:19], s21 offen
        """)
    a("""
    s_endpgm
    K0_CPF:
    s_getpc_b64 s[4:5]
    K0_PC:
    s_lshr_b32 s6, s2, 3
    s_lshl_b32 s6, s6, 15
    v_lshlrev_b32 v1, 7, v0
    v_add_u32 v1, s6, v1
    v_min_u32 v1, ALL_CODE_END-K0_PC-4, v1
    global_load_dword v2, v1, s[4:5]
    s_endpgm
    """)
    return k
```

```python
from common import *

ZSL = 9216
NRS = 8


def idmap():
    m = int(os.environ.get("MAP", "0"))
    if m == 0:
        return """s_and_b32 s30, s28, 1
    s_lshl_b32 s30, s30, 3
    s_and_b32 s31, s29, 7
    s_add_u32 s30, s30, s31
    s_lshr_b32 s31, s28, 1
    s_lshl_b32 s31, s31, 2
    s_lshr_b32 s32, s29, 3
    s_add_u32 s31, s31, s32"""
    if m == 1:
        return """s_and_b32 s30, s29, 15
    s_lshl_b32 s31, s28, 1
    s_lshr_b32 s32, s29, 4
    s_add_u32 s31, s31, s32"""
    if m == 2:
        return """s_and_b32 s30, s28, 3
    s_lshl_b32 s30, s30, 2
    s_and_b32 s31, s29, 3
    s_add_u32 s30, s30, s31
    s_lshr_b32 s31, s28, 2
    s_lshl_b32 s31, s31, 3
    s_lshr_b32 s32, s29, 2
    s_add_u32 s31, s31, s32"""


def ids(a, sid, tmp):
    a(f"""
    v_and_b32 v1, 63, v0
    v_lshrrev_b32 v{tmp}, 6, v0
    s_and_b32 s28, {sid}, 7
    s_lshr_b32 s29, {sid}, 3
    {idmap()}
    v_readfirstlane_b32 s32, v{tmp}   ; wave
    v_lshlrev_b32 v2, 4, v1
    s_lshl_b32 s33, s30, 2
    s_add_u32 s33, s33, s32
    """)


class ZPass:
    NS = 18

    def __init__(self, a, w, sws, half, ACC, XR, NXS, WR, vR2, vU, sb=34):
        self.a, self.w, self.sws, self.half = a, w, sws, half
        self.ACC, self.XR, self.NXS, self.WR, self.vR2, self.vU, self.sb = ACC, XR, NXS, WR, vR2, vU, sb
        self.nx = self.nw = 0
        self.xfree, self.wfree = NXS, NRS
        self.q = []
        self.done = []

    def setup(self, t):
        a, sb = self.a, self.sb
        a(f"""
        v_and_b32 v{t}, 15, v1
        v_lshrrev_b32 v{self.vU}, 4, v1
        v_lshlrev_b32 v{self.vU}, 9, v{self.vU}
        v_lshl_add_u32 v{self.vU}, v{t}, 4, v{self.vU}
        v_add_u32 v{self.vR2}, {4*ZSL}, v2
        s_mul_i32 s{sb}, s33, {36*1024}
        s_add_u32 s{sb}, s{sb}, {XF}
        s_lshl_b32 s{sb+1}, s32, 11
        s_lshl_b32 s{sb+2}, s32, 8
        s_add_u32 s{sb+2}, s{sb+2}, 8192
        s_mul_i32 s{sb+3}, s31, {WZG}
        s_add_u32 s{sb+3}, s{sb+3}, {WZ}
        s_add_u32 s{sb+4}, s{sb+3}, s{sb+2}
        s_add_u32 s{sb+3}, s{sb+3}, s{sb+1}
        """)

    def _iv(self, text, tag):
        self.w.ivm(text, tag); self.done.append(tag)

    def ops_x(self, n):
        a, sb, sws = self.a, self.sb, self.sws
        x = self.XR + 8 * (n % self.NXS)
        def f2():
            self._iv(f"buffer_load_dwordx4 v[{x+4}:{x+7}], v{self.vU}, s[{sws}:{sws+3}], s{sb} offen offset:{(n%2)*2048+256}", ("x", n))
            if n % 2:
                a(f"s_add_u32 s{sb}, s{sb}, 4096")
        return [lambda: self._iv(f"buffer_load_dwordx4 v[{x}:{x+3}], v{self.vU}, s[{sws}:{sws+3}], s{sb} offen offset:{(n%2)*2048}", ("x", n)), f2]

    def ops_w(self, n):
        a, sb, sws = self.a, self.sb, self.sws
        sl = n % NRS
        def f1():
            a(f"s_add_u32 m0, s{sb+1}, {sl*ZSL}")
            self._iv(f"buffer_load_dwordx4 v2, s[{sws}:{sws+3}], s{sb+3} offen lds", ("w", n))
        def f2():
            self._iv(f"buffer_load_dwordx4 v2, s[{sws}:{sws+3}], s{sb+3} offen offset:1024 lds", ("w", n))
            a(f"s_add_u32 s{sb+3}, s{sb+3}, {ZSL}")
        def f3():
            a(f"s_add_u32 m0, s{sb+2}, {sl*ZSL}\ns_mov_b64 exec, 0xffff")
            self._iv(f"buffer_load_dwordx4 v2, s[{sws}:{sws+3}], s{sb+4} offen lds", ("w", n))
            a(f"s_mov_b64 exec, -1\ns_add_u32 s{sb+4}, s{sb+4}, {ZSL}")
        return [f1, f2, f3]

    def refill(self, limit):
        while True:
            cx = self.nx < min(self.NS, self.xfree, limit + 1)
            cw = self.nw < min(self.NS, self.wfree, limit + 1)
            if cx and (not cw or self.nx <= self.nw):
                self.q.extend(self.ops_x(self.nx)); self.nx += 1
            elif cw:
                self.q.extend(self.ops_w(self.nw)); self.nw += 1
            else:
                break

    def pump(self, k=1):
        for _ in range(k):
            if self.q:
                self.q.pop(0)()

    def prefetch(self, limit):
        self.refill(limit)
        self.pump(len(self.q))

    def rd(self, gt):
        n, tau = divmod(gt, 9)
        sl = n % NRS
        reg, off = (2, sl * ZSL) if sl < 4 else (self.vR2, (sl - 4) * ZSL)
        d = self.WR + 4 * (gt % 6)
        self.w.ilg(f"ds_read_b128 v[{d}:{d+3}], v{reg} offset:{off + tau*1024}", ("z", gt))

    def sync(self, n, pre=None, post=None):
        m = min(n + 1, self.NS - 1)
        self.refill(m)
        while self.done.count(("w", m)) < 3:
            assert self.q
            self.pump()
        self.w.wvm(("w", m))
        if pre:
            pre()
        self.a("s_barrier")
        if post:
            post()

    def run(self, LA, hooks=None):
        a, w, NS = self.a, self.w, self.NS
        hooks = hooks or {}
        AH = 5
        self.sync(0)
        for gt in range(AH):
            self.rd(gt)
        for n in range(NS):
            self.xfree = n + self.NXS
            self.refill(n + LA)
            x = self.XR + 8 * (n % self.NXS)
            while self.done.count(("x", n)) < 2:
                self.pump()
            w.wvm(("x", n))
            for tau in range(9):
                gt = 9 * n + tau
                nx = gt + AH
                if nx % 18 == 0 and nx < 9 * NS:
                    self.sync(nx // 9, *hooks.get(nx // 9, (None, None)))
                    self.wfree = n + NRS
                    self.refill(n + LA)
                w.wlg(("z", gt))
                acc = self.ACC + 8 * tau
                wf = self.WR + 4 * (gt % 6)
                for b in range(2):
                    d = acc + 4 * b
                    c = "0" if n == 0 else f"v[{d}:{d+3}]"
                    a(f"v_mfma_f32_16x16x32_bf16 v[{d}:{d+3}], v[{wf}:{wf+3}], v[{x+4*b}:{x+4*b+3}], {c}")
                    if b == 0 and nx < 9 * NS:
                        self.rd(nx)
                if tau % 3 != 2:
                    self.pump()
        assert not self.q


def flag_store(a, L, sws, saddr, v0_, v1_):
    a(f"""
    s_cmp_lg_u32 s32, 0
    s_cbranch_scc1 {L}
    v_mov_b32 v{v0_}, 0
    v_mov_b32 v{v1_}, 1
    s_mov_b64 exec, 1
    buffer_store_dword v{v1_}, v{v0_}, s[{sws}:{sws+3}], s{saddr} offen sc1
    s_mov_b64 exec, -1
    {L}:
    """)


def z2_body(a, pf, sid, sws, L="ZG"):
    w = Waits(a)
    A2 = 88
    TMP = 232
    S0, Q0, S1, Q1 = 248, 249, 250, 251
    ids(a, sid, TMP)
    zp = ZPass(a, w, sws, 0, A2, 16, 8, 160, 3, 12)
    zp.setup(TMP)
    zp.prefetch(3)
    vSt, vSr, vZ, vZ9, vGC2 = 6, 7, 8, 9, 10
    a(f"""
    v_and_b32 v4, 15, v1              ; r
    v_lshrrev_b32 v5, 4, v1           ; g
    s_mov_b32 s40, {fbits(GC1)}
    v_mov_b32 v{vGC2}, {fbits(GC2)}
    v_and_b32 v{vSt}, 31, v1
    v_lshlrev_b32 v{vSt}, 3, v{vSt}
    v_lshlrev_b32 v{vSr}, 10, v5
    v_lshl_add_u32 v{vSr}, v4, 3, v{vSr}
    s_lshl_b32 s45, s33, 12
    s_add_u32 s45, s45, {STT}
    s_lshl_b32 s46, s31, 8
    s_add_u32 s46, s46, s45
    v_and_b32 v{TMP}, 1, v5
    v_lshlrev_b32 v{TMP+1}, 2, v{5 if int(os.environ.get("G32", "0")) else TMP}
    v_xor_b32 v{TMP+1}, v{TMP+1}, v4
    v_lshlrev_b32 v{vZ}, 9, v5
    v_lshl_add_u32 v{vZ}, v{TMP+1}, 4, v{vZ}
    v_lshrrev_b32 v{TMP+2}, 1, v5
    v_lshlrev_b32 v{TMP+1}, 2, v{TMP+2}
    v_xor_b32 v{TMP+1}, v{TMP+1}, v4
    v_lshlrev_b32 v{vZ9}, 9, v{TMP+2}
    v_lshl_add_u32 v{vZ9}, v{TMP+1}, 4, v{vZ9}
    v_lshl_add_u32 v{vZ9}, v{TMP}, 3, v{vZ9}
    s_lshl_b32 s48, s31, 6
    s_add_u32 s48, s48, s33
    s_mul_i32 s48, s48, 9216
    s_add_u32 s48, s48, {Z2N}
    s_add_u32 s49, s48, 4096
    s_add_u32 s50, s48, 8192
    s_mov_b32 s52, 0xffff0000
    s_mov_b32 s53, 0xffff0000
    """)
    for r in (S0, Q0, S1, Q1):
        a(f"v_mov_b32 v{r}, 0")
    pf.stamp()
    zp.run(int(os.environ.get("ZLA", "6")))
    pf.stamp()
    a(f"s_setprio {int(os.environ.get('ZEP', '2'))}")
    T8 = [TMP + i for i in range(16)]
    for tau in range(9):
        base = A2 + 8 * tau
        a.ext(gelu_group(list(range(base, base + 8)), T8[8 * (tau % 2):8 * (tau % 2) + 8], 40, vGC2))
        for i in range(8):
            s_, q_ = (S0, Q0) if i < 4 else (S1, Q1)
            a(f"v_add_f32 v{s_}, v{s_}, v{base+i}\nv_fmac_f32 v{q_}, v{base+i}, v{base+i}")
    for r in (S0, Q0, S1, Q1):
        a(f"v_mov_b32 v{r+4}, v{r}")
    for r in (S0, Q0, S1, Q1):
        a(f"v_permlane16_swap_b32 v{r}, v{r+4}")
    for r in (S0, Q0, S1, Q1):
        a(f"v_add_f32 v{r}, v{r}, v{r+4}")
    SR = TMP
    sl_ = [f"buffer_load_dwordx2 v[{SR+8*b+2*i}:{SR+8*b+2*i+1}], v{vSr}, s[{sws}:{sws+3}], s45 offen offset:{256*i+128*b} sc1"
           for b in range(2) for i in range(4)]
    a(f"""
    v_cndmask_b32 v{S0}, v{S0}, v{S1}, s[52:53]
    v_cndmask_b32 v{Q0}, v{Q0}, v{Q1}, s[52:53]
    v_mov_b32 v{S1}, v{S0}
    v_mov_b32 v{Q1}, v{Q0}
    v_permlane32_swap_b32 v{S0}, v{S1}
    v_permlane32_swap_b32 v{Q0}, v{Q1}
    v_add_f32 v{S0}, v{S0}, v{S1}
    v_add_f32 v{Q0}, v{Q0}, v{Q1}
    s_mov_b32 exec_hi, 0
    buffer_store_dwordx2 v[{S0}:{Q0}], v{vSt}, s[{sws}:{sws+3}], s46 offen sc1
    s_mov_b32 exec_hi, -1
    s_mov_b32 s47, 0
    s_waitcnt vmcnt(0)
    """)
    pf.stamp()
    a.label(f"{L}_POLL")
    a.ext(sl_)
    a(f"""
    s_waitcnt vmcnt(0)
    v_min3_f32 v{S1}, v{SR+1}, v{SR+3}, v{SR+5}
    v_min3_f32 v{S1}, v{S1}, v{SR+7}, v{SR+9}
    v_min3_f32 v{S1}, v{S1}, v{SR+11}, v{SR+13}
    v_min_f32 v{S1}, v{S1}, v{SR+15}
    v_cmp_gt_f32 vcc, 0, v{S1}
    s_cmp_eq_u64 vcc, 0
    s_cbranch_scc1 {L}_GOT
    s_add_u32 s47, s47, 1
    s_cmp_ge_u32 s47, 0x40000
    s_cbranch_scc1 {L}_GOT
    s_sleep {int(os.environ.get('SSL', '6'))}
    s_branch {L}_POLL
    {L}_GOT:
    """)
    pf.stamp()
    s4 = [SR, SR + 1, SR + 8, SR + 9]
    for i in range(1, 4):
        for r in s4:
            a(f"v_add_f32 v{r}, v{r}, v{r+2*i}")
    for sw in ("16", "32"):
        for r in s4:
            a(f"v_mov_b32 v{r+2}, v{r}")
        for r in s4:
            a(f"v_permlane{sw}_swap_b32 v{r}, v{r+2}")
        for r in s4:
            a(f"v_add_f32 v{r}, v{r}, v{r+2}")
    seq = """v_mul_f32 v{m}, {c}, v{m}
    v_mul_f32 v{v}, {c}, v{v}
    v_fma_f32 v{v}, -v{m}, v{m}, v{v}
    v_max_f32 v{v}, 0, v{v}
    v_cvt_pk_bf16_f32 v{m}, v{m}, v{m}
    v_cvt_pk_bf16_f32 v{v}, v{v}, v{v}
    v_lshlrev_b32 v{m}, 16, v{m}
    v_lshlrev_b32 v{v}, 16, v{v}
    v_add_f32 v{v}, {e}, v{v}
    v_cvt_pk_bf16_f32 v{v}, v{v}, v{v}
    v_lshlrev_b32 v{v}, 16, v{v}
    v_sqrt_f32 v{v}, v{v}
    v_cvt_pk_bf16_f32 v{v}, v{v}, v{v}
    v_lshlrev_b32 v{v}, 16, v{v}
    v_rcp_f32 v{v}, v{v}
    v_mul_f32 v{m}, -v{m}, v{v}""".split("\n")
    for ln in seq:
        for b in range(2):
            a(ln.format(m=SR + 8 * b, v=SR + 8 * b + 1, c=fbits(1.0 / FH), e=fbits(1e-5)))
    for P in range(5):
        for b in range(2):
            src = [A2 + 8 * (2 * P) + 4 * b + i for i in range(4)]
            if P < 4:
                src += [A2 + 8 * (2 * P + 1) + 4 * b + i for i in range(4)]
            for r in src:
                a(f"v_fma_f32 v{r}, v{r}, v{SR+8*b+1}, v{SR+8*b}")
            pk = src[0]
            for i in range(len(src) // 2):
                a(f"v_cvt_pk_bf16_f32 v{pk+i}, v{src[2*i]}, v{src[2*i+1]}")
            if P < 4:
                a(f"buffer_store_dwordx4 v[{pk}:{pk+3}], v{vZ}, s[{sws}:{sws+3}], s{48 + P // 2} offen offset:{(P % 2) * 2048 + b * 256} sc1")
            else:
                a(f"buffer_store_dwordx2 v[{pk}:{pk+1}], v{vZ9}, s[{sws}:{sws+3}], s50 offen offset:{b * 256} sc1")
    pf.stamp()
```

```python
from common import *

NT = " nt" if os.environ.get("NT0", "1") == "1" else ""
NT2 = " nt" if os.environ.get("NTX", "0") == "1" else ""
SC = " sc1" if os.environ.get("SC1", "0") == "1" else ""

def ln_finish(a, f, n, vmean, vvar, t, pk):
    round_bf16(a, vmean)
    round_bf16(a, vvar)
    a(f"v_add_f32 v{vvar}, {fbits(1e-5)}, v{vvar}")
    round_bf16(a, vvar)
    a(f"v_sqrt_f32 v{vvar}, v{vvar}")
    round_bf16(a, vvar)
    a(f"v_rcp_f32 v{vvar}, v{vvar}")
    for i in range(n):
        a(f"v_sub_f32 v{f+i}, v{f+i}, v{vmean}")
    for i in range(n // 2):
        a(f"v_cvt_pk_bf16_f32 v{pk+i}, v{f+2*i}, v{f+2*i+1}")
    for i in range(n // 2):
        a(f"v_lshlrev_b32 v{f+2*i}, 16, v{pk+i}")
        a(f"v_and_b32 v{f+2*i+1}, 0xffff0000, v{pk+i}")
    for i in range(n):
        a(f"v_mul_f32 v{f+i}, v{f+i}, v{vvar}")
    for i in range(n // 2):
        a(f"v_cvt_pk_bf16_f32 v{pk+i}, v{f+2*i}, v{f+2*i+1}")


def build_k0():
    NCV, NLN, NWB, NPF = 144, 256, 288, (16 if os.environ.get('CPF', '1') == '1' else 0)
    NSP = 128 if os.environ.get("K0SP", "1") == "1" else 0
    k = Kernel("k0_prep_kernel", NCV + NLN + NWB + NPF + NSP, 256, 36864, 64)
    a = k.a
    pf = Prof(a, bool(PROF), 0)
    pf.stamp()
    a(f"""
    s_cmp_lt_u32 s2, {NPF}
    s_cbranch_scc1 K0_CPF
    s_sub_u32 s2, s2, {NPF}
    s_cmp_ge_u32 s2, {NCV+NLN+NWB}
    s_cbranch_scc1 K0_SP
    s_load_dwordx4 s[4:7], s[0:1], {KA_X}
    s_load_dwordx2 s[24:25], s[0:1], {KA_WIN}
    s_load_dwordx2 s[26:27], s[0:1], {KA_WS}
    v_and_b32 v1, 63, v0
    v_lshrrev_b32 v2, 6, v0
    s_waitcnt lgkmcnt(0)
    """)
    pf.stamp()
    srd(a, 8, 4, SZ_X)
    srd(a, 12, 6, SZ_WQKV)
    srd(a, 16, 24, SZ_WIN)
    srd(a, 20, 26, WS_USED)
    a(f"""
    s_cmp_ge_u32 s2, {NCV}
    s_cbranch_scc1 K0_NOTCV
    s_lshr_b32 s28, s2, 3             ; kp
    s_and_b32 s29, s2, 7              ; q
    v_readfirstlane_b32 s30, v2       ; wave
    s_mul_i32 s31, s28, {32*4*FH}
    s_mul_i32 s32, s29, 576
    s_add_u32 s31, s31, s32
    s_mul_i32 s33, s30, 9216
    s_mul_i32 s34, s30, {8*4*FH}
    s_add_u32 s31, s31, s34
    """)
    for i in range(9):
        a(f"""
        v_add_u32 v3, {64*i}, v1
        v_mul_u32_u24 v4, 1821, v3
        v_lshrrev_b32 v4, 16, v4
        v_mul_u32_u24 v5, 36, v4
        v_sub_u32 v5, v3, v5              ; chunk
        v_mul_u32_u24 v4, {2*FH}, v4
        v_lshl_add_u32 v4, v5, 4, v4
        s_add_u32 m0, s33, {1024*i}
        buffer_load_dwordx4 v4, s[16:19], s31 offen{NT} lds
        """)
    a(f"""
    s_lshr_b32 s35, s30, 1
    s_and_b32 s36, s30, 1
    s_lshl_b32 s37, s29, 1
    s_add_u32 s42, s37, s35           ; group
    s_mul_i32 s37, s35, 288
    v_lshlrev_b32 v7, 4, v1
    s_cmp_lg_u32 s36, 0
    s_cbranch_scc1 K0_CVZ1
    v_lshrrev_b32 v3, 4, v1
    v_bfe_u32 v4, v1, 2, 2
    v_lshl_add_u32 v3, v3, 3, v4
    v_mul_u32_u24 v3, 1152, v3
    s_add_u32 s37, s37, 576
    v_add_u32 v3, s37, v3
    v_and_b32 v4, 3, v1
    v_lshl_add_u32 v6, v4, 3, v3
    v_lshl_add_u32 v5, v4, 4, v3
    v_bfe_u32 v4, v1, 1, 1
    v_lshl_add_u32 v5, v4, 3, v5      ; parity 0
    v_xor_b32 v46, 8, v5              ; parity 1
    s_mul_i32 s37, s42, {WZG}
    s_mul_i32 s38, s28, 9216
    s_add_u32 s39, s37, s38
    s_add_u32 s39, s39, {WZ}
    s_add_u32 s40, s39, 4096
    s_add_u32 s41, s39, 8192
    s_waitcnt vmcnt(0)
    s_barrier
    """)
    for t in range(9):
        reg, off = ((5 if t % 2 == 0 else 46), 64 * (t // 2)) if t < 8 else (6, 256)
        a(f"ds_read_b64_tr_b16 v[{8+4*t}:{9+4*t}], v{reg} offset:{off}")
        a(f"ds_read_b64_tr_b16 v[{10+4*t}:{11+4*t}], v{reg} offset:{off + 4*1152}")
    for t in range(9):
        a(f"s_waitcnt lgkmcnt({min(15, 2*(8-t))})")
        a(f"buffer_store_dwordx4 v[{8+4*t}:{11+4*t}], v7, s[20:23], s{39 + t // 4} offen offset:{1024*(t % 4)}{SC}")
    a(f"""
    s_branch K0_CVEND
    K0_CVZ1:
    v_lshrrev_b32 v3, 5, v1
    v_bfe_u32 v4, v1, 2, 2
    v_lshl_add_u32 v3, v3, 3, v4
    v_mul_u32_u24 v3, 1152, v3
    v_add_u32 v3, s37, v3
    v_and_b32 v4, 1, v1
    v_lshl_add_u32 v3, v4, 4, v3
    v_bfe_u32 v4, v1, 1, 1
    v_lshl_add_u32 v6, v4, 3, v3      ; mixed (+256)
    v_bfe_u32 v4, v1, 4, 1
    v_lshl_add_u32 v5, v4, 5, v6
    s_mul_i32 s37, s42, {WQG}
    s_lshl_b32 s38, s28, 14
    s_add_u32 s39, s37, s38
    s_add_u32 s39, s39, {WQ + 4096}
    s_add_u32 s40, s39, 8192
    s_sub_u32 s41, s39, 1024
    s_sub_u32 s43, s40, 1024
    s_waitcnt vmcnt(0)
    s_barrier
    """)
    lst = [(ks, T) for ks in range(2) for T in range(5)]
    for i, (ks, T) in enumerate(lst):
        reg, off = (5, 64 * T) if T < 4 else (6, 256)
        off += ks * 16 * 1152
        a(f"ds_read_b64_tr_b16 v[{8+4*i}:{9+4*i}], v{reg} offset:{off}")
        a(f"ds_read_b64_tr_b16 v[{10+4*i}:{11+4*i}], v{reg} offset:{off + 4*1152}")
    a("s_waitcnt lgkmcnt(0)")
    for i, (ks, T) in enumerate(lst):
        if T < 4:
            a(f"buffer_store_dwordx4 v[{8+4*i}:{11+4*i}], v7, s[20:23], s{39 + ks} offen offset:{1024*T}{SC}")
    a("s_mov_b32 exec_lo, 0xffff0000\ns_mov_b32 exec_hi, 0xffff0000")
    for i, (ks, T) in enumerate(lst):
        if T == 4:
            a(f"buffer_store_dwordx4 v[{8+4*i}:{11+4*i}], v7, s[20:23], s{41 if ks == 0 else 43} offen{SC}")
    a("K0_CVEND:")
    pf.stamp()
    pf.dump(20, 4)
    pf.n -= 2
    a(f"""
    s_endpgm
    K0_NOTCV:
    s_cmp_ge_u32 s2, {NCV+NLN}
    s_cbranch_scc1 K0_WB
    v_lshrrev_b32 v3, 5, v1
    v_lshl_add_u32 v3, v2, 1, v3
    s_sub_u32 s28, s2, {NCV}
    s_lshl_b32 s28, s28, 3
    v_add_u32 v3, s28, v3            ; row
    v_and_b32 v4, 31, v1             ; c0
    v_mul_u32_u24 v5, 1152, v3
    v_lshl_add_u32 v5, v4, 4, v5
    """)
    for i in range(12):
        a(f"v_mov_b32 v{8+i}, 0")
    a(f"""
    s_mov_b32 s30, 0x00ffffff
    s_mov_b32 s31, 0x00ffffff
    s_mov_b64 exec, s[30:31]
    buffer_load_dwordx4 v[8:11], v5, s[8:11], 0 offen{NT2}
    buffer_load_dwordx4 v[12:15], v5, s[8:11], 0 offen offset:384{NT2}
    buffer_load_dwordx4 v[16:19], v5, s[8:11], 0 offen offset:768{NT2}
    s_mov_b64 exec, -1
    v_lshlrev_b32 v6, 2, v0
    v_mov_b32 v7, -1.0
    s_lshl_b32 s29, s28, 7
    s_add_u32 s29, s29, {STT}
    buffer_store_dword v7, v6, s[20:23], s29 offen
    s_cmp_ge_u32 s28, {40*8}
    s_cbranch_scc1 K0_NOFLG
    v_mov_b32 v7, 0
    s_add_u32 s29, s29, {FLG - STT}
    buffer_store_dword v7, v6, s[20:23], s29 offen
    s_waitcnt vmcnt(0)
    K0_NOFLG:
    v_lshrrev_b32 v6, 5, v3
    v_mul_u32_u24 v6, 36, v6
    v_lshrrev_b32 v7, 1, v4
    v_add_u32 v6, v6, v7
    v_lshlrev_b32 v6, 10, v6
    v_and_b32 v7, 1, v4
    v_lshlrev_b32 v7, 5, v7
    v_and_b32 v20, 31, v3
    v_add_u32 v7, v7, v20
    v_lshl_add_u32 v6, v7, 4, v6
    s_waitcnt vmcnt(1)
    """)
    F = 24
    pf.stamp()
    for i in range(12):
        a(f"v_lshlrev_b32 v{F+2*i}, 16, v{8+i}")
        a(f"v_and_b32 v{F+2*i+1}, 0xffff0000, v{8+i}")
    a(f"v_add_f32 v50, v{F}, v{F+1}")
    a(f"v_add_f32 v51, v{F+2}, v{F+3}")
    for i in range(4, 24, 2):
        a(f"v_add_f32 v50, v50, v{F+i}")
        a(f"v_add_f32 v51, v51, v{F+i+1}")
    a("v_add_f32 v50, v50, v51")
    reduce16(a, 50, 52)
    reduce_x16(a, 50, 52)
    a(f"v_mul_f32 v50, {fbits(1.0/576)}, v50")
    a("v_mov_b32 v51, 0\nv_mov_b32 v53, 0\ns_mov_b64 exec, s[30:31]")
    for i in range(24):
        a(f"v_sub_f32 v52, v{F+i}, v50")
        a(f"v_fmac_f32 v{51 if i % 2 == 0 else 53}, v52, v52")
    a("s_mov_b64 exec, -1\nv_add_f32 v51, v51, v53")
    reduce16(a, 51, 52)
    reduce_x16(a, 51, 52)
    a(f"v_mul_f32 v51, {fbits(1.0/576)}, v51")
    ln_finish(a, F, 24, 50, 51, 52, 8)
    a(f"""
    s_mov_b64 exec, s[30:31]
    s_mov_b32 s32, {XF}
    s_mov_b32 s33, {XF + 12*1024}
    s_mov_b32 s34, {XF + 24*1024}
    buffer_store_dwordx4 v[8:11], v6, s[20:23], s32 offen
    buffer_store_dwordx4 v[12:15], v6, s[20:23], s33 offen
    buffer_store_dwordx4 v[16:19], v6, s[20:23], s34 offen
    """)
    pf.dump(20, 4)
    pf.n -= 2
    a("s_endpgm")
    a.label("K0_WB")
    a(f"""
    s_sub_u32 s28, s2, {NCV+NLN}      ; j in 0..287
    s_and_b32 s29, s28, 7
    s_lshl_b32 s29, s29, 1
    s_bfe_u32 s30, s28, 0x10003
    s_add_u32 s29, s29, s30           ; g
    s_lshr_b32 s30, s28, 4
    v_readfirstlane_b32 s31, v2       ; T = wave
    v_and_b32 v3, 31, v1              ; m
    v_lshrrev_b32 v4, 5, v1           ; h
    v_and_b32 v5, 19, v3
    v_and_b32 v6, 4, v3
    v_lshlrev_b32 v6, 1, v6
    v_or_b32 v5, v5, v6
    v_and_b32 v6, 8, v3
    v_lshrrev_b32 v6, 1, v6
    v_or_b32 v5, v5, v6               ; phi
    s_lshl_b32 s32, s30, 5
    v_lshlrev_b32 v6, 3, v4
    v_add_u32 v6, s32, v6             ; k row
    s_mul_i32 s33, s29, 36            ; 36 g
    """)
    for i in range(16):
        a(f"v_mov_b32 v{16+i}, 0")
    a(f"""
    s_cmp_eq_u32 s31, 3
    s_cbranch_scc1 K0_WB3
    s_mul_i32 s34, s31, 576
    s_add_u32 s34, s34, s33
    v_lshrrev_b32 v7, 4, v5
    v_mul_u32_u24 v7, 18, v7
    v_and_b32 v8, 15, v5
    v_add3_u32 v7, v7, v8, s34
    s_branch K0_WBQ
    K0_WB3:
    v_lshrrev_b32 v10, 3, v5
    v_bfe_u32 v11, v5, 1, 2
    v_and_b32 v12, 1, v5
    v_mul_u32_u24 v7, 576, v11
    v_mul_u32_u24 v10, 18, v10
    v_add3_u32 v7, v7, v10, v12
    v_add3_u32 v7, v7, s33, 16
    v_cmp_gt_u32 vcc, 16, v5
    v_cmp_ne_u32 s[38:39], 3, v11
    s_and_b64 vcc, vcc, s[38:39]
    s_mov_b64 exec, vcc
    K0_WBQ:
    v_mul_u32_u24 v9, {3*D}, v6
    v_add_lshl_u32 v9, v9, v7, 1
    """)
    for ks in range(2):
        for j in range(8):
            r = 16 * ks + j
            a(f"s_mov_b32 s38, {r * 3 * D * 2}")
            a(f"buffer_load_ushort v{(24 if j % 2 else 16)+4*ks+j//2}, v9, s[12:15], s38 offen{NT2}")
    a(f"""
    s_mov_b64 exec, -1
    s_mul_i32 s34, s29, {WQG}
    s_lshl_b32 s35, s30, 4
    s_add_u32 s35, s35, s31
    s_lshl_b32 s35, s35, 10
    s_add_u32 s34, s34, s35
    s_add_u32 s34, s34, {WQ}
    s_add_u32 s35, s34, 8192
    v_lshlrev_b32 v9, 4, v1
    s_waitcnt vmcnt(0)
    """)
    pf.stamp()
    for i in range(8):
        a(f"v_lshl_or_b32 v{16+i}, v{24+i}, 16, v{16+i}")
    a(f"""
    s_cmp_eq_u32 s31, 3
    s_cselect_b32 exec_lo, 0xffff, -1
    s_cselect_b32 exec_hi, 0xffff, -1
    buffer_store_dwordx4 v[16:19], v9, s[20:23], s34 offen{SC}
    buffer_store_dwordx4 v[20:23], v9, s[20:23], s35 offen{SC}
    """)
    pf.dump(20, 4)
    a(f"""
    K0_END:
    s_endpgm
    K0_SP:
    s_sub_u32 s2, s2, {NCV+NLN+NWB}
    s_cmp_ge_u32 s2, {NSP}
    s_cbranch_scc1 K0_END
    s_load_dwordx2 s[4:5], s[0:1], {KA_WSP}
    v_lshlrev_b32 v1, 7, v0
    s_lshl_b32 s12, s2, 16
    s_add_u32 s13, s12, 32768
    s_waitcnt lgkmcnt(0)
    """)
    srd(a, 8, 4, SZ_WSP)
    a("""
    buffer_load_dword v2, v1, s[8:11], s12 offen
    buffer_load_dword v3, v1, s[8:11], s13 offen
    """)
    if os.environ.get("K0WO", "0") == "1":
        a(f"""
        s_load_dwordx2 s[4:5], s[0:1], {KA_WOUT}
        s_load_dwordx2 s[6:7], s[0:1], {KA_WO}
        s_mul_i32 s20, s2, {162*128}
        s_mul_i32 s21, s2, {41*128}
        s_waitcnt lgkmcnt(0)
        """)
        srd(a, 12, 4, SZ_WOUT)
        srd(a, 16, 6, SZ_WO)
        a("""
        v_cmp_gt_u32 vcc, 162, v0
        s_and_saveexec_b64 s[22:23], vcc
        s_cbranch_execz K0_END
        buffer_load_dword v4, v1, s[12:15], s20 offen
        v_cmp_gt_u32 vcc, 41, v0
        s_and_b64 exec, exec, vcc
        s_cbranch_execz K0_END
        buffer_load_dword v5, v1, s[16:19], s21 offen
        """)
    a("""
    s_endpgm
    K0_CPF:
    s_getpc_b64 s[4:5]
    K0_PC:
    s_lshr_b32 s6, s2, 3
    s_lshl_b32 s6, s6, 15
    v_lshlrev_b32 v1, 7, v0
    v_add_u32 v1, s6, v1
    v_min_u32 v1, ALL_CODE_END-K0_PC-4, v1
    global_load_dword v2, v1, s[4:5]
    """)
    TW = int(os.environ.get("TLBW", "0"))
    if TW:
        a(f"""
        s_load_dwordx4 s[8:11], s[0:1], {KA_WSP}
        s_load_dwordx4 s[12:15], s[0:1], {KA_WOUT}
        s_load_dwordx2 s[16:17], s[0:1], {KA_WO}
        s_load_dwordx2 s[18:19], s[0:1], {KA_WS}
        v_lshlrev_b32 v1, {TW}, v0
        s_waitcnt lgkmcnt(0)
        """)
        for i, (p, sz) in enumerate(((8, SZ_WSP), (10, SZ_BSP), (12, SZ_WOUT), (14, SZ_X), (16, SZ_WO))):
            srd(a, 20, p, sz)
            a(f"buffer_load_dword v{3+i}, v1, s[20:23], 0 offen")
        srd(a, 20, 18, WS_USED)
        for i in range((WS_USED + (256 << TW) - 1) // (256 << TW)):
            a(f"s_mov_b32 s24, {i * (256 << TW)}")
            a(f"buffer_load_dword v{8+i}, v1, s[20:23], s24 offen")
    a("s_endpgm")
    return k
```

```python
from common import *
from k2a import attn_body
from k2b import gemm2_body
from k3 import outproj_body, sproj_body
from mkz import z2_body
from mkq import qkv_body

def build_k2(prio_attn=1, prio_gemm=0, kidx=1):
    k = Kernel("k2_mix_kernel", 512, 256, 81920, 256, nsgpr=102)
    a = k.a
    pf = Prof(a, bool(PROF), kidx)
    pf.stamp()
    a(f"""
    s_cmp_ge_u32 s2, 512
    s_cbranch_scc1 K2_END
    s_load_dwordx4 s[4:7], s[0:1], {KA_WSP}
    s_load_dwordx2 s[24:25], s[0:1], {KA_WOUT}
    s_load_dwordx2 s[26:27], s[0:1], {KA_WS}
    s_load_dwordx2 s[60:61], s[0:1], {KA_WO}
    s_waitcnt lgkmcnt(0)
    """)
    srd(a, 12, 4, SZ_WSP)
    srd(a, 16, 6, SZ_BSP)
    srd(a, 20, 26, WS_USED)
    SWAP = int(os.environ.get("SWAP", "1"))
    a(f"""
    s_and_b32 s3, s2, 255
    s_cmp_{'ge' if SWAP else 'lt'}_u32 s2, 256
    s_cbranch_scc1 K2_ATT
    """)
    if prio_gemm:
        a(f"s_setprio {prio_gemm}")
    n0 = pf.n
    srd(a, 8, 24, SZ_WOUT)
    z2_body(a, pf, "s3", 20)
    gemm2_body(a, pf, "s3", 20, 12, 16, loop_prio=int(os.environ.get("GLP", "2")), mega=True)
    a(f"""
    s_waitcnt vmcnt(0)
    s_barrier
    s_cmp_lg_u32 s32, 0
    s_cbranch_scc1 K2_NOSIG
    s_lshl_b32 s30, s30, 7
    s_lshl_b32 s31, s31, 2
    s_add_u32 s30, s30, s31
    s_add_u32 s30, s30, {FLG}
    v_mov_b32 v1, 0
    v_mov_b32 v2, 1
    s_mov_b64 exec, 1
    buffer_store_dword v2, v1, s[20:23], s30 offen sc1
    s_mov_b64 exec, -1
    K2_NOSIG:
    """)
    pf.stamp()
    a(f"""
    s_load_dwordx2 s[4:5], s[0:1], {KA_X}
    s_load_dwordx2 s[24:25], s[0:1], {KA_OUT}
    s_load_dwordx2 s[6:7], s[0:1], {KA_WO}
    s_waitcnt lgkmcnt(0)
    """)
    SING = int(os.environ.get("SING", "1"))
    srd(a, 16, 6, SZ_WO)
    srd(a, 12, 4, SZ_X)
    srd(a, 4, 24, SZ_X)
    outproj_body(a, pf, "s3", 20, 8, 12, 4, "K2_END", prio=int(os.environ.get("OPP", "0")), swo=16 if SING else None)
    pf.dump(20, 4)
    a("s_endpgm")
    a.label("K2_ATT")
    if os.environ.get("NOATT"):
        a("s_endpgm")
    pf.n = n0
    if prio_attn:
        a(f"s_setprio {prio_attn}")
    srd(a, 8, 60, SZ_WO)
    a(f"s_setprio {int(os.environ.get('PQ', '1'))}")
    m1, m2 = qkv_body(a, pf, "s3", 20, swsp=12)
    a(f"s_setprio {prio_attn}")
    srd(a, 12, 24, SZ_WOUT)
    pf.stamp()
    attn_body(a, pf, "s3", 20, pfw=(12, 8) if int(os.environ.get("PFA", "1")) else None, mega=True, mid=m1, mid2=m2, late_flag=60)
    a(f"""
    s_cmp_lg_u32 s32, 0
    s_cbranch_scc1 K2_NOSIG2
    s_lshl_b32 s31, s31, 7
    s_lshl_b32 s30, s30, 2
    s_add_u32 s30, s30, s31
    s_add_u32 s30, s30, {FLG + 2048}
    v_mov_b32 v1, 0
    v_mov_b32 v2, 1
    s_mov_b64 exec, 1
    buffer_store_dword v2, v1, s[20:23], s30 offen sc1
    s_mov_b64 exec, -1
    K2_NOSIG2:
    """)
    pf.stamp()
    if not SING:
        sproj_body(a, pf, "s3", 20, 8, "K2_END")
    pf.dump(20, 4)
    a("K2_END:\ns_endpgm")
    return k
```

```python
from common import *
from mkz import ids, flag_store


def qkv_body(a, pf, sid, sws, L="QK", swsp=None):
    w = Waits(a)
    ACC = 112
    XR_ = 16
    NXU = 5
    WR = XR_ + 8 * NXU
    NW = 12
    TMP = 240
    PK = 16
    vL16, vR2 = 2, 3
    NSL = 5
    NU = 18
    ids(a, sid, TMP)
    a(f"""
    v_add_u32 v{vR2}, 49152, v{vL16}
    s_mul_i32 s34, s33, {36*1024}
    s_add_u32 s34, s34, {XF}
    s_lshl_b32 s35, s32, 12
    s_mul_i32 s37, s31, {WQG}
    s_add_u32 s37, s37, {WQ}
    s_add_u32 s37, s37, s35
    """)

    def issue(u):
        ops = []
        x = XR_ + 8 * (u % NXU)
        for i in range(2):
            def f(i=i):
                w.ivm(f"buffer_load_dwordx4 v[{x+4*i}:{x+4*i+3}], v{vL16}, s[{sws}:{sws+3}], s34 offen offset:{1024*(2*(u%2)+i)}", u)
                if i == 1 and u % 2:
                    a("s_add_u32 s34, s34, 4096")
            ops.append(f)
        for i in range(4):
            def f(i=i):
                if i == 0:
                    a(f"s_add_u32 m0, s35, {(u % NSL) * 16384}")
                w.ivm(f"buffer_load_dwordx4 v{vL16}, s[{sws}:{sws+3}], s37 offen offset:{1024*i} lds", u)
                if i == 3:
                    a("s_add_u32 s37, s37, 16384")
            ops.append(f)
        return ops

    def rd(gt):
        off = ((gt // 16) % NSL) * 16384 + (gt % 16) * 1024
        reg = vL16 if off < 49152 else vR2
        off -= 0 if off < 49152 else 49152
        d = WR + 4 * (gt % NW)
        w.ilg(f"ds_read_b128 v[{d}:{d+3}], v{reg} offset:{off}", gt)

    QD = 3
    for u in range(QD + 1):
        for f in issue(u):
            f()
    vQt, vKVt, vKm, vGC2, vZ = 4, 5, 6, 249, 248
    a(f"""
    v_and_b32 v{TMP+1}, 31, v1              ; s
    v_lshrrev_b32 v{TMP}, 5, v1             ; h
    s_lshl_b32 s47, s31, 7
    s_add_u32 s47, s47, s33           ; 2g*64 + rt
    s_mul_i32 s48, s47, 1152
    s_add_u32 s48, s48, {QF}
    s_add_u32 s59, s48, {64*1152}
    s_mul_i32 s49, s47, 2560
    s_add_u32 s49, s49, {KV}
    s_add_u32 s50, s49, {64*2560}
    s_mov_b32 s51, {fbits(QSCALE)}
    s_mov_b32 s54, 0x02020202
    s_mov_b32 s55, 0x02020202
    s_mov_b32 s56, 0x01010101
    s_mov_b32 s57, 0x01010101
    v_mul_u32_u24 v{vQt}, {64*1152}, v{TMP}
    v_lshl_add_u32 v{vQt}, v{TMP+1}, 2, v{vQt}
    v_mul_u32_u24 v{vKVt}, {64*2560}, v{TMP}
    v_lshl_add_u32 v{vKVt}, v{TMP+1}, 4, v{vKVt}
    v_lshlrev_b32 v{vKm}, 8, v{TMP}
    s_lshl_b32 s52, s47, 2
    s_add_u32 s52, s52, {KMX}
    s_lshl_b32 s53, s31, 7
    s_lshl_b32 s58, s30, 2
    s_add_u32 s53, s53, s58
    s_add_u32 s53, s53, {FL_KV}
    s_lshl_b32 s60, s30, 7
    s_lshl_b32 s58, s31, 2
    s_add_u32 s60, s60, s58
    s_add_u32 s60, s60, {FL_U + 64}
    s_mul_i32 s61, s33, 144
    s_mul_i32 s43, s31, 9
    s_add_u32 s61, s61, s43
    s_lshl_b32 s61, s61, 10
    s_add_u32 s61, s61, {UF}
    v_mov_b32 v{vGC2}, {fbits(GC2)}
    v_mov_b32 v{vZ}, v{vL16}
    v_add_u32 v250, 4096, v{vL16}
    v_add_u32 v251, 8192, v{vL16}
    """)
    PFQ = int(os.environ.get("PFQ", "0"))
    if PFQ:
        a(f"""
        v_lshlrev_b32 v10, 7, v1
        v_mov_b32 v11, 0x40000000
        v_cmp_gt_u32 vcc, {PFQ}, v1
        v_cndmask_b32 v10, v11, v10, vcc
        s_lshl_b32 s46, {sid}, 2
        s_add_u32 s46, s46, s32
        s_lshl_b32 s46, s46, 13
        """)
    npf = [0]
    w.wvm(0)
    a("s_barrier")
    AH = 8
    for gt in range(AH):
        rd(gt)
    pend = []
    NG = 36 * 8
    for gt in range(NG):
        t, T = divmod(gt, 8)
        nx = gt + AH
        if nx < NG and nx % 16 == 0:
            u = nx // 16
            for f in pend:
                f()
            w.wvm(u)
            a("s_barrier")
            pend = issue(u + QD) if u + QD < NU else []
            if PFQ and npf[0] < 64 // PFQ and u >= int(os.environ.get("PFQ0", "2")) and (u % int(os.environ.get("PFQS", "2")) == 0):
                pend.append(lambda: (w.ivm(f"buffer_load_dword v11, v10, s[{swsp}:{swsp+3}], s46 offen", "pf"), a(f"s_add_u32 s46, s46, {PFQ*128}")))
                npf[0] += 1
        if T % 2 == 0:
            w.wlg(gt + 1)
        x = XR_ + 8 * ((t // 2) % NXU) + 4 * (t % 2)
        wf = WR + 4 * (gt % NW)
        c = "0" if t == 0 else f"v[{ACC+16*T}:{ACC+16*T+15}]"
        a(f"v_mfma_f32_32x32x16_bf16 v[{ACC+16*T}:{ACC+16*T+15}], v[{wf}:{wf+3}], v[{x}:{x+3}], {c}")
        if nx < NG:
            rd(nx)
        if pend and T % 2 == 0:
            pend.pop(0)()
    for f in pend:
        f()
    assert not PFQ or npf[0] == 64 // PFQ, npf
    pf.stamp()
    a("s_setprio 3")
    Q, K, V, M = ACC, ACC + 16, ACC + 32, ACC + 48
    for j, (X, s0, s1, off) in enumerate(((K, 49, 50, 0), (V, 49, 50, 1024), (Q, 48, 59, 0))):
        if X == Q:
            for i in range(16):
                a(f"v_mul_f32 v{Q+i}, s51, v{Q+i}")
        p = PK + 8 * j
        for i in range(8):
            a(f"v_cvt_pk_bf16_f32 v{p+i}, v{X+2*i}, v{X+2*i+1}")
        a(f"buffer_store_dwordx4 v[{p}:{p+3}], v{vL16}, s[{sws}:{sws+3}], s{s0} offen offset:{off} sc1")
        a(f"buffer_store_dwordx4 v[{p+4}:{p+7}], v{vL16}, s[{sws}:{sws+3}], s{s1} offen offset:{off} sc1")
    kk = PK + 33
    a(f"""
    v_mul_f32 v{M}, s51, v{M}
    v_mul_f32 v{M+1}, s51, v{M+1}
    v_cvt_pk_bf16_f32 v{PK+32}, v{M}, v{M+1}
    v_cvt_pk_bf16_f32 v{PK+28}, v{M+2}, v{M+3}
    v_mov_b32 v{PK+29}, 0x3f803f80
    v_cvt_pk_bf16_f32 v{PK+30}, v{M+4}, v{M+5}
    v_mov_b32_dpp v{PK+31}, v{PK+28} row_shr:1 row_mask:0xf bank_mask:0xf
    v_cndmask_b32 v{PK+29}, v{PK+29}, v{PK+31}, s[54:55]
    v_cndmask_b32 v{PK+29}, v{PK+29}, 0, s[56:57]
    v_cndmask_b32 v{PK+28}, v{PK+28}, 0, s[56:57]
    v_mov_b32 v{PK+31}, 0x00003f80
    buffer_store_dwordx4 v[{PK+28}:{PK+31}], v{vKVt}, s[{sws}:{sws+3}], s49 offen offset:2048 sc1
    buffer_store_dword v{PK+32}, v{vQt}, s[{sws}:{sws+3}], s48 offen offset:1024 sc1
    v_mul_f32 v{kk}, v{K}, v{K}
    v_mul_f32 v{kk+1}, v{K+8}, v{K+8}
    """)
    for i in range(1, 8):
        a(f"v_fmac_f32 v{kk}, v{K+i}, v{K+i}\nv_fmac_f32 v{kk+1}, v{K+8+i}, v{K+8+i}")
    a(f"""
    v_permlane32_swap_b32 v{kk}, v{kk+1}
    v_add_f32 v{kk}, v{kk}, v{kk+1}
    v_fmac_f32 v{kk}, v{M+2}, v{M+2}
    v_fmac_f32 v{kk}, v{M+3}, v{M+3}
    """)
    reduce16(a, kk, kk + 1, "v_max_f32")
    reduce_x16(a, kk, kk + 1, "v_max_f32")
    a(f"""
    s_mov_b32 exec_lo, 1
    s_mov_b32 exec_hi, 1
    buffer_store_dword v{kk}, v{vKm}, s[{sws}:{sws+3}], s52 offen sc1
    s_mov_b64 exec, -1
    s_setprio {int(os.environ.get('PZ1E', '1'))}
    """)
    pf.stamp()
    a(f"s_mov_b32 s56, {fbits(GC1)}")
    T8 = [TMP + i for i in range(8)]
    grp = [(ACC + 64 + 8 * gi, (vZ, 250)[gi // 4], (gi % 4) * 1024) for gi in range(8)] + [(M + 8, 251, 0)]
    KVH = int(os.environ.get("KVH", "4"))
    KVP = int(os.environ.get("KVP", "7"))

    def gel(lo, hi):
        for base, _, _ in grp[lo:hi]:
            a.ext(gelu_group(list(range(base, base + 8)), T8, 56, vGC2))
            for i in range(4):
                a(f"v_cvt_pk_bf16_f32 v{base+i}, v{base+2*i}, v{base+2*i+1}")
    gel(0, KVH)
    a("s_waitcnt vmcnt(0)\ns_barrier")
    flag_store(a, f"{L}_F1", sws, 53, 8, 9)
    gel(KVH, KVP)

    def stores():
        a("s_waitcnt vmcnt(10)")
        for base, vo, off in grp:
            a(f"buffer_store_dwordx4 v[{base}:{base+3}], v{vo}, s[{sws}:{sws+3}], s61 offen offset:{off} sc1")
    return (lambda: gel(KVP, 9)), stores
```

```python
from common import *

NT = " nt" if os.environ.get("NT0", "1") == "1" else ""
NT2 = " nt" if os.environ.get("NTX", "0") == "1" else ""
SC = " sc1" if os.environ.get("SC1", "0") == "1" else ""

def ln_finish(a, f, n, vmean, vvar, t, pk):
    round_bf16(a, vmean)
    round_bf16(a, vvar)
    a(f"v_add_f32 v{vvar}, {fbits(1e-5)}, v{vvar}")
    round_bf16(a, vvar)
    a(f"v_sqrt_f32 v{vvar}, v{vvar}")
    round_bf16(a, vvar)
    a(f"v_rcp_f32 v{vvar}, v{vvar}")
    for i in range(n):
        a(f"v_sub_f32 v{f+i}, v{f+i}, v{vmean}")
    for i in range(n // 2):
        a(f"v_cvt_pk_bf16_f32 v{pk+i}, v{f+2*i}, v{f+2*i+1}")
    for i in range(n // 2):
        a(f"v_lshlrev_b32 v{f+2*i}, 16, v{pk+i}")
        a(f"v_and_b32 v{f+2*i+1}, 0xffff0000, v{pk+i}")
    for i in range(n):
        a(f"v_mul_f32 v{f+i}, v{f+i}, v{vvar}")
    for i in range(n // 2):
        a(f"v_cvt_pk_bf16_f32 v{pk+i}, v{f+2*i}, v{f+2*i+1}")


def build_k0():
    NCV, NLN, NWB, NPF = 144, 256, 288, (16 if os.environ.get('CPF', '1') == '1' else 0)
    NSP = {"0": 0, "1": 128, "2": 256}[os.environ.get("K0SP", "0")]
    k = Kernel("k0_prep_kernel", NCV + NLN + NWB + NPF + NSP, 256, 36864, 64)
    a = k.a
    pf = Prof(a, bool(PROF), 0)
    pf.stamp()
    a(f"""
    s_cmp_lt_u32 s2, {NPF}
    s_cbranch_scc1 K0_CPF
    s_sub_u32 s2, s2, {NPF}
    s_cmp_ge_u32 s2, {NCV+NLN+NWB}
    s_cbranch_scc1 K0_SP
    s_load_dwordx4 s[4:7], s[0:1], {KA_X}
    s_load_dwordx2 s[24:25], s[0:1], {KA_WIN}
    s_load_dwordx2 s[26:27], s[0:1], {KA_WS}
    v_and_b32 v1, 63, v0
    v_lshrrev_b32 v2, 6, v0
    s_waitcnt lgkmcnt(0)
    """)
    pf.stamp()
    srd(a, 8, 4, SZ_X)
    srd(a, 12, 6, SZ_WQKV)
    srd(a, 16, 24, SZ_WIN)
    srd(a, 20, 26, WS_USED)
    a(f"""
    s_cmp_ge_u32 s2, {NCV}
    s_cbranch_scc1 K0_NOTCV
    s_lshr_b32 s28, s2, 3             ; kp
    s_and_b32 s29, s2, 7              ; q
    v_readfirstlane_b32 s30, v2       ; wave
    s_mul_i32 s31, s28, {32*4*FH}
    s_mul_i32 s32, s29, 576
    s_add_u32 s31, s31, s32
    s_mul_i32 s33, s30, 9216
    s_mul_i32 s34, s30, {8*4*FH}
    s_add_u32 s31, s31, s34
    """)
    for i in range(9):
        a(f"""
        v_add_u32 v3, {64*i}, v1
        v_mul_u32_u24 v4, 1821, v3
        v_lshrrev_b32 v4, 16, v4
        v_mul_u32_u24 v5, 36, v4
        v_sub_u32 v5, v3, v5              ; chunk
        v_mul_u32_u24 v4, {2*FH}, v4
        v_lshl_add_u32 v4, v5, 4, v4
        s_add_u32 m0, s33, {1024*i}
        buffer_load_dwordx4 v4, s[16:19], s31 offen{NT} lds
        """)
    a(f"""
    s_lshr_b32 s35, s30, 1
    s_and_b32 s36, s30, 1
    s_lshl_b32 s37, s29, 1
    s_add_u32 s42, s37, s35           ; group
    s_mul_i32 s37, s35, 288
    v_lshlrev_b32 v7, 4, v1
    s_cmp_lg_u32 s36, 0
    s_cbranch_scc1 K0_CVZ1
    v_lshrrev_b32 v3, 4, v1
    v_bfe_u32 v4, v1, 2, 2
    v_lshl_add_u32 v3, v3, 3, v4
    v_mul_u32_u24 v3, 1152, v3
    s_add_u32 s37, s37, 576
    v_add_u32 v3, s37, v3
    v_and_b32 v4, 3, v1
    v_lshl_add_u32 v6, v4, 3, v3
    v_lshl_add_u32 v5, v4, 4, v3
    v_bfe_u32 v4, v1, 1, 1
    v_lshl_add_u32 v5, v4, 3, v5      ; parity 0
    v_xor_b32 v46, 8, v5              ; parity 1
    s_mul_i32 s37, s42, {WZG}
    s_mul_i32 s38, s28, 9216
    s_add_u32 s39, s37, s38
    s_add_u32 s39, s39, {WZ}
    s_add_u32 s40, s39, 4096
    s_add_u32 s41, s39, 8192
    s_waitcnt vmcnt(0)
    s_barrier
    """)
    for t in range(9):
        reg, off = ((5 if t % 2 == 0 else 46), 64 * (t // 2)) if t < 8 else (6, 256)
        a(f"ds_read_b64_tr_b16 v[{8+4*t}:{9+4*t}], v{reg} offset:{off}")
        a(f"ds_read_b64_tr_b16 v[{10+4*t}:{11+4*t}], v{reg} offset:{off + 4*1152}")
    for t in range(9):
        a(f"s_waitcnt lgkmcnt({min(15, 2*(8-t))})")
        a(f"buffer_store_dwordx4 v[{8+4*t}:{11+4*t}], v7, s[20:23], s{39 + t // 4} offen offset:{1024*(t % 4)}{SC}")
    a(f"""
    s_branch K0_CVEND
    K0_CVZ1:
    v_lshrrev_b32 v3, 5, v1
    v_bfe_u32 v4, v1, 2, 2
    v_lshl_add_u32 v3, v3, 3, v4
    v_mul_u32_u24 v3, 1152, v3
    v_add_u32 v3, s37, v3
    v_and_b32 v4, 1, v1
    v_lshl_add_u32 v3, v4, 4, v3
    v_bfe_u32 v4, v1, 1, 1
    v_lshl_add_u32 v6, v4, 3, v3      ; mixed (+256)
    v_bfe_u32 v4, v1, 4, 1
    v_lshl_add_u32 v5, v4, 5, v6
    s_mul_i32 s37, s42, {WQG}
    s_lshl_b32 s38, s28, 14
    s_add_u32 s39, s37, s38
    s_add_u32 s39, s39, {WQ + 4096}
    s_add_u32 s40, s39, 8192
    s_sub_u32 s41, s39, 1024
    s_sub_u32 s43, s40, 1024
    s_waitcnt vmcnt(0)
    s_barrier
    """)
    lst = [(ks, T) for ks in range(2) for T in range(5)]
    for i, (ks, T) in enumerate(lst):
        reg, off = (5, 64 * T) if T < 4 else (6, 256)
        off += ks * 16 * 1152
        a(f"ds_read_b64_tr_b16 v[{8+4*i}:{9+4*i}], v{reg} offset:{off}")
        a(f"ds_read_b64_tr_b16 v[{10+4*i}:{11+4*i}], v{reg} offset:{off + 4*1152}")
    a("s_waitcnt lgkmcnt(0)")
    for i, (ks, T) in enumerate(lst):
        if T < 4:
            a(f"buffer_store_dwordx4 v[{8+4*i}:{11+4*i}], v7, s[20:23], s{39 + ks} offen offset:{1024*T}{SC}")
    a("s_mov_b32 exec_lo, 0xffff0000\ns_mov_b32 exec_hi, 0xffff0000")
    for i, (ks, T) in enumerate(lst):
        if T == 4:
            a(f"buffer_store_dwordx4 v[{8+4*i}:{11+4*i}], v7, s[20:23], s{41 if ks == 0 else 43} offen{SC}")
    a("K0_CVEND:")
    pf.stamp()
    pf.dump(20, 4)
    pf.n -= 2
    a(f"""
    s_endpgm
    K0_NOTCV:
    s_cmp_ge_u32 s2, {NCV+NLN}
    s_cbranch_scc1 K0_WB
    v_lshrrev_b32 v3, 5, v1
    v_lshl_add_u32 v3, v2, 1, v3
    s_sub_u32 s28, s2, {NCV}
    s_lshl_b32 s28, s28, 3
    v_add_u32 v3, s28, v3            ; row
    v_and_b32 v4, 31, v1             ; c0
    v_mul_u32_u24 v5, 1152, v3
    v_lshl_add_u32 v5, v4, 4, v5
    """)
    for i in range(12):
        a(f"v_mov_b32 v{8+i}, 0")
    a(f"""
    s_mov_b32 s30, 0x00ffffff
    s_mov_b32 s31, 0x00ffffff
    s_mov_b64 exec, s[30:31]
    buffer_load_dwordx4 v[8:11], v5, s[8:11], 0 offen{NT2}
    buffer_load_dwordx4 v[12:15], v5, s[8:11], 0 offen offset:384{NT2}
    buffer_load_dwordx4 v[16:19], v5, s[8:11], 0 offen offset:768{NT2}
    s_mov_b64 exec, -1
    v_lshlrev_b32 v6, 2, v0
    v_mov_b32 v7, -1.0
    s_lshl_b32 s29, s28, 7
    s_add_u32 s29, s29, {STT}
    buffer_store_dword v7, v6, s[20:23], s29 offen
    s_cmp_ge_u32 s28, {40*8}
    s_cbranch_scc1 K0_NOFLG
    v_mov_b32 v7, 0
    s_add_u32 s29, s29, {FLG - STT}
    buffer_store_dword v7, v6, s[20:23], s29 offen
    s_waitcnt vmcnt(0)
    K0_NOFLG:
    v_lshrrev_b32 v6, 5, v3
    v_mul_u32_u24 v6, 36, v6
    v_lshrrev_b32 v7, 1, v4
    v_add_u32 v6, v6, v7
    v_lshlrev_b32 v6, 10, v6
    v_and_b32 v7, 1, v4
    v_lshlrev_b32 v7, 5, v7
    v_and_b32 v20, 31, v3
    v_add_u32 v7, v7, v20
    v_lshl_add_u32 v6, v7, 4, v6
    s_waitcnt vmcnt(1)
    """)
    F = 24
    pf.stamp()
    for i in range(12):
        a(f"v_lshlrev_b32 v{F+2*i}, 16, v{8+i}")
        a(f"v_and_b32 v{F+2*i+1}, 0xffff0000, v{8+i}")
    a(f"v_add_f32 v50, v{F}, v{F+1}")
    a(f"v_add_f32 v51, v{F+2}, v{F+3}")
    for i in range(4, 24, 2):
        a(f"v_add_f32 v50, v50, v{F+i}")
        a(f"v_add_f32 v51, v51, v{F+i+1}")
    a("v_add_f32 v50, v50, v51")
    reduce16(a, 50, 52)
    reduce_x16(a, 50, 52)
    a(f"v_mul_f32 v50, {fbits(1.0/576)}, v50")
    a("v_mov_b32 v51, 0\nv_mov_b32 v53, 0\ns_mov_b64 exec, s[30:31]")
    for i in range(24):
        a(f"v_sub_f32 v52, v{F+i}, v50")
        a(f"v_fmac_f32 v{51 if i % 2 == 0 else 53}, v52, v52")
    a("s_mov_b64 exec, -1\nv_add_f32 v51, v51, v53")
    reduce16(a, 51, 52)
    reduce_x16(a, 51, 52)
    a(f"v_mul_f32 v51, {fbits(1.0/576)}, v51")
    ln_finish(a, F, 24, 50, 51, 52, 8)
    a(f"""
    s_mov_b64 exec, s[30:31]
    s_mov_b32 s32, {XF}
    s_mov_b32 s33, {XF + 12*1024}
    s_mov_b32 s34, {XF + 24*1024}
    buffer_store_dwordx4 v[8:11], v6, s[20:23], s32 offen
    buffer_store_dwordx4 v[12:15], v6, s[20:23], s33 offen
    buffer_store_dwordx4 v[16:19], v6, s[20:23], s34 offen
    """)
    pf.dump(20, 4)
    pf.n -= 2
    a("s_endpgm")
    a.label("K0_WB")
    a(f"""
    s_sub_u32 s28, s2, {NCV+NLN}      ; j in 0..287
    s_and_b32 s29, s28, 7
    s_lshl_b32 s29, s29, 1
    s_bfe_u32 s30, s28, 0x10003
    s_add_u32 s29, s29, s30           ; g
    s_lshr_b32 s30, s28, 4
    v_readfirstlane_b32 s31, v2       ; T = wave
    v_and_b32 v3, 31, v1              ; m
    v_lshrrev_b32 v4, 5, v1           ; h
    v_and_b32 v5, 19, v3
    v_and_b32 v6, 4, v3
    v_lshlrev_b32 v6, 1, v6
    v_or_b32 v5, v5, v6
    v_and_b32 v6, 8, v3
    v_lshrrev_b32 v6, 1, v6
    v_or_b32 v5, v5, v6               ; phi
    s_lshl_b32 s32, s30, 5
    v_lshlrev_b32 v6, 3, v4
    v_add_u32 v6, s32, v6             ; k row
    s_mul_i32 s33, s29, 36            ; 36 g
    """)
    for i in range(16):
        a(f"v_mov_b32 v{16+i}, 0")
    a(f"""
    s_cmp_eq_u32 s31, 3
    s_cbranch_scc1 K0_WB3
    s_mul_i32 s34, s31, 576
    s_add_u32 s34, s34, s33
    v_lshrrev_b32 v7, 4, v5
    v_mul_u32_u24 v7, 18, v7
    v_and_b32 v8, 15, v5
    v_add3_u32 v7, v7, v8, s34
    s_branch K0_WBQ
    K0_WB3:
    v_lshrrev_b32 v10, 3, v5
    v_bfe_u32 v11, v5, 1, 2
    v_and_b32 v12, 1, v5
    v_mul_u32_u24 v7, 576, v11
    v_mul_u32_u24 v10, 18, v10
    v_add3_u32 v7, v7, v10, v12
    v_add3_u32 v7, v7, s33, 16
    v_cmp_gt_u32 vcc, 16, v5
    v_cmp_ne_u32 s[38:39], 3, v11
    s_and_b64 vcc, vcc, s[38:39]
    s_mov_b64 exec, vcc
    K0_WBQ:
    v_mul_u32_u24 v9, {3*D}, v6
    v_add_lshl_u32 v9, v9, v7, 1
    """)
    for ks in range(2):
        for j in range(8):
            r = 16 * ks + j
            a(f"s_mov_b32 s38, {r * 3 * D * 2}")
            a(f"buffer_load_ushort v{(24 if j % 2 else 16)+4*ks+j//2}, v9, s[12:15], s38 offen{NT2}")
    a(f"""
    s_mov_b64 exec, -1
    s_mul_i32 s34, s29, {WQG}
    s_lshl_b32 s35, s30, 4
    s_add_u32 s35, s35, s31
    s_lshl_b32 s35, s35, 10
    s_add_u32 s34, s34, s35
    s_add_u32 s34, s34, {WQ}
    s_add_u32 s35, s34, 8192
    v_lshlrev_b32 v9, 4, v1
    s_waitcnt vmcnt(0)
    """)
    pf.stamp()
    for i in range(8):
        a(f"v_lshl_or_b32 v{16+i}, v{24+i}, 16, v{16+i}")
    a(f"""
    s_cmp_eq_u32 s31, 3
    s_cselect_b32 exec_lo, 0xffff, -1
    s_cselect_b32 exec_hi, 0xffff, -1
    buffer_store_dwordx4 v[16:19], v9, s[20:23], s34 offen{SC}
    buffer_store_dwordx4 v[20:23], v9, s[20:23], s35 offen{SC}
    """)
    pf.dump(20, 4)
    a(f"""
    K0_END:
    s_endpgm
    K0_SP:
    s_sub_u32 s2, s2, {NCV+NLN+NWB}
    s_cmp_ge_u32 s2, {NSP}
    s_cbranch_scc1 K0_END
    s_load_dwordx2 s[4:5], s[0:1], {KA_WSP}
    v_lshlrev_b32 v1, 7, v0
    s_lshl_b32 s12, s2, {16 if NSP == 128 else 15}
    s_add_u32 s13, s12, 32768
    s_waitcnt lgkmcnt(0)
    """)
    srd(a, 8, 4, SZ_WSP)
    a("""
    buffer_load_dword v2, v1, s[8:11], s12 offen
    """)
    if NSP == 128:
        a("buffer_load_dword v3, v1, s[8:11], s13 offen")
    if os.environ.get("K0WO", "0") == "1":
        a(f"""
        s_load_dwordx2 s[4:5], s[0:1], {KA_WOUT}
        s_load_dwordx2 s[6:7], s[0:1], {KA_WO}
        s_mul_i32 s20, s2, {162*128*128//NSP}
        s_mul_i32 s21, s2, {(41 if NSP == 128 else 21)*128}
        s_waitcnt lgkmcnt(0)
        """)
        srd(a, 12, 4, SZ_WOUT)
        srd(a, 16, 6, SZ_WO)
        a(f"""
        v_cmp_gt_u32 vcc, {162*128//NSP}, v0
        s_and_saveexec_b64 s[22:23], vcc
        s_cbranch_execz K0_END
        buffer_load_dword v4, v1, s[12:15], s20 offen
        v_cmp_gt_u32 vcc, {41 if NSP == 128 else 21}, v0
        s_and_b64 exec, exec, vcc
        s_cbranch_execz K0_END
        buffer_load_dword v5, v1, s[16:19], s21 offen
        """)
    a("""
    s_endpgm
    K0_CPF:
    s_getpc_b64 s[4:5]
    K0_PC:
    s_lshr_b32 s6, s2, 3
    s_lshl_b32 s6, s6, 15
    v_lshlrev_b32 v1, 7, v0
    v_add_u32 v1, s6, v1
    v_min_u32 v1, ALL_CODE_END-K0_PC-4, v1
    global_load_dword v2, v1, s[4:5]
    """)
    TW = int(os.environ.get("TLBW", "0"))
    if TW:
        a(f"""
        s_load_dwordx4 s[8:11], s[0:1], {KA_WSP}
        s_load_dwordx4 s[12:15], s[0:1], {KA_WOUT}
        s_load_dwordx2 s[16:17], s[0:1], {KA_WO}
        s_load_dwordx2 s[18:19], s[0:1], {KA_WS}
        v_lshlrev_b32 v1, {TW}, v0
        s_waitcnt lgkmcnt(0)
        """)
        for i, (p, sz) in enumerate(((8, SZ_WSP), (10, SZ_BSP), (12, SZ_WOUT), (14, SZ_X), (16, SZ_WO))):
            srd(a, 20, p, sz)
            a(f"buffer_load_dword v{3+i}, v1, s[20:23], 0 offen")
        srd(a, 20, 18, WS_USED)
        for i in range((WS_USED + (256 << TW) - 1) // (256 << TW)):
            a(f"s_mov_b32 s24, {i * (256 << TW)}")
            a(f"buffer_load_dword v{8+i}, v1, s[20:23], s24 offen")
    a("s_endpgm")
    return k
```

```python
from common import *

SC = " sc1"
CH = 20480
NSL = 4

def attn_body(a, pf, sid, sws, L="AT", swout=None, swo=None, swsp=None, pfw=None, mega=False, mid=None, mid2=None, late_flag=None):
    SA, SB, OA, OB = 16, 32, 48, 64
    LS = ' sc1' if mega else ''
    PA, PB = 80, 88
    QMA, QMB, QTA, QTB = 96, 100, 104, 108
    KM = [112, 116]; KT = [120, 124]
    VV = [128, 136]
    vK, vKt, vV, vL16 = 2, 3, 4, 5
    T0 = 144
    a(f"""
    v_and_b32 v1, 63, v0
    v_lshrrev_b32 v6, 6, v0
    s_and_b32 s28, {sid}, 7
    s_lshr_b32 s29, {sid}, 3
    s_lshl_b32 s30, s28, 2
    s_lshr_b32 s31, s29, 3
    s_add_u32 s30, s30, s31           ; head
    s_and_b32 s31, s29, 7             ; qb
    v_readfirstlane_b32 s32, v6       ; wave
    v_lshlrev_b32 v{vL16}, 4, v1
    s_mul_i32 s33, s30, {64*2560}
    s_add_u32 s33, s33, {KV}
    s_mul_i32 s35, s32, 5120
    s_lshl_b32 s36, s31, 3
    s_lshl_b32 s37, s32, 1
    s_add_u32 s36, s36, s37           ; qt
    s_lshl_b32 s37, s30, 6
    s_add_u32 s37, s37, s36
    s_mul_i32 s37, s37, 1152
    s_add_u32 s37, s37, {QF}
    s_lshl_b32 s38, s30, 8
    s_add_u32 s38, s38, {KMX}
    v_lshlrev_b32 v7, 2, v1           ; lane*4
    v_mov_b32 v{QTA}, 0
    v_mov_b32 v{QTB}, 0
    """)
    if mega:
        from k3 import poll
        a(f"""
        s_cmp_lg_u32 s32, 0
        s_cbranch_scc1 {L}KV_OK
        s_lshr_b32 s44, s30, 1
        s_lshl_b32 s44, s44, 7
        s_add_u32 s44, s44, {FL_KV}
        v_and_b32 v8, 15, v1
        v_lshlrev_b32 v8, 2, v8
        """)
        poll(a, f"{L}KV", 9, 8, sws, 44, sleep=6)
        a("s_barrier")
        pf.stamp()
    a(f"""
    buffer_load_dwordx4 v[{QMA}:{QMA+3}], v{vL16}, s[{sws}:{sws+3}], s37 offen{LS}
    buffer_load_dwordx4 v[{QMB}:{QMB+3}], v{vL16}, s[{sws}:{sws+3}], s37 offen offset:1152{LS}
    buffer_load_dword v{T0}, v7, s[{sws}:{sws+3}], s38 offen{LS}
    s_mov_b32 exec_hi, 0
    buffer_load_dword v{QTA}, v7, s[{sws}:{sws+3}], s37 offen offset:1024{LS}
    buffer_load_dword v{QTB}, v7, s[{sws}:{sws+3}], s37 offen offset:{1152+1024}{LS}
    s_mov_b32 exec_hi, -1
    s_mov_b32 s39, 0
    """)

    def dma_chunk():
        a(f"""
        s_mov_b32 m0, s40
        s_add_u32 s41, s34, 4096
        buffer_load_dwordx4 v{vL16}, s[{sws}:{sws+3}], s34 offen{LS} lds
        buffer_load_dwordx4 v{vL16}, s[{sws}:{sws+3}], s34 offen offset:1024{LS} lds
        buffer_load_dwordx4 v{vL16}, s[{sws}:{sws+3}], s34 offen offset:2048{LS} lds
        buffer_load_dwordx4 v{vL16}, s[{sws}:{sws+3}], s34 offen offset:3072{LS} lds
        s_add_u32 m0, s40, 4096
        s_add_u32 s34, s34, {CH}
        buffer_load_dwordx4 v{vL16}, s[{sws}:{sws+3}], s41 offen{LS} lds
        s_add_u32 s40, s40, {CH}
        s_sub_u32 s41, s40, {NSL*CH}
        s_cmp_ge_u32 s40, {NSL*CH}
        s_cselect_b32 s40, s41, s40
        """)

    a.label(f"{L}_PASS")
    a(f"""
    s_add_u32 s34, s33, s35
    s_mov_b32 s40, s35
    """)
    for c in range(3):
        dma_chunk()
    a(f"""
    v_mov_b32 v{vK}, v{vL16}
    v_and_b32 v8, 31, v1
    v_lshrrev_b32 v9, 5, v1           ; h
    v_lshlrev_b32 v{vKt}, 4, v8
    v_add_u32 v10, 20, v{vKt}
    v_and_b32 v11, 7, v8
    v_cmp_eq_u32 vcc, 0, v11
    v_cndmask_b32 v{vKt}, v{vKt}, v10, vcc
    v_mov_b32 v10, 36
    v_cmp_ne_u32 vcc, 0, v9
    v_cndmask_b32 v{vKt}, v{vKt}, v10, vcc
    v_mov_b32 v14, v{vKt}
    v_add_u32 v{vKt}, 2048, v{vKt}
    v_bfe_u32 v10, v1, 2, 2           ; r
    v_lshl_add_u32 v10, v9, 2, v10    ; key = 4h + r
    v_lshlrev_b32 v10, 4, v10
    v_and_b32 v11, 1, v1
    v_lshlrev_b32 v11, 9, v11
    v_bfe_u32 v12, v1, 1, 1
    v_lshl_add_u32 v11, v12, 3, v11
    v_add_u32 v11, 1024, v11
    v_mov_b32 v12, {2048+8}
    v_and_b32 v13, 16, v1
    v_cmp_ne_u32 vcc, 0, v13
    v_cndmask_b32 v11, v11, v12, vcc
    v_add_u32 v{vV}, v10, v11
    v_and_b32 v13, 19, v1
    v_mov_b32 v12, 2048
    v_cmp_lt_u32 vcc, 16, v13
    v_cndmask_b32 v{vV}, v{vV}, v12, vcc
    """)
    for r in list(range(OA, OA + 32)) + list(range(PB + 4, PB + 8)) + list(range(VV[1], VV[1] + 8)) \
            + [QTA + 1, QTA + 2, QTA + 3, QTB + 1, QTB + 2, QTB + 3] + [KT[0] + i for i in (1, 2, 3)] + [KT[1] + i for i in (1, 2, 3)]:
        a(f"v_mov_b32 v{r}, 0")
    a(f"""
    s_cmp_lg_u32 s39, 0
    s_cbranch_scc1 {L}_GO
    """)
    if mid:
        mid()
    a("s_waitcnt vmcnt(15)")
    reduce16(a, T0, T0 + 1, "v_max_f32")
    reduce_x16(a, T0, T0 + 1, "v_max_f32")
    reduce_x32(a, T0, T0 + 1, "v_max_f32")
    for (QM, QT, t) in ((QMA, QTA, T0 + 2), (QMB, QTB, T0 + 3)):
        a(f"v_dot2_f32_bf16 v{t}, v{QT}, v{QT}, 0")
        for i in range(4):
            a(f"v_dot2_f32_bf16 v{t}, v{QM+i}, v{QM+i}, v{t}")
    a("s_nop 2")
    for (QT, t) in ((QTA, T0 + 2), (QTB, T0 + 3)):
        reduce_x32(a, t, T0 + 1)
        a(f"""
        v_mul_f32 v{t}, v{t}, v{T0}
        v_sqrt_f32 v{t}, v{t}
        v_mul_f32 v{t}, {fbits(-1.02)}, v{t}
        v_mov_b32 v{T0+1}, 0
        v_cvt_pk_bf16_f32 v{t}, v{t}, v{T0+1}
        s_mov_b32 exec_lo, 0
        v_mov_b32 v{QT}, v{t}
        s_mov_b32 exec_lo, -1
        """)
    LATE = int(os.environ.get("ZLATE", "1"))
    if mid2 and not LATE:
        mid2()
    a.label(f"{L}_GO")
    pf.stamp()
    a(f"""
    s_waitcnt vmcnt(10)
    s_barrier
    ds_read_b128 v[{KM[0]}:{KM[0]+3}], v{vK}
    ds_read_b32 v{KT[0]}, v{vKt}
    ds_read_b128 v[{KM[1]}:{KM[1]+3}], v{vK} offset:2560
    ds_read_b32 v{KT[1]}, v{vKt} offset:2560
    """)
    for p in range(2):
        for i in range(2):
            a(f"ds_read_b64_tr_b16 v[{VV[0]+4*p+2*i}:{VV[0]+4*p+2*i+1}], v{vV} offset:{16*(16*p+8*i)}")
    X8 = int(os.environ.get("X8", "1"))
    def mf(d, x, y, c):
        if not c and X8:
            return f"v_mfma_f32_32x32x8bf16_1k v[{d}:{d+15}], v[{x}:{x+1}], v[{y}:{y+1}], 0"
        return f"v_mfma_f32_32x32x16_bf16 v[{d}:{d+15}], v[{x}:{x+3}], v[{y}:{y+3}], " + (f"v[{d}:{d+15}]" if c else "0")
    PFW, PFZ, PFD = T0 + 8, T0 + 9, T0 + 10

    def touch():
        a(f"""
        buffer_load_dword v{PFD}, v{PFW}, s[{swsp}:{swsp+3}], s50 offen
        buffer_load_dword v{PFD+1}, v{PFZ}, s[{sws}:{sws+3}], s51 offen
        s_add_u32 s50, s50, 512
        s_add_u32 s51, s51, 16384
        """)
    if pfw is not None:
        a(f"""
        s_lshl_b32 s52, {sid}, 2
        s_add_u32 s52, s52, s32
        s_mul_i32 s50, s52, {21*128}
        s_mul_i32 s51, s52, {6*128}
        v_lshlrev_b32 v{PFZ}, 7, v1
        v_mov_b32 v{PFD}, 0x40000000
        v_cmp_gt_u32 vcc, 5, v1
        v_cndmask_b32 v{PFW}, v{PFD}, v{PFZ}, vcc
        v_cmp_gt_u32 vcc, 2, v1
        v_cndmask_b32 v{PFZ}, v{PFD}, v{PFZ}, vcc
        """)
    if swout is not None:
        a(f"""
        s_lshl_b32 s52, s29, 2
        s_add_u32 s52, s52, s32           ; wave index within this id%8 class
        s_and_b32 s50, s28, 1
        s_lshl_b32 s50, s50, 10
        s_lshl_b32 s51, s52, 3
        s_add_u32 s50, s50, s51
        s_lshl_b32 s50, s50, 12
        v_lshrrev_b32 v{PFW}, 2, v1
        v_lshlrev_b32 v{PFW}, 12, v{PFW}
        v_and_b32 v{PFZ}, 3, v1
        v_lshl_add_u32 v{PFW}, v{PFZ}, 7, v{PFW}
        v_mov_b32 v{PFD}, 0x40000000
        v_cmp_gt_u32 vcc, 32, v1
        v_cndmask_b32 v{PFW}, v{PFD}, v{PFW}, vcc
        v_lshlrev_b32 v{PFZ}, 17, v1
        v_cmp_gt_u32 vcc, 18, v1
        v_cndmask_b32 v{PFZ}, v{PFD}, v{PFZ}, vcc
        s_lshr_b32 s51, s28, 1
        s_mul_i32 s51, s51, {18*131072}
        s_lshl_b32 s53, s52, 7
        s_add_u32 s51, s51, s53
        s_add_u32 s51, s51, {Z2N}
        s_mul_i32 s54, s52, {162*128}
        s_mul_i32 s55, s52, {41*128}
        """)
        touch()
        touch()
    a(f"""
    s_waitcnt lgkmcnt(0)
    {mf(SA, KT[0], QTA, False)}
    {mf(SA, KM[0], QMA, True)}
    s_mov_b32 s42, 0
    s_mov_b32 s43, 0
    s_nop 9
    """)
    pf.stamp()
    a.label(f"{L}_LOOP")
    NHI = int(os.environ.get("NHI", "1"))
    a(f"""
    s_cmp_lg_u32 s42, {NHI}
    s_cbranch_scc1 {L}_KEEP
    s_setprio {int(os.environ.get("ALP", "1"))}
    {L}_KEEP:
    """)
    PAIR = int(os.environ.get("PAIR", "0"))

    def chunk_sync():
        a(f"""
        s_cmp_ge_u32 s42, 5
        s_cbranch_scc1 {L}_NODMA
        s_waitcnt vmcnt(5)
        s_barrier
        """)
        if mid2 and LATE:
            a(f"""
            s_or_b32 s44, s42, s39
            s_cmp_lg_u32 s44, 0
            s_cbranch_scc1 {L}_NZS
            """)
            mid2(wait=False)
            a.label(f"{L}_NZS")
        if late_flag is not None:
            a(f"""
            s_cmp_lg_u32 s42, 1
            s_cbranch_scc1 {L}_LF
            """)
            from mkz import flag_store
            flag_store(a, f"{L}_LF", sws, late_flag, T0 + 4, T0 + 5)
        if pfw is not None:
            a(f"""
            buffer_load_dword v{PFD}, v{PFW}, s[{pfw[0]}:{pfw[0]+3}], s50 offen
            buffer_load_dword v{PFD+1}, v{PFZ}, s[{pfw[1]}:{pfw[1]+3}], s51 offen
            s_add_u32 s50, s50, {5*128}
            s_add_u32 s51, s51, {2*128}
            """)
        dma_chunk()
        a(f"""
        s_branch {L}_DMADONE
        {L}_NODMA:
        s_waitcnt vmcnt(0)
        s_barrier
        """)
        if swout is not None:
            a(f"""
            s_cmp_lg_u32 s42, 5
            s_cbranch_scc1 {L}_PFW
            """)
            touch()
            a(f"""
            v_lshlrev_b32 v{PFW}, 7, v1
            buffer_load_dword v{PFD}, v{PFW}, s[{swo}:{swo+3}], s55 offen
            {L}_PFW:
            buffer_load_dword v{PFD+1}, v{PFW}, s[{swout}:{swout+3}], s54 offen
            s_add_u32 s54, s54, {54*128}
            """)
        a(f"""
        {L}_DMADONE:
        s_add_u32 s43, s43, {CH}
        s_mov_b32 s44, {CH}
        s_cmp_ge_u32 s43, {NSL*CH}
        s_cselect_b32 s44, {-(NSL-1)*CH & 0xffffffff}, s44
        s_cselect_b32 s43, 0, s43
        v_add_u32 v{vK}, s44, v{vK}
        v_add_u32 v{vKt}, s44, v{vKt}
        """)

    for t in range(8):
        b, nb = t % 2, (t + 1) % 2
        ko = ((t + 2) % 8) * 2560
        vo = ((t + 1) % 8) * 2560
        kr = [f"ds_read_b128 v[{KM[b]}:{KM[b]+3}], v{vK} offset:{ko}", f"ds_read_b32 v{KT[b]}, v{vKt} offset:{ko}"]
        vr = [f"ds_read_b64_tr_b16 v[{VV[nb]+4*p+2*i}:{VV[nb]+4*p+2*i+1}], v{vV} offset:{vo + 16*(16*p+8*i)}" for p in range(2) for i in range(2)]
        if PAIR:
            grp = [[mf(SB, KT[b], QTB, False), mf(SB, KM[b], QMB, True)],
                   [mf(OB, VV[nb] + 4, PB + 4, True), mf(OA, VV[b], PA, True)],
                   [mf(SA, KT[nb], QTA, False), mf(SA, KM[nb], QMA, True)],
                   [mf(OA, VV[b] + 4, PA + 4, True), mf(OB, VV[b], PB, True)]]
            for g in range(4):
                if g == 1:
                    a("s_waitcnt lgkmcnt(0)")
                a(grp[g][0])
                a(grp[g][1])
                if g == 1:
                    if t == 6:
                        chunk_sync()
                    if t == 7:
                        a(f"v_add_u32 v{vV}, s44, v{vV}")
                    a.ext(kr + vr)
                S_, P_ = (SA, PA) if g < 2 else (SB, PB)
                o = 8 * (g % 2)
                for i in range(8):
                    a(f"v_exp_f32 v{S_+o+i}, v{S_+o+i}")
                for i in range(4):
                    a(f"v_cvt_pk_bf16_f32 v{P_+o//2+i}, v{S_+o+2*i}, v{S_+o+2*i+1}")
        else:
            mfs = [mf(SB, KT[b], QTB, False), mf(OB, VV[nb] + 4, PB + 4, True), mf(SB, KM[b], QMB, True), mf(OA, VV[b], PA, True),
                   mf(SA, KT[nb], QTA, False), mf(OA, VV[b] + 4, PA + 4, True), mf(SA, KM[nb], QMA, True), mf(OB, VV[b], PB, True)]
            for sl in range(8):
                if sl == 3:
                    a("s_waitcnt lgkmcnt(0)")
                a(mfs[sl])
                if sl == 3:
                    if t == 6:
                        chunk_sync()
                    if t == 7:
                        a(f"v_add_u32 v{vV}, s44, v{vV}")
                    a.ext(kr)
                if sl in (4, 5):
                    a.ext(vr[2 * (sl - 4):2 * (sl - 4) + 2])
                S_, P_ = (SA, PA) if sl < 4 else (SB, PB)
                o = 4 * (sl % 4)
                for i in range(4):
                    a(f"v_exp_f32 v{S_+o+i}, v{S_+o+i}")
                a(f"v_cvt_pk_bf16_f32 v{P_+o//2}, v{S_+o}, v{S_+o+1}")
                a(f"v_cvt_pk_bf16_f32 v{P_+o//2+1}, v{S_+o+2}, v{S_+o+3}")
    a(f"""
    s_add_u32 s42, s42, 1
    s_cmp_lt_u32 s42, 8
    s_cbranch_scc1 {L}_LOOP
    {mf(OB, VV[1] + 4, PB + 4, True)}
    """)
    pf.stamp()
    a(f"""
    s_waitcnt lgkmcnt(0)
    v_mov_b32 v{T0}, v{OA+10}
    v_mov_b32 v{T0+1}, v{OB+10}
    v_permlane32_swap_b32 v{OA+10}, v{T0}
    v_permlane32_swap_b32 v{OB+10}, v{T0+1}
    s_cmp_lg_u32 s39, 0
    s_cbranch_scc1 {L}_OUT
    s_mov_b32 s44, {fbits(2.0**-70)}
    v_min_f32 v{T0}, v{OA+10}, v{OB+10}
    v_cmp_nle_f32 vcc, s44, v{T0}
    s_cmp_lg_u64 vcc, 0
    s_cselect_b32 s44, 1, 0
    s_barrier
    v_mov_b32 v{T0}, s44
    v_lshlrev_b32 v{T0+1}, 2, v6
    ds_write_b32 v{T0+1}, v{T0}
    v_mov_b32 v{T0+1}, 0
    s_waitcnt lgkmcnt(0)
    s_barrier
    ds_read_b128 v[{T0+2}:{T0+5}], v{T0+1}
    s_waitcnt lgkmcnt(0)
    v_or_b32 v{T0+2}, v{T0+2}, v{T0+3}
    v_or3_b32 v{T0+2}, v{T0+2}, v{T0+4}, v{T0+5}
    v_readfirstlane_b32 s44, v{T0+2}
    s_cmp_eq_u32 s44, 0
    s_cbranch_scc1 {L}_OUT
    s_barrier
    s_mov_b32 s39, 1
    s_mov_b32 exec_lo, 0
    v_mov_b32 v{QTA}, 0
    v_mov_b32 v{QTB}, 0
    s_mov_b32 exec_lo, -1
    v_mov_b32 v{T0}, 0xff800000
    v_mov_b32 v{T0+1}, 0xff800000
    s_mov_b32 s44, s33
    s_mov_b32 s45, 0
    {L}_MAXL:
    buffer_load_dwordx4 v[{KM[0]}:{KM[0]+3}], v{vL16}, s[{sws}:{sws+3}], s44 offen{LS}
    buffer_load_dword v{KT[0]}, v14, s[{sws}:{sws+3}], s44 offen offset:2048{LS}
    s_waitcnt vmcnt(0)
    {mf(SA, KT[0], QTA, False)}
    {mf(SB, KT[0], QTB, False)}
    {mf(SA, KM[0], QMA, True)}
    {mf(SB, KM[0], QMB, True)}
    """)
    for i in range(8):
        a(f"v_max3_f32 v{T0}, v{SA+2*i}, v{SA+2*i+1}, v{T0}")
    for i in range(8):
        a(f"v_max3_f32 v{T0+1}, v{SB+2*i}, v{SB+2*i+1}, v{T0+1}")
    a(f"""
    s_add_u32 s44, s44, 2560
    s_add_u32 s45, s45, 1
    s_cmp_lt_u32 s45, 64
    s_cbranch_scc1 {L}_MAXL
    """)
    for (QT, t) in ((QTA, T0), (QTB, T0 + 1)):
        reduce_x32(a, t, T0 + 2, "v_max_f32")
        a(f"""
        v_sub_f32 v{t}, 0, v{t}
        v_cvt_pk_bf16_f32 v{T0+2}, v{t}, v{t}
        v_lshlrev_b32 v{T0+2}, 16, v{T0+2}
        v_sub_f32 v{T0+3}, v{t}, v{T0+2}
        v_cvt_pk_bf16_f32 v{T0+2}, v{T0+2}, v{T0+3}
        s_mov_b32 exec_lo, 0
        v_mov_b32 v{QT}, v{T0+2}
        s_mov_b32 exec_lo, -1
        """)
    a(f"s_branch {L}_PASS")
    a.label(f"{L}_OUT")
    a(f"""
    s_mul_i32 s44, s36, {36*1024}
    s_add_u32 s44, s44, {OF}
    s_lshl_b32 s45, s30, 10
    s_add_u32 s45, s45, s44
    s_add_u32 s46, s45, {36*1024}
    s_lshr_b32 s47, s30, 2
    s_lshl_b32 s47, s47, 9
    s_and_b32 s48, s30, 3
    s_lshl_b32 s48, s48, 2
    s_add_u32 s47, s47, s48
    s_add_u32 s47, s47, s44
    s_add_u32 s47, s47, {32*1024}
    s_add_u32 s48, s47, {36*1024}
    v_rcp_f32 v{T0}, v{OA+10}
    v_rcp_f32 v{T0+1}, v{OB+10}
    """)
    for (O, t, P_, so, st) in ((OA, T0, PA, 45, 47), (OB, T0 + 1, PB, 46, 48)):
        for i in range(10):
            a(f"v_mul_f32 v{O+i}, v{O+i}, v{t}")
        for i in range(5):
            a(f"v_cvt_pk_bf16_f32 v{P_+i}, v{O+2*i}, v{O+2*i+1}")
        a(f"buffer_store_dwordx4 v[{P_}:{P_+3}], v{vL16}, s[{sws}:{sws+3}], s{so} offen{SC}")
    a(f"""
    s_mov_b32 exec_hi, 0
    buffer_store_dword v{PA+4}, v{vL16}, s[{sws}:{sws+3}], s47 offen{SC}
    buffer_store_dword v{PB+4}, v{vL16}, s[{sws}:{sws+3}], s48 offen{SC}
    s_mov_b32 exec_hi, -1
    """)
```

```python
from common import *
from k3 import poll
from mkz import idmap

STG = 9216
TB0 = 4 * STG


def gemm2_body(a, pf, sid, sws, swsp, sbsp, L="G2", loop_prio=0, mega=False, z1reg=None):
    ACC = 16
    FA = [88, 124]
    FB = [160, 176]
    Z1 = 192
    TMP = 228
    assert mega and not z1reg
    vL16 = 2
    rB, rB2 = 3, 14
    rA = [4, 5, 6, 7]
    rX = [8, 9]
    dT, dT2 = 10, 11
    vU, vU9 = 12, 13
    WIN = int(os.environ.get('WIN', '16')); RM = int(os.environ.get('RM', '0'))
    a(f"""
    v_and_b32 v1, 63, v0
    v_lshrrev_b32 v{TMP}, 6, v0
    s_and_b32 s28, {sid}, 7
    s_lshr_b32 s29, {sid}, 3
    {idmap()}
    v_readfirstlane_b32 s32, v{TMP}   ; wave
    v_lshlrev_b32 v{vL16}, 4, v1
    v_lshrrev_b32 v{TMP+1}, 3, v1
    v_lshrrev_b32 v{TMP+3}, 4, v1
    v_and_b32 v{TMP+2}, 7, v1
    v_xor_b32 v{TMP+2}, v{TMP+2}, v{TMP+3}
    s_lshl_b32 s39, s32, 11
    s_lshl_b32 s38, s32, 13
    s_add_u32 s38, s38, {TB0}
    s_lshl_b32 s40, s32, 8
    s_add_u32 s40, s40, 8192
    s_lshl_b32 s44, s30, 7
    s_lshl_b32 s45, s32, 5
    s_add_u32 s44, s44, s45
    v_add_u32 v{TMP+1}, s44, v{TMP+1}
    v_lshlrev_b32 v{dT}, 12, v{TMP+1}
    v_lshl_add_u32 v{dT}, v{TMP+2}, 4, v{dT}
    v_xor_b32 v{dT2}, 64, v{dT}
    v_add_u32 v{dT2}, {8*4096 - 1024}, v{dT2}
    s_mov_b32 s41, {16*4096 - 2048}
    s_mul_i32 s43, s31, {64*9216}
    s_add_u32 s43, s43, {Z2N}
    s_add_u32 s46, s43, s40
    s_add_u32 s43, s43, s39
    s_mov_b32 s42, 0
    """)

    ZS = " sc1" if mega else ""
    WN = " nt" if os.environ.get("WSPNT", "0") == "1" else ""

    def dma_sp(sl):
        o = sl * STG
        return [f"s_add_u32 m0, s39, {o}\nbuffer_load_dwordx4 v{vL16}, s[{sws}:{sws+3}], s43 offen{ZS} lds",
                f"buffer_load_dwordx4 v{vL16}, s[{sws}:{sws+3}], s43 offen offset:1024{ZS} lds\ns_add_u32 s43, s43, 9216",
                f"s_add_u32 m0, s40, {o}\ns_mov_b64 exec, 0xffff\nbuffer_load_dwordx4 v{vL16}, s[{sws}:{sws+3}], s46 offen{ZS} lds\n"
                f"s_mov_b64 exec, -1\ns_add_u32 s46, s46, 9216"]

    def dma_t(ps):
        return [f"s_add_u32 m0, s38, {ps*4096}\nbuffer_load_dwordx4 v{dT}, s[{swsp}:{swsp+3}], s42 offen lds",
                f"buffer_load_dwordx4 v{dT2}, s[{swsp}:{swsp+3}], s42 offen offset:1024 lds\ns_add_u32 s42, s42, 128",
                f"s_add_u32 m0, s38, {ps*4096}\nbuffer_load_dwordx4 v{dT}, s[{swsp}:{swsp+3}], s41 offen offset:2048 lds",
                f"buffer_load_dwordx4 v{dT2}, s[{swsp}:{swsp+3}], s41 offen offset:3072 lds\ns_add_u32 s41, s41, 128"]

    a(f"""
    v_and_b32 v{TMP+1}, 15, v1
    v_lshrrev_b32 v{TMP+2}, 4, v1                 ; g
    v_lshrrev_b32 v{TMP+3}, 1, v{TMP+1}
    v_xor_b32 v{TMP+3}, v{TMP+3}, v{TMP+2}
    v_lshlrev_b32 v{TMP+3}, 4, v{TMP+3}
    v_lshl_add_u32 v{rB}, v{TMP+1}, 7, v{TMP+3}
    v_add_u32 v{rB}, s38, v{rB}
    v_xor_b32 v{rB2}, 64, v{rB}
    v_lshlrev_b32 v{vU}, 9, v{TMP+2}
    v_lshl_add_u32 v{vU}, v{TMP+1}, 4, v{vU}
    v_lshrrev_b32 v{TMP+3}, 1, v{TMP+2}
    v_lshlrev_b32 v{vU9}, 9, v{TMP+3}
    v_lshl_add_u32 v{vU9}, v{TMP+1}, 4, v{vU9}
    v_and_b32 v{TMP+3}, 1, v{TMP+2}
    v_lshl_add_u32 v{vU9}, v{TMP+3}, 3, v{vU9}
    v_bfe_u32 v{TMP+3}, v1, 2, 2
    v_lshl_add_u32 v{TMP+3}, v{TMP+2}, 3, v{TMP+3}   ; s (i = 0)
    v_and_b32 v{TMP+4}, 1, v1
    v_lshlrev_b32 v{TMP+5}, 2, v{TMP+4}
    v_xor_b32 v{TMP+5}, v{TMP+5}, v{TMP+3}
    v_lshlrev_b32 v{TMP+5}, 4, v{TMP+5}
    v_and_b32 v{TMP+6}, 3, v1
    v_lshl_add_u32 v{TMP+5}, v{TMP+6}, 9, v{TMP+5}
    v_bfe_u32 v{TMP+6}, v1, 1, 1
    v_lshl_add_u32 v{TMP+5}, v{TMP+6}, 3, v{TMP+5}
    v_mov_b32 v{rA[0]}, v{TMP+5}
    v_xor_b32 v{rA[1]}, 64, v{rA[0]}
    v_xor_b32 v{rA[2]}, 8, v{rA[0]}
    v_xor_b32 v{rA[3]}, 8, v{rA[1]}
    v_lshlrev_b32 v{TMP+5}, 2, v{TMP+6}
    v_xor_b32 v{TMP+5}, v{TMP+5}, v{TMP+3}
    v_lshlrev_b32 v{TMP+5}, 4, v{TMP+5}
    v_lshl_add_u32 v{TMP+5}, v{TMP+6}, 9, v{TMP+5}
    v_lshl_add_u32 v{TMP+5}, v{TMP+4}, 3, v{TMP+5}
    v_add_u32 v{rX[0]}, 8192, v{TMP+5}
    v_xor_b32 v{rX[1]}, 64, v{rX[0]}
    s_lshl_b32 s48, s30, 2
    s_add_u32 s48, s48, s32
    s_mul_i32 s48, s48, 144
    s_mul_i32 s49, s31, 9
    s_add_u32 s48, s48, s49
    s_lshl_b32 s48, s48, 10
    s_add_u32 s48, s48, {UF}
    s_add_u32 s49, s48, 4096
    s_add_u32 s50, s48, 8192
    s_lshl_b32 s44, s44, 1
    v_lshlrev_b32 v{TMP+21}, 1, v{TMP+1}
    """)

    def reads(sl):
        o = sl * STG
        fa = FA[sl % 2]
        out = []
        if sl % 2 == 0:
            fb = FB[sl // 2]
            po = (sl // 2) * 4096
            out = [f"ds_read_b128 v[{fb+8*sp+4*b}:{fb+8*sp+4*b+3}], v{rB2 if sp else rB} offset:{po + 2048*b}" for sp in range(2) for b in range(2)]
        for tau in range(9):
            for i in range(2):
                reg = rA[2 * (tau % 2) + i] if tau < 8 else rX[i]
                off = o + (tau // 2) * 2048 if tau < 8 else o
                out.append(f"ds_read_b64_tr_b16 v[{fa+4*tau+2*i}:{fa+4*tau+2*i+1}], v{reg} offset:{off}")
        return out

    def mfmas(sl):
        fa, fb = FA[sl % 2], FB[sl // 2] + 8 * (sl % 2)
        out = []
        for tau in range(9):
            for b in range(2):
                d = ACC + 4 * (2 * tau + b)
                out.append(f"v_mfma_f32_16x16x32_bf16 v[{d}:{d+3}], v[{fa+4*tau}:{fa+4*tau+3}], v[{fb+4*b}:{fb+4*b+3}], v[{d}:{d+3}]")
        return out

    def uop(op, P, b, sc=""):
        if P < 4:
            z = Z1 + 4 * (2 * P + b)
            return f"buffer_{op}_dwordx4 v[{z}:{z+3}], v{vU}, s[{sws}:{sws+3}], s{48 + P // 2} offen offset:{(P % 2) * 2048 + b * 256}{sc}"
        z = Z1 + 32 + 2 * b
        return f"buffer_{op}_dwordx2 v[{z}:{z+1}], v{vU9}, s[{sws}:{sws+3}], s50 offen offset:{b * 256}{sc}"

    for i in range(72):
        a(f"v_mov_b32 v{ACC+i}, 0")
    if mega:
        from mkz import flag_store
        a(f"""
        s_lshl_b32 s51, s31, 7
        s_add_u32 s51, s51, {FL_Z}
        s_lshl_b32 s52, s30, 2
        s_add_u32 s52, s52, s51
        s_lshl_b32 s53, s30, 7
        s_lshl_b32 s54, s31, 2
        s_add_u32 s53, s53, s54
        s_add_u32 s53, s53, {FL_U + 64}
        v_mov_b32 v{TMP+10}, 0
        """)
        if z1reg:
            z1reg[0]()
        a("s_waitcnt vmcnt(0)\ns_barrier")
        flag_store(a, f"{L}_NOSIG", sws, 52, TMP + 8, TMP + 9)
        pf.stamp()
        a.ext(dma_t(0) + dma_t(1))
        if z1reg:
            z1reg[1]()
        a(f"""
        s_cmp_lg_u32 s32, 0
        s_cbranch_scc1 {L}Z_OK
        v_lshlrev_b32 v{TMP+8}, 2, v{TMP+1}
        """)
        poll(a, f"{L}Z", TMP + 9, TMP + 8, sws, 51, sleep=6)
        a("s_barrier")
        for st in range(4):
            a.ext(dma_sp(st))
        pf.stamp()
        a(f"s_waitcnt vmcnt(3)\ns_barrier")
    a.ext(reads(0))
    pf.stamp()

    def body(sl, vm, dma, rdnext, extra=None):
        ms = mfmas(sl)
        rd = reads((sl + 1) % 4) if rdnext else []
        dm = ((dma_t(sl // 2) if sl % 2 == 0 else []) + dma_sp(sl)) if dma else []
        extra = list(extra or [])
        a(f"s_waitcnt vmcnt({vm}) lgkmcnt(0)\ns_barrier")
        step = 2 if len(dm) > 3 else 5
        pos = [1 + (5 * i) // 2 for i in range(7)] if len(dm) > 3 else [1, 6, 11]
        a.ext(rd[:4]); rd = rd[4:]
        for q in range(18):
            a(ms[q])
            if q in pos and dm:
                a(dm.pop(0))
            elif rd:
                a(rd.pop(0))
                if q < 6 and rd:
                    a(rd.pop(0))
        a.ext(rd); a.ext(dm); a.ext(extra)

    zl = ([] if (z1reg or os.environ.get("XNOZ")) else [uop("load", P, b, ZS) for P in range(5) for b in range(2)]) + \
         [f"buffer_load_ushort v{TMP+18}, v{TMP+21}, s[{sbsp}:{sbsp+3}], s44 offen",
          f"buffer_load_ushort v{TMP+19}, v{TMP+21}, s[{sbsp}:{sbsp+3}], s44 offen offset:32"]
    a(f"s_mov_b32 s47, {14 if mega and not z1reg else 15}\ns_setprio {loop_prio}")
    a.label(f"{L}_LOOP")
    for sl in range(4):
        body(sl, 10, True, True)
    a(f"""
    s_sub_u32 s47, s47, 1
    s_cmp_lg_u32 s47, 0
    s_cbranch_scc1 {L}_LOOP
    """)
    if mega and not z1reg:
        body(0, 10, True, True, [f"buffer_load_dword v{TMP+11}, v{TMP+10}, s[{sws}:{sws+3}], s53 offen sc1"])
        body(1, 10, True, True)
        body(2, 10, True, True)
        body(3, 10, True, True)
        a(f"""
        v_readfirstlane_b32 s54, v{TMP+11}
        s_cmp_lg_u32 s54, 0
        s_cbranch_scc1 {L}Z1_OK
        """)
        poll(a, f"{L}Z1", TMP + 11, TMP + 10, sws, 53, sleep=6)
    for sl in range(4):
        body(sl, [10, 3 + len(zl), len(zl), len(zl)][sl], False, sl < 3, zl if sl == 0 else None)
    pf.stamp()
    a(f"""
    s_setprio 3
    s_waitcnt vmcnt(0)
    v_lshlrev_b32 v{TMP+18}, 16, v{TMP+18}
    v_lshlrev_b32 v{TMP+19}, 16, v{TMP+19}
    """)
    for P in range(5):
        for b in range(2):
            if P < 4:
                src = [ACC + 4 * (2 * (2 * P) + b) + i for i in range(4)] + [ACC + 4 * (2 * (2 * P + 1) + b) + i for i in range(4)]
                z = Z1 + 4 * (2 * P + b)
            else:
                src = [ACC + 4 * (16 + b) + i for i in range(4)]
                z = Z1 + 32 + 2 * b
            n = len(src)
            for r in src:
                a(f"v_add_f32 v{r}, v{r}, v{TMP+18+b}")
            for i in range(n // 2):
                a(f"v_lshlrev_b32 v{TMP+2+2*i}, 16, v{z+i}")
                a(f"v_and_b32 v{TMP+3+2*i}, 0xffff0000, v{z+i}")
            for i, r in enumerate(src):
                a(f"v_mul_f32 v{r}, v{r}, v{TMP+2+i}")
            for i in range(n // 2):
                a(f"v_cvt_pk_bf16_f32 v{z+i}, v{src[2*i]}, v{src[2*i+1]}")
            a(uop("store", P, b, " sc1"))
```

```python
from common import *
from mkz import ids, flag_store


def qkv_body(a, pf, sid, sws, L="QK", swsp=None):
    w = Waits(a)
    ACC = 112
    XR_ = 16
    NXU = 5
    WR = XR_ + 8 * NXU
    NW = 12
    TMP = 240
    PK = 16
    vL16, vR2 = 2, 3
    NSL = 5
    NU = 18
    ids(a, sid, TMP)
    a(f"""
    v_add_u32 v{vR2}, 49152, v{vL16}
    s_mul_i32 s34, s33, {36*1024}
    s_add_u32 s34, s34, {XF}
    s_lshl_b32 s35, s32, 12
    s_mul_i32 s37, s31, {WQG}
    s_add_u32 s37, s37, {WQ}
    s_add_u32 s37, s37, s35
    """)

    def issue(u):
        ops = []
        x = XR_ + 8 * (u % NXU)
        for i in range(2 if (u < NXU or not os.environ.get('XNOX')) else 0):
            def f(i=i):
                w.ivm(f"buffer_load_dwordx4 v[{x+4*i}:{x+4*i+3}], v{vL16}, s[{sws}:{sws+3}], s34 offen offset:{1024*(2*(u%2)+i)}", u)
                if i == 1 and u % 2:
                    a("s_add_u32 s34, s34, 4096")
            ops.append(f)
        for i in range(4):
            def f(i=i):
                if i == 0:
                    a(f"s_add_u32 m0, s35, {(u % NSL) * 16384}")
                w.ivm(f"buffer_load_dwordx4 v{vL16}, s[{sws}:{sws+3}], s37 offen offset:{1024*i} lds", u)
                if i == 3:
                    a("s_add_u32 s37, s37, 16384")
            ops.append(f)
        return ops

    def rd(gt):
        off = ((gt // 16) % NSL) * 16384 + (gt % 16) * 1024
        reg = vL16 if off < 49152 else vR2
        off -= 0 if off < 49152 else 49152
        d = WR + 4 * (gt % NW)
        w.ilg(f"ds_read_b128 v[{d}:{d+3}], v{reg} offset:{off}", gt)

    QD = 3
    for u in range(QD + 1):
        for f in issue(u):
            f()
    vQt, vKVt, vKm, vGC2, vZ = 4, 5, 6, 249, 248
    a(f"""
    v_and_b32 v{TMP+1}, 31, v1              ; s
    v_lshrrev_b32 v{TMP}, 5, v1             ; h
    s_lshl_b32 s47, s31, 7
    s_add_u32 s47, s47, s33           ; 2g*64 + rt
    s_mul_i32 s48, s47, 1152
    s_add_u32 s48, s48, {QF}
    s_add_u32 s59, s48, {64*1152}
    s_mul_i32 s49, s47, 2560
    s_add_u32 s49, s49, {KV}
    s_add_u32 s50, s49, {64*2560}
    s_mov_b32 s51, {fbits(QSCALE)}
    s_mov_b32 s54, 0x02020202
    s_mov_b32 s55, 0x02020202
    s_mov_b32 s56, 0x01010101
    s_mov_b32 s57, 0x01010101
    v_mul_u32_u24 v{vQt}, {64*1152}, v{TMP}
    v_lshl_add_u32 v{vQt}, v{TMP+1}, 2, v{vQt}
    v_mul_u32_u24 v{vKVt}, {64*2560}, v{TMP}
    v_lshl_add_u32 v{vKVt}, v{TMP+1}, 4, v{vKVt}
    v_lshlrev_b32 v{vKm}, 8, v{TMP}
    s_lshl_b32 s52, s47, 2
    s_add_u32 s52, s52, {KMX}
    s_lshl_b32 s53, s31, 7
    s_lshl_b32 s58, s30, 2
    s_add_u32 s53, s53, s58
    s_add_u32 s53, s53, {FL_KV}
    s_lshl_b32 s60, s30, 7
    s_lshl_b32 s58, s31, 2
    s_add_u32 s60, s60, s58
    s_add_u32 s60, s60, {FL_U + 64}
    s_mul_i32 s61, s33, 144
    s_mul_i32 s43, s31, 9
    s_add_u32 s61, s61, s43
    s_lshl_b32 s61, s61, 10
    s_add_u32 s61, s61, {UF}
    v_mov_b32 v{vGC2}, {fbits(GC2)}
    v_mov_b32 v{vZ}, v{vL16}
    v_add_u32 v250, 4096, v{vL16}
    v_add_u32 v251, 8192, v{vL16}
    """)
    PFQ = int(os.environ.get("PFQ", "0"))
    if PFQ:
        a(f"""
        v_lshlrev_b32 v10, 7, v1
        v_mov_b32 v11, 0x40000000
        v_cmp_gt_u32 vcc, {PFQ}, v1
        v_cndmask_b32 v10, v11, v10, vcc
        s_lshl_b32 s46, {sid}, 2
        s_add_u32 s46, s46, s32
        s_lshl_b32 s46, s46, 13
        """)
    npf = [0]
    w.wvm(0)
    a("s_barrier")
    AH = 8
    for gt in range(AH):
        rd(gt)
    pend = []
    NG = 36 * 8
    for gt in range(NG):
        t, T = divmod(gt, 8)
        nx = gt + AH
        if nx < NG and nx % 16 == 0:
            u = nx // 16
            for f in pend:
                f()
            w.wvm(u)
            a("s_barrier")
            pend = issue(u + QD) if u + QD < NU else []
            if PFQ and npf[0] < 64 // PFQ and u >= int(os.environ.get("PFQ0", "2")) and (u % int(os.environ.get("PFQS", "2")) == 0):
                pend.append(lambda: (w.ivm(f"buffer_load_dword v11, v10, s[{swsp}:{swsp+3}], s46 offen", "pf"), a(f"s_add_u32 s46, s46, {PFQ*128}")))
                npf[0] += 1
        if T % 2 == 0:
            w.wlg(gt + 1)
        x = XR_ + 8 * ((t // 2) % NXU) + 4 * (t % 2)
        wf = WR + 4 * (gt % NW)
        c = "0" if t == 0 else f"v[{ACC+16*T}:{ACC+16*T+15}]"
        a(f"v_mfma_f32_32x32x16_bf16 v[{ACC+16*T}:{ACC+16*T+15}], v[{wf}:{wf+3}], v[{x}:{x+3}], {c}")
        if nx < NG:
            rd(nx)
        if pend and T % 2 == 0:
            pend.pop(0)()
    for f in pend:
        f()
    assert not PFQ or npf[0] == 64 // PFQ, npf
    pf.stamp()
    a("s_setprio 3")
    Q, K, V, M = ACC, ACC + 16, ACC + 32, ACC + 48
    for j, (X, s0, s1, off) in enumerate(((K, 49, 50, 0), (V, 49, 50, 1024), (Q, 48, 59, 0))):
        if X == Q:
            for i in range(16):
                a(f"v_mul_f32 v{Q+i}, s51, v{Q+i}")
        p = PK + 8 * j
        for i in range(8):
            a(f"v_cvt_pk_bf16_f32 v{p+i}, v{X+2*i}, v{X+2*i+1}")
        a(f"buffer_store_dwordx4 v[{p}:{p+3}], v{vL16}, s[{sws}:{sws+3}], s{s0} offen offset:{off} sc1")
        a(f"buffer_store_dwordx4 v[{p+4}:{p+7}], v{vL16}, s[{sws}:{sws+3}], s{s1} offen offset:{off} sc1")
    kk = PK + 33
    a(f"""
    v_mul_f32 v{M}, s51, v{M}
    v_mul_f32 v{M+1}, s51, v{M+1}
    v_cvt_pk_bf16_f32 v{PK+32}, v{M}, v{M+1}
    v_cvt_pk_bf16_f32 v{PK+28}, v{M+2}, v{M+3}
    v_mov_b32 v{PK+29}, 0x3f803f80
    v_cvt_pk_bf16_f32 v{PK+30}, v{M+4}, v{M+5}
    v_mov_b32_dpp v{PK+31}, v{PK+28} row_shr:1 row_mask:0xf bank_mask:0xf
    v_cndmask_b32 v{PK+29}, v{PK+29}, v{PK+31}, s[54:55]
    v_cndmask_b32 v{PK+29}, v{PK+29}, 0, s[56:57]
    v_cndmask_b32 v{PK+28}, v{PK+28}, 0, s[56:57]
    v_mov_b32 v{PK+31}, 0x00003f80
    buffer_store_dwordx4 v[{PK+28}:{PK+31}], v{vKVt}, s[{sws}:{sws+3}], s49 offen offset:2048 sc1
    buffer_store_dword v{PK+32}, v{vQt}, s[{sws}:{sws+3}], s48 offen offset:1024 sc1
    v_mul_f32 v{kk}, v{K}, v{K}
    v_mul_f32 v{kk+1}, v{K+8}, v{K+8}
    """)
    for i in range(1, 8):
        a(f"v_fmac_f32 v{kk}, v{K+i}, v{K+i}\nv_fmac_f32 v{kk+1}, v{K+8+i}, v{K+8+i}")
    a(f"""
    v_permlane32_swap_b32 v{kk}, v{kk+1}
    v_add_f32 v{kk}, v{kk}, v{kk+1}
    v_fmac_f32 v{kk}, v{M+2}, v{M+2}
    v_fmac_f32 v{kk}, v{M+3}, v{M+3}
    """)
    reduce16(a, kk, kk + 1, "v_max_f32")
    reduce_x16(a, kk, kk + 1, "v_max_f32")
    a(f"""
    s_mov_b32 exec_lo, 1
    s_mov_b32 exec_hi, 1
    buffer_store_dword v{kk}, v{vKm}, s[{sws}:{sws+3}], s52 offen sc1
    s_mov_b64 exec, -1
    s_setprio {int(os.environ.get('PZ1E', '1'))}
    """)
    pf.stamp()
    a(f"s_mov_b32 s56, {fbits(GC1)}")
    T8 = [TMP + i for i in range(8)]
    grp = [(ACC + 64 + 8 * gi, (vZ, 250)[gi // 4], (gi % 4) * 1024) for gi in range(8)] + [(M + 8, 251, 0)]
    KVH = int(os.environ.get("KVH", "4"))
    KVP = int(os.environ.get("KVP", "7"))

    def gel(lo, hi):
        for base, _, _ in grp[lo:hi]:
            a.ext(gelu_group(list(range(base, base + 8)), T8, 56, vGC2))
            for i in range(4):
                a(f"v_cvt_pk_bf16_f32 v{base+i}, v{base+2*i}, v{base+2*i+1}")
    gel(0, KVH)
    a("s_waitcnt vmcnt(0)\ns_barrier")
    flag_store(a, f"{L}_F1", sws, 53, 8, 9)
    gel(KVH, KVP)

    def stores(wait=True):
        if wait:
            a("s_waitcnt vmcnt(10)")
        for base, vo, off in (grp if not os.environ.get('XNOZ') else []):
            a(f"buffer_store_dwordx4 v[{base}:{base+3}], v{vo}, s[{sws}:{sws+3}], s61 offen offset:{off} sc1")
    return (lambda: gel(KVP, 9)), stores
```

```python
import sys
from common import *
from mk0 import build_k0

HEADER = open("recurrent_scan__mha_block__mixer_gmlp__prompt.s.ref").read().split("; Override launch")[0]

DOC = """;
"""

def build(kernels, path):
    out = HEADER
    for k in kernels:
        out += f"; @launch kernel={k.name} grid=({k.grid},1,1) block=({k.block},1,1) lds={k.lds}\n"
    out += DOC
    out += '.amdgcn_target "amdgcn-amd-amdhsa--gfx950"\n.text\n'
    seen = []
    for k in kernels:
        if k.name in seen:
            continue
        seen.append(k.name)
        out += k.text()
    out += 'ALL_CODE_END:\n    s_endpgm\n.section .rodata,"a"\n'
    seen = []
    for k in kernels:
        if k.name in seen:
            continue
        seen.append(k.name)
        out += k.desc()
    open(path, "w").write(out)
    for k in kernels:
        print(k.name, "instrs", len(k.a.lines), "nops inserted", k.a.n_nops)

if __name__ == "__main__":
    import os
    from mk2 import build_k2
    pa = int(os.environ.get("PA", "3")); pg = int(os.environ.get("PG", "2"))
    ks = [build_k0(), build_k2(pa, pg)]
    def empty(name):
        k = Kernel(name, 256, 64, 0, 8)
        k.a("s_endpgm")
        return k
    for i in range(int(os.environ.get("EPRE", "0"))):
        ks.insert(0, empty(f"e{i}_kernel"))
    for i in range(int(os.environ.get("EPOST", "0"))):
        ks.append(empty(f"f{i}_kernel"))
    if os.environ.get("TWICE"):
        ks = ks + ks[:int(os.environ["TWICE"])] + ks[int(os.environ["TWICE"]):] * 0
    if os.environ.get("SEQ"):
        ks = [ks[int(c)] for c in os.environ["SEQ"]]
    if os.environ.get("DUP"):
        i = int(os.environ["DUP"]); ks.insert(i, ks[i])
    build(ks, sys.argv[1] if len(sys.argv) > 1 else "recurrent_scan__mha_block__mixer_gmlp__prompt.s")
```

```python
from common import *

SC = " sc1"
CH = 20480
NSL = 4

def attn_body(a, pf, sid, sws, L="AT", swout=None, swo=None, swsp=None, pfw=None, mega=False, mid=None, mid2=None, late_flag=None):
    SA, SB, OA, OB = 16, 32, 48, 64
    LS = ' sc1' if mega else ''
    PA, PB = 80, 88
    QMA, QMB, QTA, QTB = 96, 100, 104, 108
    KM = [112, 116]; KT = [120, 124]
    VV = [128, 136]
    vK, vKt, vV, vL16 = 2, 3, 4, 5
    T0 = 144
    a(f"""
    v_and_b32 v1, 63, v0
    v_lshrrev_b32 v6, 6, v0
    s_and_b32 s28, {sid}, 7
    s_lshr_b32 s29, {sid}, 3
    s_lshl_b32 s30, s28, 2
    s_lshr_b32 s31, s29, 3
    s_add_u32 s30, s30, s31           ; head
    s_and_b32 s31, s29, 7             ; qb
    v_readfirstlane_b32 s32, v6       ; wave
    v_lshlrev_b32 v{vL16}, 4, v1
    s_mul_i32 s33, s30, {64*2560}
    s_add_u32 s33, s33, {KV}
    s_mul_i32 s35, s32, 5120
    s_lshl_b32 s36, s31, 3
    s_lshl_b32 s37, s32, 1
    s_add_u32 s36, s36, s37           ; qt
    s_lshl_b32 s37, s30, 6
    s_add_u32 s37, s37, s36
    s_mul_i32 s37, s37, 1152
    s_add_u32 s37, s37, {QF}
    s_lshl_b32 s38, s30, 8
    s_add_u32 s38, s38, {KMX}
    v_lshlrev_b32 v7, 2, v1           ; lane*4
    v_mov_b32 v{QTA}, 0
    v_mov_b32 v{QTB}, 0
    """)
    if mega:
        from k3 import poll
        a(f"""
        s_cmp_lg_u32 s32, 0
        s_cbranch_scc1 {L}KV_OK
        s_lshr_b32 s44, s30, 1
        s_lshl_b32 s44, s44, 7
        s_add_u32 s44, s44, {FL_KV}
        v_and_b32 v8, 15, v1
        v_lshlrev_b32 v8, 2, v8
        """)
        poll(a, f"{L}KV", 9, 8, sws, 44, sleep=6)
        a("s_barrier")
        pf.stamp()
    a(f"""
    buffer_load_dwordx4 v[{QMA}:{QMA+3}], v{vL16}, s[{sws}:{sws+3}], s37 offen{LS}
    buffer_load_dwordx4 v[{QMB}:{QMB+3}], v{vL16}, s[{sws}:{sws+3}], s37 offen offset:1152{LS}
    buffer_load_dword v{T0}, v7, s[{sws}:{sws+3}], s38 offen{LS}
    s_mov_b32 exec_hi, 0
    buffer_load_dword v{QTA}, v7, s[{sws}:{sws+3}], s37 offen offset:1024{LS}
    buffer_load_dword v{QTB}, v7, s[{sws}:{sws+3}], s37 offen offset:{1152+1024}{LS}
    s_mov_b32 exec_hi, -1
    s_mov_b32 s39, 0
    """)

    def dma_chunk():
        a(f"""
        s_mov_b32 m0, s40
        s_add_u32 s41, s34, 4096
        buffer_load_dwordx4 v{vL16}, s[{sws}:{sws+3}], s34 offen{LS} lds
        buffer_load_dwordx4 v{vL16}, s[{sws}:{sws+3}], s34 offen offset:1024{LS} lds
        buffer_load_dwordx4 v{vL16}, s[{sws}:{sws+3}], s34 offen offset:2048{LS} lds
        buffer_load_dwordx4 v{vL16}, s[{sws}:{sws+3}], s34 offen offset:3072{LS} lds
        s_add_u32 m0, s40, 4096
        s_add_u32 s34, s34, {CH}
        buffer_load_dwordx4 v{vL16}, s[{sws}:{sws+3}], s41 offen{LS} lds
        s_add_u32 s40, s40, {CH}
        s_sub_u32 s41, s40, {NSL*CH}
        s_cmp_ge_u32 s40, {NSL*CH}
        s_cselect_b32 s40, s41, s40
        """)

    a.label(f"{L}_PASS")
    a(f"""
    s_add_u32 s34, s33, s35
    s_mov_b32 s40, s35
    """)
    for c in range(3):
        dma_chunk()
    a(f"""
    v_mov_b32 v{vK}, v{vL16}
    v_and_b32 v8, 31, v1
    v_lshrrev_b32 v9, 5, v1           ; h
    v_lshlrev_b32 v{vKt}, 4, v8
    v_add_u32 v10, 20, v{vKt}
    v_and_b32 v11, 7, v8
    v_cmp_eq_u32 vcc, 0, v11
    v_cndmask_b32 v{vKt}, v{vKt}, v10, vcc
    v_mov_b32 v10, 36
    v_cmp_ne_u32 vcc, 0, v9
    v_cndmask_b32 v{vKt}, v{vKt}, v10, vcc
    v_mov_b32 v14, v{vKt}
    v_add_u32 v{vKt}, 2048, v{vKt}
    v_bfe_u32 v10, v1, 2, 2           ; r
    v_lshl_add_u32 v10, v9, 2, v10    ; key = 4h + r
    v_lshlrev_b32 v10, 4, v10
    v_and_b32 v11, 1, v1
    v_lshlrev_b32 v11, 9, v11
    v_bfe_u32 v12, v1, 1, 1
    v_lshl_add_u32 v11, v12, 3, v11
    v_add_u32 v11, 1024, v11
    v_mov_b32 v12, {2048+8}
    v_and_b32 v13, 16, v1
    v_cmp_ne_u32 vcc, 0, v13
    v_cndmask_b32 v11, v11, v12, vcc
    v_add_u32 v{vV}, v10, v11
    v_and_b32 v13, 19, v1
    v_mov_b32 v12, 2048
    v_cmp_lt_u32 vcc, 16, v13
    v_cndmask_b32 v{vV}, v{vV}, v12, vcc
    """)
    for r in list(range(OA, OA + 32)) + list(range(PB + 4, PB + 8)) + list(range(VV[1], VV[1] + 8)) \
            + [QTA + 1, QTA + 2, QTA + 3, QTB + 1, QTB + 2, QTB + 3] + [KT[0] + i for i in (1, 2, 3)] + [KT[1] + i for i in (1, 2, 3)]:
        a(f"v_mov_b32 v{r}, 0")
    a(f"""
    s_cmp_lg_u32 s39, 0
    s_cbranch_scc1 {L}_GO
    """)
    if mid:
        mid()
    a("s_waitcnt vmcnt(15)")
    reduce16(a, T0, T0 + 1, "v_max_f32")
    reduce_x16(a, T0, T0 + 1, "v_max_f32")
    reduce_x32(a, T0, T0 + 1, "v_max_f32")
    for (QM, QT, t) in ((QMA, QTA, T0 + 2), (QMB, QTB, T0 + 3)):
        a(f"v_dot2_f32_bf16 v{t}, v{QT}, v{QT}, 0")
        for i in range(4):
            a(f"v_dot2_f32_bf16 v{t}, v{QM+i}, v{QM+i}, v{t}")
    a("s_nop 2")
    for (QT, t) in ((QTA, T0 + 2), (QTB, T0 + 3)):
        reduce_x32(a, t, T0 + 1)
        a(f"""
        v_mul_f32 v{t}, v{t}, v{T0}
        v_sqrt_f32 v{t}, v{t}
        v_mul_f32 v{t}, {fbits(-1.02)}, v{t}
        v_mov_b32 v{T0+1}, 0
        v_cvt_pk_bf16_f32 v{t}, v{t}, v{T0+1}
        s_mov_b32 exec_lo, 0
        v_mov_b32 v{QT}, v{t}
        s_mov_b32 exec_lo, -1
        """)
    LATE = int(os.environ.get("ZLATE", "1"))
    if mid2 and not LATE:
        mid2()
    a.label(f"{L}_GO")
    pf.stamp()
    a(f"""
    s_waitcnt vmcnt(10)
    s_barrier
    ds_read_b128 v[{KM[0]}:{KM[0]+3}], v{vK}
    ds_read_b32 v{KT[0]}, v{vKt}
    ds_read_b128 v[{KM[1]}:{KM[1]+3}], v{vK} offset:2560
    ds_read_b32 v{KT[1]}, v{vKt} offset:2560
    """)
    for p in range(2):
        for i in range(2):
            a(f"ds_read_b64_tr_b16 v[{VV[0]+4*p+2*i}:{VV[0]+4*p+2*i+1}], v{vV} offset:{16*(16*p+8*i)}")
    X8 = int(os.environ.get("X8", "1"))
    def mf(d, x, y, c):
        if not c and X8:
            return f"v_mfma_f32_32x32x8bf16_1k v[{d}:{d+15}], v[{x}:{x+1}], v[{y}:{y+1}], 0"
        return f"v_mfma_f32_32x32x16_bf16 v[{d}:{d+15}], v[{x}:{x+3}], v[{y}:{y+3}], " + (f"v[{d}:{d+15}]" if c else "0")
    PFW, PFZ, PFD = T0 + 8, T0 + 9, T0 + 10

    def touch():
        a(f"""
        buffer_load_dword v{PFD}, v{PFW}, s[{swsp}:{swsp+3}], s50 offen
        buffer_load_dword v{PFD+1}, v{PFZ}, s[{sws}:{sws+3}], s51 offen
        s_add_u32 s50, s50, 512
        s_add_u32 s51, s51, 16384
        """)
    if pfw is not None:
        a(f"""
        s_lshl_b32 s52, {sid}, 2
        s_add_u32 s52, s52, s32
        s_mul_i32 s50, s52, {21*128}
        s_mul_i32 s51, s52, {6*128}
        v_lshlrev_b32 v{PFZ}, 7, v1
        v_mov_b32 v{PFD}, 0x40000000
        v_cmp_gt_u32 vcc, 5, v1
        v_cndmask_b32 v{PFW}, v{PFD}, v{PFZ}, vcc
        v_cmp_gt_u32 vcc, 2, v1
        v_cndmask_b32 v{PFZ}, v{PFD}, v{PFZ}, vcc
        """)
    if swout is not None:
        a(f"""
        s_lshl_b32 s52, s29, 2
        s_add_u32 s52, s52, s32           ; wave index within this id%8 class
        s_and_b32 s50, s28, 1
        s_lshl_b32 s50, s50, 10
        s_lshl_b32 s51, s52, 3
        s_add_u32 s50, s50, s51
        s_lshl_b32 s50, s50, 12
        v_lshrrev_b32 v{PFW}, 2, v1
        v_lshlrev_b32 v{PFW}, 12, v{PFW}
        v_and_b32 v{PFZ}, 3, v1
        v_lshl_add_u32 v{PFW}, v{PFZ}, 7, v{PFW}
        v_mov_b32 v{PFD}, 0x40000000
        v_cmp_gt_u32 vcc, 32, v1
        v_cndmask_b32 v{PFW}, v{PFD}, v{PFW}, vcc
        v_lshlrev_b32 v{PFZ}, 17, v1
        v_cmp_gt_u32 vcc, 18, v1
        v_cndmask_b32 v{PFZ}, v{PFD}, v{PFZ}, vcc
        s_lshr_b32 s51, s28, 1
        s_mul_i32 s51, s51, {18*131072}
        s_lshl_b32 s53, s52, 7
        s_add_u32 s51, s51, s53
        s_add_u32 s51, s51, {Z2N}
        s_mul_i32 s54, s52, {162*128}
        s_mul_i32 s55, s52, {41*128}
        """)
        touch()
        touch()
    a(f"""
    s_waitcnt lgkmcnt(0)
    {mf(SA, KT[0], QTA, False)}
    {mf(SA, KM[0], QMA, True)}
    s_mov_b32 s42, 0
    s_mov_b32 s43, 0
    s_nop 9
    """)
    pf.stamp()
    a.label(f"{L}_LOOP")
    NHI = int(os.environ.get("NHI", "1"))
    a(f"""
    s_cmp_lg_u32 s42, {NHI}
    s_cbranch_scc1 {L}_KEEP
    s_setprio {int(os.environ.get("ALP", "1"))}
    {L}_KEEP:
    """)
    PAIR = int(os.environ.get("PAIR", "0"))

    def chunk_sync():
        a(f"""
        s_cmp_ge_u32 s42, 5
        s_cbranch_scc1 {L}_NODMA
        s_waitcnt vmcnt(5)
        s_barrier
        """)
        if mid2 and LATE:
            a(f"""
            s_or_b32 s44, s42, s39
            s_cmp_lg_u32 s44, 0
            s_cbranch_scc1 {L}_NZS
            """)
            mid2(wait=False)
            a.label(f"{L}_NZS")
        if late_flag is not None:
            a(f"""
            s_cmp_lg_u32 s42, 1
            s_cbranch_scc1 {L}_LF
            """)
            from mkz import flag_store
            flag_store(a, f"{L}_LF", sws, late_flag, T0 + 4, T0 + 5)
        if pfw is not None:
            a(f"""
            buffer_load_dword v{PFD}, v{PFW}, s[{pfw[0]}:{pfw[0]+3}], s50 offen
            buffer_load_dword v{PFD+1}, v{PFZ}, s[{pfw[1]}:{pfw[1]+3}], s51 offen
            s_add_u32 s50, s50, {5*128}
            s_add_u32 s51, s51, {2*128}
            """)
        dma_chunk()
        a(f"""
        s_branch {L}_DMADONE
        {L}_NODMA:
        s_waitcnt vmcnt(0)
        s_barrier
        """)
        if swout is not None:
            a(f"""
            s_cmp_lg_u32 s42, 5
            s_cbranch_scc1 {L}_PFW
            """)
            touch()
            a(f"""
            v_lshlrev_b32 v{PFW}, 7, v1
            buffer_load_dword v{PFD}, v{PFW}, s[{swo}:{swo+3}], s55 offen
            {L}_PFW:
            buffer_load_dword v{PFD+1}, v{PFW}, s[{swout}:{swout+3}], s54 offen
            s_add_u32 s54, s54, {54*128}
            """)
        a(f"""
        {L}_DMADONE:
        s_add_u32 s43, s43, {CH}
        s_mov_b32 s44, {CH}
        s_cmp_ge_u32 s43, {NSL*CH}
        s_cselect_b32 s44, {-(NSL-1)*CH & 0xffffffff}, s44
        s_cselect_b32 s43, 0, s43
        v_add_u32 v{vK}, s44, v{vK}
        v_add_u32 v{vKt}, s44, v{vKt}
        """)

    for t in range(8):
        b, nb = t % 2, (t + 1) % 2
        ko = ((t + 2) % 8) * 2560
        vo = ((t + 1) % 8) * 2560
        kr = [f"ds_read_b128 v[{KM[b]}:{KM[b]+3}], v{vK} offset:{ko}", f"ds_read_b32 v{KT[b]}, v{vKt} offset:{ko}"]
        vr = [f"ds_read_b64_tr_b16 v[{VV[nb]+4*p+2*i}:{VV[nb]+4*p+2*i+1}], v{vV} offset:{vo + 16*(16*p+8*i)}" for p in range(2) for i in range(2)]
        if PAIR:
            grp = [[mf(SB, KT[b], QTB, False), mf(SB, KM[b], QMB, True)],
                   [mf(OB, VV[nb] + 4, PB + 4, True), mf(OA, VV[b], PA, True)],
                   [mf(SA, KT[nb], QTA, False), mf(SA, KM[nb], QMA, True)],
                   [mf(OA, VV[b] + 4, PA + 4, True), mf(OB, VV[b], PB, True)]]
            for g in range(4):
                if g == 1:
                    a("s_waitcnt lgkmcnt(0)")
                a(grp[g][0])
                a(grp[g][1])
                if g == 1:
                    if t == 6:
                        chunk_sync()
                    if t == 7:
                        a(f"v_add_u32 v{vV}, s44, v{vV}")
                    a.ext(kr + vr)
                S_, P_ = (SA, PA) if g < 2 else (SB, PB)
                o = 8 * (g % 2)
                for i in range(8):
                    a(f"v_exp_f32 v{S_+o+i}, v{S_+o+i}")
                for i in range(4):
                    a(f"v_cvt_pk_bf16_f32 v{P_+o//2+i}, v{S_+o+2*i}, v{S_+o+2*i+1}")
        else:
            mfs = [mf(SB, KT[b], QTB, False), mf(OB, VV[nb] + 4, PB + 4, True), mf(SB, KM[b], QMB, True), mf(OA, VV[b], PA, True),
                   mf(SA, KT[nb], QTA, False), mf(OA, VV[b] + 4, PA + 4, True), mf(SA, KM[nb], QMA, True), mf(OB, VV[b], PB, True)]
            for sl in range(8):
                if sl == 3:
                    a("s_waitcnt lgkmcnt(0)")
                a(mfs[sl])
                if sl == 3:
                    if t == 6:
                        chunk_sync()
                    if t == 7:
                        a(f"v_add_u32 v{vV}, s44, v{vV}")
                    a.ext(kr)
                if sl in (4, 5):
                    a.ext(vr[2 * (sl - 4):2 * (sl - 4) + 2])
                S_, P_ = (SA, PA) if sl < 4 else (SB, PB)
                o = 4 * (sl % 4)
                for i in range(4):
                    a(f"v_exp_f32 v{S_+o+i}, v{S_+o+i}")
                a(f"v_cvt_pk_bf16_f32 v{P_+o//2}, v{S_+o}, v{S_+o+1}")
                a(f"v_cvt_pk_bf16_f32 v{P_+o//2+1}, v{S_+o+2}, v{S_+o+3}")
    a(f"""
    s_add_u32 s42, s42, 1
    s_cmp_lt_u32 s42, 8
    s_cbranch_scc1 {L}_LOOP
    {mf(OB, VV[1] + 4, PB + 4, True)}
    """)
    pf.stamp()
    a(f"""
    v_mov_b32 v{T0}, v{OA+10}
    v_mov_b32 v{T0+1}, v{OB+10}
    v_permlane32_swap_b32 v{OA+10}, v{T0}
    v_permlane32_swap_b32 v{OB+10}, v{T0+1}
    s_mov_b32 s44, {fbits(2.0**-70)}
    v_min_f32 v{T0}, v{OA+10}, v{OB+10}
    v_cmp_nle_f32 vcc, s44, v{T0}
    s_cmp_lg_u64 vcc, 0
    s_cselect_b32 s44, 1, 0
    v_mov_b32 v{T0+2}, s44
    v_lshlrev_b32 v{T0+3}, 2, v6
    ds_write_b32 v{T0+3}, v{T0+2} offset:{CH}
    """)
    a(f"""
    s_mul_i32 s44, s36, {36*1024}
    s_add_u32 s44, s44, {OF}
    s_lshl_b32 s45, s30, 10
    s_add_u32 s45, s45, s44
    s_add_u32 s46, s45, {36*1024}
    s_lshr_b32 s47, s30, 2
    s_lshl_b32 s47, s47, 9
    s_and_b32 s48, s30, 3
    s_lshl_b32 s48, s48, 2
    s_add_u32 s47, s47, s48
    s_add_u32 s47, s47, s44
    s_add_u32 s47, s47, {32*1024}
    s_add_u32 s48, s47, {36*1024}
    v_rcp_f32 v{T0}, v{OA+10}
    v_rcp_f32 v{T0+1}, v{OB+10}
    """)
    for (O, t, P_, so, st) in ((OA, T0, PA, 45, 47), (OB, T0 + 1, PB, 46, 48)):
        for i in range(10):
            a(f"v_mul_f32 v{O+i}, v{O+i}, v{t}")
        for i in range(5):
            a(f"v_cvt_pk_bf16_f32 v{P_+i}, v{O+2*i}, v{O+2*i+1}")
        a(f"buffer_store_dwordx4 v[{P_}:{P_+3}], v{vL16}, s[{sws}:{sws+3}], s{so} offen{SC}")
    a(f"""
    s_mov_b32 exec_hi, 0
    buffer_store_dword v{PA+4}, v{vL16}, s[{sws}:{sws+3}], s47 offen{SC}
    buffer_store_dword v{PB+4}, v{vL16}, s[{sws}:{sws+3}], s48 offen{SC}
    s_mov_b32 exec_hi, -1
    """)
    a(f"""
    v_mov_b32 v{T0+1}, 0
    s_waitcnt vmcnt(0) lgkmcnt(0)
    s_barrier
    s_cmp_lg_u32 s39, 0
    s_cbranch_scc1 {L}_OUT
    ds_read_b128 v[{T0+2}:{T0+5}], v{T0+1} offset:{CH}
    s_waitcnt lgkmcnt(0)
    v_or_b32 v{T0+2}, v{T0+2}, v{T0+3}
    v_or3_b32 v{T0+2}, v{T0+2}, v{T0+4}, v{T0+5}
    v_readfirstlane_b32 s44, v{T0+2}
    s_cmp_eq_u32 s44, 0
    s_cbranch_scc1 {L}_OUT
    s_barrier
    s_mov_b32 s39, 1
    s_mov_b32 exec_lo, 0
    v_mov_b32 v{QTA}, 0
    v_mov_b32 v{QTB}, 0
    s_mov_b32 exec_lo, -1
    v_mov_b32 v{T0}, 0xff800000
    v_mov_b32 v{T0+1}, 0xff800000
    s_mov_b32 s44, s33
    s_mov_b32 s45, 0
    {L}_MAXL:
    buffer_load_dwordx4 v[{KM[0]}:{KM[0]+3}], v{vL16}, s[{sws}:{sws+3}], s44 offen{LS}
    buffer_load_dword v{KT[0]}, v14, s[{sws}:{sws+3}], s44 offen offset:2048{LS}
    s_waitcnt vmcnt(0)
    {mf(SA, KT[0], QTA, False)}
    {mf(SB, KT[0], QTB, False)}
    {mf(SA, KM[0], QMA, True)}
    {mf(SB, KM[0], QMB, True)}
    """)
    for i in range(8):
        a(f"v_max3_f32 v{T0}, v{SA+2*i}, v{SA+2*i+1}, v{T0}")
    for i in range(8):
        a(f"v_max3_f32 v{T0+1}, v{SB+2*i}, v{SB+2*i+1}, v{T0+1}")
    a(f"""
    s_add_u32 s44, s44, 2560
    s_add_u32 s45, s45, 1
    s_cmp_lt_u32 s45, 64
    s_cbranch_scc1 {L}_MAXL
    """)
    for (QT, t) in ((QTA, T0), (QTB, T0 + 1)):
        reduce_x32(a, t, T0 + 2, "v_max_f32")
        a(f"""
        v_sub_f32 v{t}, 0, v{t}
        v_cvt_pk_bf16_f32 v{T0+2}, v{t}, v{t}
        v_lshlrev_b32 v{T0+2}, 16, v{T0+2}
        v_sub_f32 v{T0+3}, v{t}, v{T0+2}
        v_cvt_pk_bf16_f32 v{T0+2}, v{T0+2}, v{T0+3}
        s_mov_b32 exec_lo, 0
        v_mov_b32 v{QT}, v{T0+2}
        s_mov_b32 exec_lo, -1
        """)
    a(f"s_branch {L}_PASS")
    a.label(f"{L}_OUT")
```

```python
from common import *

NT = " nt" if os.environ.get("NT0", "1") == "1" else ""
NT2 = " nt" if os.environ.get("NTX", "0") == "1" else ""
SC = " sc1" if os.environ.get("SC1", "0") == "1" else ""

def ln_finish(a, f, n, vmean, vvar, t, pk):
    round_bf16(a, vmean)
    round_bf16(a, vvar)
    a(f"v_add_f32 v{vvar}, {fbits(1e-5)}, v{vvar}")
    round_bf16(a, vvar)
    a(f"v_sqrt_f32 v{vvar}, v{vvar}")
    round_bf16(a, vvar)
    a(f"v_rcp_f32 v{vvar}, v{vvar}")
    for i in range(n):
        a(f"v_sub_f32 v{f+i}, v{f+i}, v{vmean}")
    for i in range(n // 2):
        a(f"v_cvt_pk_bf16_f32 v{pk+i}, v{f+2*i}, v{f+2*i+1}")
    for i in range(n // 2):
        a(f"v_lshlrev_b32 v{f+2*i}, 16, v{pk+i}")
        a(f"v_and_b32 v{f+2*i+1}, 0xffff0000, v{pk+i}")
    for i in range(n):
        a(f"v_mul_f32 v{f+i}, v{f+i}, v{vvar}")
    for i in range(n // 2):
        a(f"v_cvt_pk_bf16_f32 v{pk+i}, v{f+2*i}, v{f+2*i+1}")


def build_k0():
    CV2 = int(os.environ.get('CV2', '0'))
    RSB = 576 if CV2 else 1152
    NCV, NLN, NWB, NPF = (288 if CV2 else 144), 256, 288, (16 if os.environ.get('CPF', '1') == '1' else 0)
    NSP = {"0": 0, "1": 128, "2": 256}[os.environ.get("K0SP", "0")]
    k = Kernel("k0_prep_kernel", NCV + NLN + NWB + NPF + NSP, 256, 18432 + 512 if CV2 else 36864, 64)
    a = k.a
    pf = Prof(a, bool(PROF), 0)
    pf.stamp()
    a(f"""
    s_cmp_lt_u32 s2, {NPF}
    s_cbranch_scc1 K0_CPF
    s_sub_u32 s2, s2, {NPF}
    s_cmp_ge_u32 s2, {NCV+NLN+NWB}
    s_cbranch_scc1 K0_SP
    s_load_dwordx4 s[4:7], s[0:1], {KA_X}
    s_load_dwordx2 s[24:25], s[0:1], {KA_WIN}
    s_load_dwordx2 s[26:27], s[0:1], {KA_WS}
    v_and_b32 v1, 63, v0
    v_lshrrev_b32 v2, 6, v0
    s_waitcnt lgkmcnt(0)
    """)
    pf.stamp()
    srd(a, 8, 4, SZ_X)
    srd(a, 12, 6, SZ_WQKV)
    srd(a, 16, 24, SZ_WIN)
    srd(a, 20, 26, WS_USED)
    a(f"""
    s_cmp_ge_u32 s2, {NCV}
    s_cbranch_scc1 K0_NOTCV
    """)
    if CV2:
        a(f"""
        s_lshr_b32 s28, s2, 4             ; kp
        s_and_b32 s29, s2, 7              ; q
        s_bfe_u32 s36, s2, 0x10003
        v_readfirstlane_b32 s30, v2       ; wave
        s_mul_i32 s31, s28, {32*4*FH}
        s_mul_i32 s32, s29, 576
        s_add_u32 s31, s31, s32
        s_xor_b32 s32, s36, 1
        s_mul_i32 s32, s32, {2*FH}
        s_add_u32 s31, s31, s32
        s_mul_i32 s33, s30, 4608
        s_mul_i32 s34, s30, {8*4*FH}
        s_add_u32 s31, s31, s34
        """)
        for i in range(5):
            a(f"""
            v_add_u32 v3, {64*i}, v1
            v_mul_u32_u24 v4, 1821, v3
            v_lshrrev_b32 v4, 16, v4          ; row
            v_mul_u32_u24 v5, 36, v4
            v_sub_u32 v5, v3, v5              ; chunk
            v_mul_u32_u24 v4, {4*FH}, v4
            v_lshl_add_u32 v4, v5, 4, v4
            s_add_u32 m0, s33, {1024*i}
            """)
            if i == 4:
                a("s_mov_b32 exec_hi, 0")
            a(f"buffer_load_dwordx4 v4, s[16:19], s31 offen{NT} lds")
        a("s_mov_b32 exec_hi, -1")
        a(f"""
        s_bitcmp0_b32 s30, 0
        s_cbranch_scc1 K0_CVW
        s_waitcnt vmcnt(0)
        s_barrier
        s_endpgm
        K0_CVW:
        """)
    else:
        a(f"""
        s_lshr_b32 s28, s2, 3             ; kp
        s_and_b32 s29, s2, 7              ; q
        v_readfirstlane_b32 s30, v2       ; wave
        s_mul_i32 s31, s28, {32*4*FH}
        s_mul_i32 s32, s29, 576
        s_add_u32 s31, s31, s32
        s_mul_i32 s33, s30, 9216
        s_mul_i32 s34, s30, {8*4*FH}
        s_add_u32 s31, s31, s34
        s_and_b32 s36, s30, 1
        """)
        for i in range(9):
            a(f"""
            v_add_u32 v3, {64*i}, v1
            v_mul_u32_u24 v4, 1821, v3
            v_lshrrev_b32 v4, 16, v4
            v_mul_u32_u24 v5, 36, v4
            v_sub_u32 v5, v3, v5              ; chunk
            v_mul_u32_u24 v4, {2*FH}, v4
            v_lshl_add_u32 v4, v5, 4, v4
            s_add_u32 m0, s33, {1024*i}
            buffer_load_dwordx4 v4, s[16:19], s31 offen{NT} lds
            """)
    a(f"""
    s_lshr_b32 s35, s30, 1
    s_lshl_b32 s37, s29, 1
    s_add_u32 s42, s37, s35           ; group
    s_mul_i32 s37, s35, 288
    v_lshlrev_b32 v7, 4, v1
    s_cmp_lg_u32 s36, 0
    s_cbranch_scc1 K0_CVZ1
    v_lshrrev_b32 v3, 4, v1
    v_bfe_u32 v4, v1, 2, 2
    v_lshl_add_u32 v3, v3, 3, v4
    v_mul_u32_u24 v3, {RSB}, v3
    s_add_u32 s37, s37, {0 if CV2 else 576}
    v_add_u32 v3, s37, v3
    v_and_b32 v4, 3, v1
    v_lshl_add_u32 v6, v4, 3, v3
    v_lshl_add_u32 v5, v4, 4, v3
    v_bfe_u32 v4, v1, 1, {0 if int(os.environ.get('G32', '0')) else 1}
    v_lshl_add_u32 v5, v4, 3, v5      ; parity 0
    v_xor_b32 v46, 8, v5              ; parity 1
    s_mul_i32 s37, s42, {WZG}
    s_mul_i32 s38, s28, 9216
    s_add_u32 s39, s37, s38
    s_add_u32 s39, s39, {WZ}
    s_add_u32 s40, s39, 4096
    s_add_u32 s41, s39, 8192
    s_waitcnt vmcnt(0)
    s_barrier
    """)
    for t in range(9):
        reg, off = ((5 if t % 2 == 0 else 46), 64 * (t // 2)) if t < 8 else (6, 256)
        a(f"ds_read_b64_tr_b16 v[{8+4*t}:{9+4*t}], v{reg} offset:{off}")
        a(f"ds_read_b64_tr_b16 v[{10+4*t}:{11+4*t}], v{reg} offset:{off + 4*RSB}")
    for t in range(9):
        a(f"s_waitcnt lgkmcnt({min(15, 2*(8-t))})")
        a(f"buffer_store_dwordx4 v[{8+4*t}:{11+4*t}], v7, s[20:23], s{39 + t // 4} offen offset:{1024*(t % 4)}{SC}")
    a(f"""
    s_branch K0_CVEND
    K0_CVZ1:
    v_lshrrev_b32 v3, 5, v1
    v_bfe_u32 v4, v1, 2, 2
    v_lshl_add_u32 v3, v3, 3, v4
    v_mul_u32_u24 v3, {RSB}, v3
    v_add_u32 v3, s37, v3
    v_and_b32 v4, 1, v1
    v_lshl_add_u32 v3, v4, 4, v3
    v_bfe_u32 v4, v1, 1, 1
    v_lshl_add_u32 v6, v4, 3, v3      ; mixed (+256)
    v_bfe_u32 v4, v1, 4, 1
    v_lshl_add_u32 v5, v4, 5, v6
    s_mul_i32 s37, s42, {WQG}
    s_lshl_b32 s38, s28, 14
    s_add_u32 s39, s37, s38
    s_add_u32 s39, s39, {WQ + 4096}
    s_add_u32 s40, s39, 8192
    s_sub_u32 s41, s39, 1024
    s_sub_u32 s43, s40, 1024
    s_waitcnt vmcnt(0)
    s_barrier
    """)
    lst = [(ks, T) for ks in range(2) for T in range(5)]
    for i, (ks, T) in enumerate(lst):
        reg, off = (5, 64 * T) if T < 4 else (6, 256)
        off += ks * 16 * RSB
        a(f"ds_read_b64_tr_b16 v[{8+4*i}:{9+4*i}], v{reg} offset:{off}")
        a(f"ds_read_b64_tr_b16 v[{10+4*i}:{11+4*i}], v{reg} offset:{off + 4*RSB}")
    a("s_waitcnt lgkmcnt(0)")
    for i, (ks, T) in enumerate(lst):
        if T < 4:
            a(f"buffer_store_dwordx4 v[{8+4*i}:{11+4*i}], v7, s[20:23], s{39 + ks} offen offset:{1024*T}{SC}")
    a("s_mov_b32 exec_lo, 0xffff0000\ns_mov_b32 exec_hi, 0xffff0000")
    for i, (ks, T) in enumerate(lst):
        if T == 4:
            a(f"buffer_store_dwordx4 v[{8+4*i}:{11+4*i}], v7, s[20:23], s{41 if ks == 0 else 43} offen{SC}")
    a("K0_CVEND:")
    pf.stamp()
    pf.dump(20, 4)
    pf.n -= 2
    a(f"""
    s_endpgm
    K0_NOTCV:
    s_cmp_ge_u32 s2, {NCV+NLN}
    s_cbranch_scc1 K0_WB
    v_lshrrev_b32 v3, 5, v1
    v_lshl_add_u32 v3, v2, 1, v3
    s_sub_u32 s28, s2, {NCV}
    s_lshl_b32 s28, s28, 3
    v_add_u32 v3, s28, v3            ; row
    v_and_b32 v4, 31, v1             ; c0
    v_mul_u32_u24 v5, 1152, v3
    v_lshl_add_u32 v5, v4, 4, v5
    """)
    for i in range(12):
        a(f"v_mov_b32 v{8+i}, 0")
    a(f"""
    s_mov_b32 s30, 0x00ffffff
    s_mov_b32 s31, 0x00ffffff
    s_mov_b64 exec, s[30:31]
    buffer_load_dwordx4 v[8:11], v5, s[8:11], 0 offen{NT2}
    buffer_load_dwordx4 v[12:15], v5, s[8:11], 0 offen offset:384{NT2}
    buffer_load_dwordx4 v[16:19], v5, s[8:11], 0 offen offset:768{NT2}
    s_mov_b64 exec, -1
    v_lshlrev_b32 v6, 2, v0
    v_mov_b32 v7, -1.0
    s_lshl_b32 s29, s28, 7
    s_add_u32 s29, s29, {STT}
    buffer_store_dword v7, v6, s[20:23], s29 offen
    s_cmp_ge_u32 s28, {40*8}
    s_cbranch_scc1 K0_NOFLG
    v_mov_b32 v7, 0
    s_add_u32 s29, s29, {FLG - STT}
    buffer_store_dword v7, v6, s[20:23], s29 offen
    s_waitcnt vmcnt(0)
    K0_NOFLG:
    v_lshrrev_b32 v6, 5, v3
    v_mul_u32_u24 v6, 36, v6
    v_lshrrev_b32 v7, 1, v4
    v_add_u32 v6, v6, v7
    v_lshlrev_b32 v6, 10, v6
    v_and_b32 v7, 1, v4
    v_lshlrev_b32 v7, 5, v7
    v_and_b32 v20, 31, v3
    v_add_u32 v7, v7, v20
    v_lshl_add_u32 v6, v7, 4, v6
    s_waitcnt vmcnt(1)
    """)
    F = 24
    pf.stamp()
    for i in range(12):
        a(f"v_lshlrev_b32 v{F+2*i}, 16, v{8+i}")
        a(f"v_and_b32 v{F+2*i+1}, 0xffff0000, v{8+i}")
    a(f"v_add_f32 v50, v{F}, v{F+1}")
    a(f"v_add_f32 v51, v{F+2}, v{F+3}")
    for i in range(4, 24, 2):
        a(f"v_add_f32 v50, v50, v{F+i}")
        a(f"v_add_f32 v51, v51, v{F+i+1}")
    a("v_add_f32 v50, v50, v51")
    reduce16(a, 50, 52)
    reduce_x16(a, 50, 52)
    a(f"v_mul_f32 v50, {fbits(1.0/576)}, v50")
    a("v_mov_b32 v51, 0\nv_mov_b32 v53, 0\ns_mov_b64 exec, s[30:31]")
    for i in range(24):
        a(f"v_sub_f32 v52, v{F+i}, v50")
        a(f"v_fmac_f32 v{51 if i % 2 == 0 else 53}, v52, v52")
    a("s_mov_b64 exec, -1\nv_add_f32 v51, v51, v53")
    reduce16(a, 51, 52)
    reduce_x16(a, 51, 52)
    a(f"v_mul_f32 v51, {fbits(1.0/576)}, v51")
    ln_finish(a, F, 24, 50, 51, 52, 8)
    a(f"""
    s_mov_b64 exec, s[30:31]
    s_mov_b32 s32, {XF}
    s_mov_b32 s33, {XF + 12*1024}
    s_mov_b32 s34, {XF + 24*1024}
    buffer_store_dwordx4 v[8:11], v6, s[20:23], s32 offen
    buffer_store_dwordx4 v[12:15], v6, s[20:23], s33 offen
    buffer_store_dwordx4 v[16:19], v6, s[20:23], s34 offen
    """)
    pf.dump(20, 4)
    pf.n -= 2
    a("s_endpgm")
    a.label("K0_WB")
    a(f"""
    s_sub_u32 s28, s2, {NCV+NLN}      ; j in 0..287
    s_and_b32 s29, s28, 7
    s_lshl_b32 s29, s29, 1
    s_bfe_u32 s30, s28, 0x10003
    s_add_u32 s29, s29, s30           ; g
    s_lshr_b32 s30, s28, 4
    v_readfirstlane_b32 s31, v2       ; T = wave
    v_and_b32 v3, 31, v1              ; m
    v_lshrrev_b32 v4, 5, v1           ; h
    v_and_b32 v5, 19, v3
    v_and_b32 v6, 4, v3
    v_lshlrev_b32 v6, 1, v6
    v_or_b32 v5, v5, v6
    v_and_b32 v6, 8, v3
    v_lshrrev_b32 v6, 1, v6
    v_or_b32 v5, v5, v6               ; phi
    s_lshl_b32 s32, s30, 5
    v_lshlrev_b32 v6, 3, v4
    v_add_u32 v6, s32, v6             ; k row
    s_mul_i32 s33, s29, 36            ; 36 g
    """)
    for i in range(16):
        a(f"v_mov_b32 v{16+i}, 0")
    a(f"""
    s_cmp_eq_u32 s31, 3
    s_cbranch_scc1 K0_WB3
    s_mul_i32 s34, s31, 576
    s_add_u32 s34, s34, s33
    v_lshrrev_b32 v7, 4, v5
    v_mul_u32_u24 v7, 18, v7
    v_and_b32 v8, 15, v5
    v_add3_u32 v7, v7, v8, s34
    s_branch K0_WBQ
    K0_WB3:
    v_lshrrev_b32 v10, 3, v5
    v_bfe_u32 v11, v5, 1, 2
    v_and_b32 v12, 1, v5
    v_mul_u32_u24 v7, 576, v11
    v_mul_u32_u24 v10, 18, v10
    v_add3_u32 v7, v7, v10, v12
    v_add3_u32 v7, v7, s33, 16
    v_cmp_gt_u32 vcc, 16, v5
    v_cmp_ne_u32 s[38:39], 3, v11
    s_and_b64 vcc, vcc, s[38:39]
    s_mov_b64 exec, vcc
    K0_WBQ:
    v_mul_u32_u24 v9, {3*D}, v6
    v_add_lshl_u32 v9, v9, v7, 1
    """)
    for ks in range(2):
        for j in range(8):
            r = 16 * ks + j
            a(f"s_mov_b32 s38, {r * 3 * D * 2}")
            a(f"buffer_load_ushort v{(24 if j % 2 else 16)+4*ks+j//2}, v9, s[12:15], s38 offen{NT2}")
    a(f"""
    s_mov_b64 exec, -1
    s_mul_i32 s34, s29, {WQG}
    s_lshl_b32 s35, s30, 4
    s_add_u32 s35, s35, s31
    s_lshl_b32 s35, s35, 10
    s_add_u32 s34, s34, s35
    s_add_u32 s34, s34, {WQ}
    s_add_u32 s35, s34, 8192
    v_lshlrev_b32 v9, 4, v1
    s_waitcnt vmcnt(0)
    """)
    pf.stamp()
    for i in range(8):
        a(f"v_lshl_or_b32 v{16+i}, v{24+i}, 16, v{16+i}")
    a(f"""
    s_cmp_eq_u32 s31, 3
    s_cselect_b32 exec_lo, 0xffff, -1
    s_cselect_b32 exec_hi, 0xffff, -1
    buffer_store_dwordx4 v[16:19], v9, s[20:23], s34 offen{SC}
    buffer_store_dwordx4 v[20:23], v9, s[20:23], s35 offen{SC}
    """)
    pf.dump(20, 4)
    a(f"""
    K0_END:
    s_endpgm
    K0_SP:
    s_sub_u32 s2, s2, {NCV+NLN+NWB}
    s_cmp_ge_u32 s2, {NSP}
    s_cbranch_scc1 K0_END
    s_load_dwordx2 s[4:5], s[0:1], {KA_WSP}
    v_lshlrev_b32 v1, 7, v0
    s_lshl_b32 s12, s2, {16 if NSP == 128 else 15}
    s_add_u32 s13, s12, 32768
    s_waitcnt lgkmcnt(0)
    """)
    srd(a, 8, 4, SZ_WSP)
    a("""
    buffer_load_dword v2, v1, s[8:11], s12 offen
    """)
    if NSP == 128:
        a("buffer_load_dword v3, v1, s[8:11], s13 offen")
    if os.environ.get("K0WO", "0") == "1":
        a(f"""
        s_load_dwordx2 s[4:5], s[0:1], {KA_WOUT}
        s_load_dwordx2 s[6:7], s[0:1], {KA_WO}
        s_mul_i32 s20, s2, {162*128*128//NSP}
        s_mul_i32 s21, s2, {(41 if NSP == 128 else 21)*128}
        s_waitcnt lgkmcnt(0)
        """)
        srd(a, 12, 4, SZ_WOUT)
        srd(a, 16, 6, SZ_WO)
        a(f"""
        v_cmp_gt_u32 vcc, {162*128//NSP}, v0
        s_and_saveexec_b64 s[22:23], vcc
        s_cbranch_execz K0_END
        buffer_load_dword v4, v1, s[12:15], s20 offen
        v_cmp_gt_u32 vcc, {41 if NSP == 128 else 21}, v0
        s_and_b64 exec, exec, vcc
        s_cbranch_execz K0_END
        buffer_load_dword v5, v1, s[16:19], s21 offen
        """)
    a("""
    s_endpgm
    K0_CPF:
    s_getpc_b64 s[4:5]
    K0_PC:
    s_lshr_b32 s6, s2, 3
    s_lshl_b32 s6, s6, 15
    v_lshlrev_b32 v1, 7, v0
    v_add_u32 v1, s6, v1
    v_min_u32 v1, ALL_CODE_END-K0_PC-4, v1
    global_load_dword v2, v1, s[4:5]
    """)
    TW = int(os.environ.get("TLBW", "0"))
    if TW:
        a(f"""
        s_load_dwordx4 s[8:11], s[0:1], {KA_WSP}
        s_load_dwordx4 s[12:15], s[0:1], {KA_WOUT}
        s_load_dwordx2 s[16:17], s[0:1], {KA_WO}
        s_load_dwordx2 s[18:19], s[0:1], {KA_WS}
        v_lshlrev_b32 v1, {TW}, v0
        s_waitcnt lgkmcnt(0)
        """)
        for i, (p, sz) in enumerate(((8, SZ_WSP), (10, SZ_BSP), (12, SZ_WOUT), (14, SZ_X), (16, SZ_WO))):
            srd(a, 20, p, sz)
            a(f"buffer_load_dword v{3+i}, v1, s[20:23], 0 offen")
        srd(a, 20, 18, WS_USED)
        for i in range((WS_USED + (256 << TW) - 1) // (256 << TW)):
            a(f"s_mov_b32 s24, {i * (256 << TW)}")
            a(f"buffer_load_dword v{8+i}, v1, s[20:23], s24 offen")
    a("s_endpgm")
    return k
```

```python
from common import *

SC = " sc1"
CH = 20480
NSL = 4

def attn_body(a, pf, sid, sws, L="AT", swout=None, swo=None, swsp=None, pfw=None, mega=False, mid=None, mid2=None, late_flag=None):
    SA, SB, OA, OB = 16, 32, 48, 64
    LS = ' sc1' if mega else ''
    PA, PB = 80, 88
    QMA, QMB, QTA, QTB = 96, 100, 104, 108
    KM = [112, 116]; KT = [120, 124]
    VV = [128, 136]
    vK, vKt, vV, vL16 = 2, 3, 4, 5
    T0 = 144
    a(f"""
    v_and_b32 v1, 63, v0
    v_lshrrev_b32 v6, 6, v0
    s_and_b32 s28, {sid}, 7
    s_lshr_b32 s29, {sid}, 3
    s_lshl_b32 s30, s28, 2
    s_lshr_b32 s31, s29, 3
    s_add_u32 s30, s30, s31           ; head
    s_and_b32 s31, s29, 7             ; qb
    v_readfirstlane_b32 s32, v6       ; wave
    v_lshlrev_b32 v{vL16}, 4, v1
    s_mul_i32 s33, s30, {64*2560}
    s_add_u32 s33, s33, {KV}
    s_mul_i32 s35, s32, 5120
    s_lshl_b32 s36, s31, 3
    s_lshl_b32 s37, s32, 1
    s_add_u32 s36, s36, s37           ; qt
    s_lshl_b32 s37, s30, 6
    s_add_u32 s37, s37, s36
    s_mul_i32 s37, s37, 1152
    s_add_u32 s37, s37, {QF}
    s_lshl_b32 s38, s30, 8
    s_add_u32 s38, s38, {KMX}
    v_lshlrev_b32 v7, 2, v1           ; lane*4
    v_mov_b32 v{QTA}, 0
    v_mov_b32 v{QTB}, 0
    """)
    if mega:
        from k3 import poll
        a(f"""
        s_cmp_lg_u32 s32, 0
        s_cbranch_scc1 {L}KV_OK
        s_lshr_b32 s44, s30, 1
        s_lshl_b32 s44, s44, 7
        s_add_u32 s44, s44, {FL_KV}
        v_and_b32 v8, 15, v1
        v_lshlrev_b32 v8, 2, v8
        """)
        poll(a, f"{L}KV", 9, 8, sws, 44, sleep=6)
        a("s_barrier")
        pf.stamp()
    a(f"""
    buffer_load_dwordx4 v[{QMA}:{QMA+3}], v{vL16}, s[{sws}:{sws+3}], s37 offen{LS}
    buffer_load_dwordx4 v[{QMB}:{QMB+3}], v{vL16}, s[{sws}:{sws+3}], s37 offen offset:1152{LS}
    buffer_load_dword v{T0}, v7, s[{sws}:{sws+3}], s38 offen{LS}
    s_mov_b32 exec_hi, 0
    buffer_load_dword v{QTA}, v7, s[{sws}:{sws+3}], s37 offen offset:1024{LS}
    buffer_load_dword v{QTB}, v7, s[{sws}:{sws+3}], s37 offen offset:{1152+1024}{LS}
    s_mov_b32 exec_hi, -1
    s_mov_b32 s39, 0
    """)

    def dma_chunk():
        a(f"""
        s_mov_b32 m0, s40
        s_add_u32 s41, s34, 4096
        buffer_load_dwordx4 v{vL16}, s[{sws}:{sws+3}], s34 offen{LS} lds
        buffer_load_dwordx4 v{vL16}, s[{sws}:{sws+3}], s34 offen offset:1024{LS} lds
        buffer_load_dwordx4 v{vL16}, s[{sws}:{sws+3}], s34 offen offset:2048{LS} lds
        buffer_load_dwordx4 v{vL16}, s[{sws}:{sws+3}], s34 offen offset:3072{LS} lds
        s_add_u32 m0, s40, 4096
        s_add_u32 s34, s34, {CH}
        buffer_load_dwordx4 v{vL16}, s[{sws}:{sws+3}], s41 offen{LS} lds
        s_add_u32 s40, s40, {CH}
        s_sub_u32 s41, s40, {NSL*CH}
        s_cmp_ge_u32 s40, {NSL*CH}
        s_cselect_b32 s40, s41, s40
        """)

    a.label(f"{L}_PASS")
    a(f"""
    s_add_u32 s34, s33, s35
    s_mov_b32 s40, s35
    """)
    for c in range(3):
        dma_chunk()
    a(f"""
    v_mov_b32 v{vK}, v{vL16}
    v_and_b32 v8, 31, v1
    v_lshrrev_b32 v9, 5, v1           ; h
    v_lshlrev_b32 v{vKt}, 4, v8
    v_add_u32 v10, 20, v{vKt}
    v_and_b32 v11, 7, v8
    v_cmp_eq_u32 vcc, 0, v11
    v_cndmask_b32 v{vKt}, v{vKt}, v10, vcc
    v_mov_b32 v10, 36
    v_cmp_ne_u32 vcc, 0, v9
    v_cndmask_b32 v{vKt}, v{vKt}, v10, vcc
    v_mov_b32 v14, v{vKt}
    v_add_u32 v{vKt}, 2048, v{vKt}
    v_bfe_u32 v10, v1, 2, 2           ; r
    v_lshl_add_u32 v10, v9, 2, v10    ; key = 4h + r
    v_lshlrev_b32 v10, 4, v10
    v_and_b32 v11, 1, v1
    v_lshlrev_b32 v11, 9, v11
    v_bfe_u32 v12, v1, 1, 1
    v_lshl_add_u32 v11, v12, 3, v11
    v_add_u32 v11, 1024, v11
    v_mov_b32 v12, {2048+8}
    v_and_b32 v13, 16, v1
    v_cmp_ne_u32 vcc, 0, v13
    v_cndmask_b32 v11, v11, v12, vcc
    v_add_u32 v{vV}, v10, v11
    v_and_b32 v13, 19, v1
    v_mov_b32 v12, 2048
    v_cmp_lt_u32 vcc, 16, v13
    v_cndmask_b32 v{vV}, v{vV}, v12, vcc
    """)
    for r in list(range(OA, OA + 32)) + list(range(PB + 4, PB + 8)) + list(range(VV[1], VV[1] + 8)) \
            + [QTA + 1, QTA + 2, QTA + 3, QTB + 1, QTB + 2, QTB + 3] + [KT[0] + i for i in (1, 2, 3)] + [KT[1] + i for i in (1, 2, 3)]:
        a(f"v_mov_b32 v{r}, 0")
    a(f"""
    s_cmp_lg_u32 s39, 0
    s_cbranch_scc1 {L}_GO
    """)
    if mid:
        mid()
    a("s_waitcnt vmcnt(15)")
    reduce16(a, T0, T0 + 1, "v_max_f32")
    reduce_x16(a, T0, T0 + 1, "v_max_f32")
    reduce_x32(a, T0, T0 + 1, "v_max_f32")
    for (QM, QT, t) in ((QMA, QTA, T0 + 2), (QMB, QTB, T0 + 3)):
        a(f"v_dot2_f32_bf16 v{t}, v{QT}, v{QT}, 0")
        for i in range(4):
            a(f"v_dot2_f32_bf16 v{t}, v{QM+i}, v{QM+i}, v{t}")
    a("s_nop 2")
    for (QT, t) in ((QTA, T0 + 2), (QTB, T0 + 3)):
        reduce_x32(a, t, T0 + 1)
        a(f"""
        v_mul_f32 v{t}, v{t}, v{T0}
        v_sqrt_f32 v{t}, v{t}
        v_mul_f32 v{t}, {fbits(-1.02)}, v{t}
        v_mov_b32 v{T0+1}, 0
        v_cvt_pk_bf16_f32 v{t}, v{t}, v{T0+1}
        s_mov_b32 exec_lo, 0
        v_mov_b32 v{QT}, v{t}
        s_mov_b32 exec_lo, -1
        """)
    LATE = int(os.environ.get("ZLATE", "1"))
    if mid2 and not LATE:
        mid2()
    a.label(f"{L}_GO")
    pf.stamp()
    a(f"""
    s_waitcnt vmcnt(10)
    s_barrier
    ds_read_b128 v[{KM[0]}:{KM[0]+3}], v{vK}
    ds_read_b32 v{KT[0]}, v{vKt}
    ds_read_b128 v[{KM[1]}:{KM[1]+3}], v{vK} offset:2560
    ds_read_b32 v{KT[1]}, v{vKt} offset:2560
    """)
    for p in range(2):
        for i in range(2):
            a(f"ds_read_b64_tr_b16 v[{VV[0]+4*p+2*i}:{VV[0]+4*p+2*i+1}], v{vV} offset:{16*(16*p+8*i)}")
    X8 = int(os.environ.get("X8", "1"))
    def mf(d, x, y, c):
        if not c and X8:
            return f"v_mfma_f32_32x32x8bf16_1k v[{d}:{d+15}], v[{x}:{x+1}], v[{y}:{y+1}], 0"
        return f"v_mfma_f32_32x32x16_bf16 v[{d}:{d+15}], v[{x}:{x+3}], v[{y}:{y+3}], " + (f"v[{d}:{d+15}]" if c else "0")
    PFW, PFZ, PFD = T0 + 8, T0 + 9, T0 + 10

    def touch():
        a(f"""
        buffer_load_dword v{PFD}, v{PFW}, s[{swsp}:{swsp+3}], s50 offen
        buffer_load_dword v{PFD+1}, v{PFZ}, s[{sws}:{sws+3}], s51 offen
        s_add_u32 s50, s50, 512
        s_add_u32 s51, s51, 16384
        """)
    if pfw is not None:
        a(f"""
        s_lshl_b32 s52, {sid}, 2
        s_add_u32 s52, s52, s32
        s_mul_i32 s50, s52, {21*128}
        s_mul_i32 s51, s52, {6*128}
        v_lshlrev_b32 v{PFZ}, 7, v1
        v_mov_b32 v{PFD}, 0x40000000
        v_cmp_gt_u32 vcc, 5, v1
        v_cndmask_b32 v{PFW}, v{PFD}, v{PFZ}, vcc
        v_cmp_gt_u32 vcc, 2, v1
        v_cndmask_b32 v{PFZ}, v{PFD}, v{PFZ}, vcc
        """)
    if swout is not None:
        a(f"""
        s_lshl_b32 s52, s29, 2
        s_add_u32 s52, s52, s32           ; wave index within this id%8 class
        s_and_b32 s50, s28, 1
        s_lshl_b32 s50, s50, 10
        s_lshl_b32 s51, s52, 3
        s_add_u32 s50, s50, s51
        s_lshl_b32 s50, s50, 12
        v_lshrrev_b32 v{PFW}, 2, v1
        v_lshlrev_b32 v{PFW}, 12, v{PFW}
        v_and_b32 v{PFZ}, 3, v1
        v_lshl_add_u32 v{PFW}, v{PFZ}, 7, v{PFW}
        v_mov_b32 v{PFD}, 0x40000000
        v_cmp_gt_u32 vcc, 32, v1
        v_cndmask_b32 v{PFW}, v{PFD}, v{PFW}, vcc
        v_lshlrev_b32 v{PFZ}, 17, v1
        v_cmp_gt_u32 vcc, 18, v1
        v_cndmask_b32 v{PFZ}, v{PFD}, v{PFZ}, vcc
        s_lshr_b32 s51, s28, 1
        s_mul_i32 s51, s51, {18*131072}
        s_lshl_b32 s53, s52, 7
        s_add_u32 s51, s51, s53
        s_add_u32 s51, s51, {Z2N}
        s_mul_i32 s54, s52, {162*128}
        s_mul_i32 s55, s52, {41*128}
        """)
        touch()
        touch()
    a(f"""
    s_waitcnt lgkmcnt(0)
    {mf(SA, KT[0], QTA, False)}
    {mf(SA, KM[0], QMA, True)}
    s_mov_b32 s42, 0
    s_mov_b32 s43, 0
    s_nop 9
    """)
    pf.stamp()
    a.label(f"{L}_LOOP")
    NHI = int(os.environ.get("NHI", "1"))
    a(f"""
    s_cmp_lg_u32 s42, {NHI}
    s_cbranch_scc1 {L}_KEEP
    s_setprio {int(os.environ.get("ALP", "1"))}
    {L}_KEEP:
    """)
    PAIR = int(os.environ.get("PAIR", "0"))
    HP = int(os.environ.get("HP", "0"))
    HPM = int(os.environ.get("HPM", "1"))

    def chunk_sync():
        a(f"""
        s_cmp_ge_u32 s42, 5
        s_cbranch_scc1 {L}_NODMA
        s_waitcnt vmcnt(5)
        s_barrier
        """)
        if mid2 and LATE:
            a(f"""
            s_or_b32 s44, s42, s39
            s_cmp_lg_u32 s44, 0
            s_cbranch_scc1 {L}_NZS
            """)
            mid2(wait=False)
            a.label(f"{L}_NZS")
        if late_flag is not None:
            a(f"""
            s_cmp_lg_u32 s42, 1
            s_cbranch_scc1 {L}_LF
            """)
            from mkz import flag_store
            flag_store(a, f"{L}_LF", sws, late_flag, T0 + 4, T0 + 5)
        if pfw is not None:
            a(f"""
            buffer_load_dword v{PFD}, v{PFW}, s[{pfw[0]}:{pfw[0]+3}], s50 offen
            buffer_load_dword v{PFD+1}, v{PFZ}, s[{pfw[1]}:{pfw[1]+3}], s51 offen
            s_add_u32 s50, s50, {5*128}
            s_add_u32 s51, s51, {2*128}
            """)
        dma_chunk()
        a(f"""
        s_branch {L}_DMADONE
        {L}_NODMA:
        s_waitcnt vmcnt(0)
        s_barrier
        """)
        if swout is not None:
            a(f"""
            s_cmp_lg_u32 s42, 5
            s_cbranch_scc1 {L}_PFW
            """)
            touch()
            a(f"""
            v_lshlrev_b32 v{PFW}, 7, v1
            buffer_load_dword v{PFD}, v{PFW}, s[{swo}:{swo+3}], s55 offen
            {L}_PFW:
            buffer_load_dword v{PFD+1}, v{PFW}, s[{swout}:{swout+3}], s54 offen
            s_add_u32 s54, s54, {54*128}
            """)
        a(f"""
        {L}_DMADONE:
        s_add_u32 s43, s43, {CH}
        s_mov_b32 s44, {CH}
        s_cmp_ge_u32 s43, {NSL*CH}
        s_cselect_b32 s44, {-(NSL-1)*CH & 0xffffffff}, s44
        s_cselect_b32 s43, 0, s43
        v_add_u32 v{vK}, s44, v{vK}
        v_add_u32 v{vKt}, s44, v{vKt}
        """)

    for t in range(8):
        b, nb = t % 2, (t + 1) % 2
        ko = ((t + 2) % 8) * 2560
        vo = ((t + 1) % 8) * 2560
        kr = [f"ds_read_b128 v[{KM[b]}:{KM[b]+3}], v{vK} offset:{ko}", f"ds_read_b32 v{KT[b]}, v{vKt} offset:{ko}"]
        vr = [f"ds_read_b64_tr_b16 v[{VV[nb]+4*p+2*i}:{VV[nb]+4*p+2*i+1}], v{vV} offset:{vo + 16*(16*p+8*i)}" for p in range(2) for i in range(2)]
        if PAIR:
            grp = [[mf(SB, KT[b], QTB, False), mf(SB, KM[b], QMB, True)],
                   [mf(OB, VV[nb] + 4, PB + 4, True), mf(OA, VV[b], PA, True)],
                   [mf(SA, KT[nb], QTA, False), mf(SA, KM[nb], QMA, True)],
                   [mf(OA, VV[b] + 4, PA + 4, True), mf(OB, VV[b], PB, True)]]
            for g in range(4):
                if g == 1:
                    a("s_waitcnt lgkmcnt(0)")
                if HP:
                    a("s_setprio 3")
                a(grp[g][0])
                a(grp[g][1])
                if HP:
                    a(f"s_setprio {int(os.environ.get('ALP', '1'))}")
                if g == 1:
                    if t == 6:
                        chunk_sync()
                    if t == 7:
                        a(f"v_add_u32 v{vV}, s44, v{vV}")
                    a.ext(kr + vr)
                S_, P_ = (SA, PA) if g < 2 else (SB, PB)
                o = 8 * (g % 2)
                for i in range(8):
                    a(f"v_exp_f32 v{S_+o+i}, v{S_+o+i}")
                for i in range(4):
                    a(f"v_cvt_pk_bf16_f32 v{P_+o//2+i}, v{S_+o+2*i}, v{S_+o+2*i+1}")
        else:
            mfs = [mf(SB, KT[b], QTB, False), mf(OB, VV[nb] + 4, PB + 4, True), mf(SB, KM[b], QMB, True), mf(OA, VV[b], PA, True),
                   mf(SA, KT[nb], QTA, False), mf(OA, VV[b] + 4, PA + 4, True), mf(SA, KM[nb], QMA, True), mf(OB, VV[b], PB, True)]
            for sl in range(8):
                if sl == 3:
                    a("s_waitcnt lgkmcnt(0)")
                tog = HP and (sl % HPM == 0)
                if tog:
                    a("s_setprio 3")
                a(mfs[sl])
                if tog:
                    a(f"s_setprio {int(os.environ.get('ALP', '1'))}")
                if sl == 3:
                    if t == 6:
                        chunk_sync()
                    if t == 7:
                        a(f"v_add_u32 v{vV}, s44, v{vV}")
                    a.ext(kr)
                if sl in (4, 5):
                    a.ext(vr[2 * (sl - 4):2 * (sl - 4) + 2])
                S_, P_ = (SA, PA) if sl < 4 else (SB, PB)
                o = 4 * (sl % 4)
                for i in range(4):
                    a(f"v_exp_f32 v{S_+o+i}, v{S_+o+i}")
                a(f"v_cvt_pk_bf16_f32 v{P_+o//2}, v{S_+o}, v{S_+o+1}")
                a(f"v_cvt_pk_bf16_f32 v{P_+o//2+1}, v{S_+o+2}, v{S_+o+3}")
    a(f"""
    s_add_u32 s42, s42, 1
    s_cmp_lt_u32 s42, 8
    s_cbranch_scc1 {L}_LOOP
    {mf(OB, VV[1] + 4, PB + 4, True)}
    """)
    pf.stamp()
    a(f"""
    v_mov_b32 v{T0}, v{OA+10}
    v_mov_b32 v{T0+1}, v{OB+10}
    v_permlane32_swap_b32 v{OA+10}, v{T0}
    v_permlane32_swap_b32 v{OB+10}, v{T0+1}
    s_mov_b32 s44, {fbits(2.0**-70)}
    v_cmp_nle_f32 vcc, s44, v{OA+10}
    v_cmp_nle_f32 s[46:47], s44, v{OB+10}
    s_or_b64 vcc, vcc, s[46:47]
    s_cselect_b32 s44, 1, 0
    v_mov_b32 v{T0+2}, s44
    v_lshlrev_b32 v{T0+3}, 2, v6
    ds_write_b32 v{T0+3}, v{T0+2} offset:{CH}
    """)
    a(f"""
    s_mul_i32 s44, s36, {36*1024}
    s_add_u32 s44, s44, {OF}
    s_lshl_b32 s45, s30, 10
    s_add_u32 s45, s45, s44
    s_add_u32 s46, s45, {36*1024}
    s_lshr_b32 s47, s30, 2
    s_lshl_b32 s47, s47, 9
    s_and_b32 s48, s30, 3
    s_lshl_b32 s48, s48, 2
    s_add_u32 s47, s47, s48
    s_add_u32 s47, s47, s44
    s_add_u32 s47, s47, {32*1024}
    s_add_u32 s48, s47, {36*1024}
    v_rcp_f32 v{T0}, v{OA+10}
    v_rcp_f32 v{T0+1}, v{OB+10}
    """)
    for (O, t, P_, so, st) in ((OA, T0, PA, 45, 47), (OB, T0 + 1, PB, 46, 48)):
        for i in range(10):
            a(f"v_mul_f32 v{O+i}, v{O+i}, v{t}")
        for i in range(5):
            a(f"v_cvt_pk_bf16_f32 v{P_+i}, v{O+2*i}, v{O+2*i+1}")
        a(f"buffer_store_dwordx4 v[{P_}:{P_+3}], v{vL16}, s[{sws}:{sws+3}], s{so} offen{SC}")
    a(f"""
    s_mov_b32 exec_hi, 0
    buffer_store_dword v{PA+4}, v{vL16}, s[{sws}:{sws+3}], s47 offen{SC}
    buffer_store_dword v{PB+4}, v{vL16}, s[{sws}:{sws+3}], s48 offen{SC}
    s_mov_b32 exec_hi, -1
    """)
    a(f"""
    v_mov_b32 v{T0+1}, 0
    s_waitcnt vmcnt(0) lgkmcnt(0)
    s_barrier
    s_cmp_lg_u32 s39, 0
    s_cbranch_scc1 {L}_OUT
    ds_read_b128 v[{T0+2}:{T0+5}], v{T0+1} offset:{CH}
    s_waitcnt lgkmcnt(0)
    v_or_b32 v{T0+2}, v{T0+2}, v{T0+3}
    v_or3_b32 v{T0+2}, v{T0+2}, v{T0+4}, v{T0+5}
    v_readfirstlane_b32 s44, v{T0+2}
    s_cmp_eq_u32 s44, 0
    s_cbranch_scc1 {L}_OUT
    s_barrier
    s_mov_b32 s39, 1
    s_mov_b32 exec_lo, 0
    v_mov_b32 v{QTA}, 0
    v_mov_b32 v{QTB}, 0
    s_mov_b32 exec_lo, -1
    v_mov_b32 v{T0}, 0xff800000
    v_mov_b32 v{T0+1}, 0xff800000
    s_mov_b32 s44, s33
    s_mov_b32 s45, 0
    {L}_MAXL:
    buffer_load_dwordx4 v[{KM[0]}:{KM[0]+3}], v{vL16}, s[{sws}:{sws+3}], s44 offen{LS}
    buffer_load_dword v{KT[0]}, v14, s[{sws}:{sws+3}], s44 offen offset:2048{LS}
    s_waitcnt vmcnt(0)
    {mf(SA, KT[0], QTA, False)}
    {mf(SB, KT[0], QTB, False)}
    {mf(SA, KM[0], QMA, True)}
    {mf(SB, KM[0], QMB, True)}
    """)
    for i in range(8):
        a(f"v_max3_f32 v{T0}, v{SA+2*i}, v{SA+2*i+1}, v{T0}")
    for i in range(8):
        a(f"v_max3_f32 v{T0+1}, v{SB+2*i}, v{SB+2*i+1}, v{T0+1}")
    a(f"""
    s_add_u32 s44, s44, 2560
    s_add_u32 s45, s45, 1
    s_cmp_lt_u32 s45, 64
    s_cbranch_scc1 {L}_MAXL
    """)
    for (QT, t) in ((QTA, T0), (QTB, T0 + 1)):
        reduce_x32(a, t, T0 + 2, "v_max_f32")
        a(f"""
        v_sub_f32 v{t}, 0, v{t}
        v_cvt_pk_bf16_f32 v{T0+2}, v{t}, v{t}
        v_lshlrev_b32 v{T0+2}, 16, v{T0+2}
        v_sub_f32 v{T0+3}, v{t}, v{T0+2}
        v_cvt_pk_bf16_f32 v{T0+2}, v{T0+2}, v{T0+3}
        s_mov_b32 exec_lo, 0
        v_mov_b32 v{QT}, v{T0+2}
        s_mov_b32 exec_lo, -1
        """)
    a(f"s_branch {L}_PASS")
    a.label(f"{L}_OUT")
```

```python
from common import *
from k3 import poll
from mkz import idmap

STG = 9216
TB0 = 4 * STG


def gemm2_body(a, pf, sid, sws, swsp, sbsp, L="G2", loop_prio=0, mega=False, z1reg=None):
    G32 = int(os.environ.get("G32", "0"))
    ACC = 16
    FA = [88, 124] if not G32 else [96, 136]
    FB = [160, 176] if not G32 else [176, 192]
    Z1 = 192 if not G32 else 96
    TMP = 228
    assert mega and not z1reg
    vL16 = 2
    rB, rB2 = 3, 14
    rA = [4, 5, 6, 7]
    rX = [8, 9]
    dT, dT2 = 10, 11
    vU, vU9 = 12, 13
    WIN = int(os.environ.get('WIN', '16')); RM = int(os.environ.get('RM', '0'))
    a(f"""
    v_and_b32 v1, 63, v0
    v_lshrrev_b32 v{TMP}, 6, v0
    s_and_b32 s28, {sid}, 7
    s_lshr_b32 s29, {sid}, 3
    {idmap()}
    v_readfirstlane_b32 s32, v{TMP}   ; wave
    v_lshlrev_b32 v{vL16}, 4, v1
    v_lshrrev_b32 v{TMP+1}, 3, v1
    v_lshrrev_b32 v{TMP+3}, 4, v1
    v_and_b32 v{TMP+2}, 7, v1
    v_xor_b32 v{TMP+2}, v{TMP+2}, v{TMP+3}
    s_lshl_b32 s39, s32, 11
    s_lshl_b32 s38, s32, 13
    s_add_u32 s38, s38, {TB0}
    s_lshl_b32 s40, s32, 8
    s_add_u32 s40, s40, 8192
    s_lshl_b32 s44, s30, 7
    s_lshl_b32 s45, s32, 5
    s_add_u32 s44, s44, s45
    v_add_u32 v{TMP+1}, s44, v{TMP+1}
    v_lshlrev_b32 v{dT}, 12, v{TMP+1}
    v_lshl_add_u32 v{dT}, v{TMP+2}, 4, v{dT}
    v_xor_b32 v{dT2}, 64, v{dT}
    v_add_u32 v{dT2}, {8*4096 - 1024}, v{dT2}
    s_mov_b32 s41, {16*4096 - 2048}
    s_mul_i32 s43, s31, {64*9216}
    s_add_u32 s43, s43, {Z2N}
    s_add_u32 s46, s43, s40
    s_add_u32 s43, s43, s39
    s_mov_b32 s42, 0
    """)

    ZS = " sc1" if mega else ""
    WN = " nt" if os.environ.get("WSPNT", "0") == "1" else ""

    def dma_sp(sl):
        o = sl * STG
        return [f"s_add_u32 m0, s39, {o}\nbuffer_load_dwordx4 v{vL16}, s[{sws}:{sws+3}], s43 offen{ZS} lds",
                f"buffer_load_dwordx4 v{vL16}, s[{sws}:{sws+3}], s43 offen offset:1024{ZS} lds\ns_add_u32 s43, s43, 9216",
                f"s_add_u32 m0, s40, {o}\ns_mov_b64 exec, 0xffff\nbuffer_load_dwordx4 v{vL16}, s[{sws}:{sws+3}], s46 offen{ZS} lds\n"
                f"s_mov_b64 exec, -1\ns_add_u32 s46, s46, 9216"]

    def dma_t(ps):
        return [f"s_add_u32 m0, s38, {ps*4096}\nbuffer_load_dwordx4 v{dT}, s[{swsp}:{swsp+3}], s42 offen lds",
                f"buffer_load_dwordx4 v{dT2}, s[{swsp}:{swsp+3}], s42 offen offset:1024 lds\ns_add_u32 s42, s42, 128",
                f"s_add_u32 m0, s38, {ps*4096}\nbuffer_load_dwordx4 v{dT}, s[{swsp}:{swsp+3}], s41 offen offset:2048 lds",
                f"buffer_load_dwordx4 v{dT2}, s[{swsp}:{swsp+3}], s41 offen offset:3072 lds\ns_add_u32 s41, s41, 128"]

    a(f"""
    v_and_b32 v{TMP+1}, 15, v1
    v_lshrrev_b32 v{TMP+2}, 4, v1                 ; g
    v_lshrrev_b32 v{TMP+3}, 1, v{TMP+1}
    v_xor_b32 v{TMP+3}, v{TMP+3}, v{TMP+2}
    v_lshlrev_b32 v{TMP+3}, 4, v{TMP+3}
    v_lshl_add_u32 v{rB}, v{TMP+1}, 7, v{TMP+3}
    v_add_u32 v{rB}, s38, v{rB}
    v_xor_b32 v{rB2}, 64, v{rB}
    v_lshlrev_b32 v{vU}, 9, v{TMP+2}
    v_lshl_add_u32 v{vU}, v{TMP+1}, 4, v{vU}
    v_lshrrev_b32 v{TMP+3}, 1, v{TMP+2}
    v_lshlrev_b32 v{vU9}, 9, v{TMP+3}
    v_lshl_add_u32 v{vU9}, v{TMP+1}, 4, v{vU9}
    v_and_b32 v{TMP+3}, 1, v{TMP+2}
    v_lshl_add_u32 v{vU9}, v{TMP+3}, 3, v{vU9}
    v_bfe_u32 v{TMP+3}, v1, 2, 2
    v_lshl_add_u32 v{TMP+3}, v{TMP+2}, 3, v{TMP+3}   ; s (i = 0)
    v_and_b32 v{TMP+4}, 1, v1
    v_lshlrev_b32 v{TMP+5}, 2, v{TMP+4}
    v_xor_b32 v{TMP+5}, v{TMP+5}, v{TMP+3}
    v_lshlrev_b32 v{TMP+5}, 4, v{TMP+5}
    v_and_b32 v{TMP+6}, 3, v1
    v_lshl_add_u32 v{TMP+5}, v{TMP+6}, 9, v{TMP+5}
    v_bfe_u32 v{TMP+6}, v1, 1, 1
    v_lshl_add_u32 v{TMP+5}, v{TMP+6}, 3, v{TMP+5}
    v_mov_b32 v{rA[0]}, v{TMP+5}
    v_xor_b32 v{rA[1]}, 64, v{rA[0]}
    v_xor_b32 v{rA[2]}, 8, v{rA[0]}
    v_xor_b32 v{rA[3]}, 8, v{rA[1]}
    v_lshlrev_b32 v{TMP+5}, 2, v{TMP+6}
    v_xor_b32 v{TMP+5}, v{TMP+5}, v{TMP+3}
    v_lshlrev_b32 v{TMP+5}, 4, v{TMP+5}
    v_lshl_add_u32 v{TMP+5}, v{TMP+6}, 9, v{TMP+5}
    v_lshl_add_u32 v{TMP+5}, v{TMP+4}, 3, v{TMP+5}
    v_add_u32 v{rX[0]}, 8192, v{TMP+5}
    v_xor_b32 v{rX[1]}, 64, v{rX[0]}
    s_lshl_b32 s48, s30, 2
    s_add_u32 s48, s48, s32
    s_mul_i32 s48, s48, 144
    s_mul_i32 s49, s31, 9
    s_add_u32 s48, s48, s49
    s_lshl_b32 s48, s48, 10
    s_add_u32 s48, s48, {UF}
    s_add_u32 s49, s48, 4096
    s_add_u32 s50, s48, 8192
    s_lshl_b32 s44, s44, 1
    v_lshlrev_b32 v{TMP+21}, 1, v{TMP+1}
    """)

    if G32:
        a(f"""
        v_and_b32 v{TMP+2}, 31, v1
        v_lshrrev_b32 v{TMP+3}, 5, v1
        v_bfe_u32 v{TMP+4}, v1, 1, 3
        v_xor_b32 v{TMP+4}, v{TMP+4}, v{TMP+3}
        v_lshlrev_b32 v{TMP+4}, 4, v{TMP+4}
        v_lshl_add_u32 v{rB}, v{TMP+2}, 7, v{TMP+4}
        v_add_u32 v{rB}, s38, v{rB}
        v_xor_b32 v{rB2}, 32, v{rB}
        v_xor_b32 v{vU}, 64, v{rB}
        v_xor_b32 v{vU9}, 96, v{rB}
        v_lshlrev_b32 v{TMP+21}, 1, v{TMP+2}
        v_bfe_u32 v{TMP+2}, v1, 2, 2
        v_lshl_add_u32 v{TMP+2}, v{TMP+3}, 3, v{TMP+2}   ; s
        v_bfe_u32 v{TMP+3}, v1, 4, 1
        v_and_b32 v{TMP+4}, 1, v1
        v_lshl_add_u32 v{TMP+3}, v{TMP+3}, 1, v{TMP+4}   ; c8
        v_bfe_u32 v{TMP+6}, v1, 1, 1
        v_lshlrev_b32 v{TMP+5}, 2, v{TMP+3}
        v_xor_b32 v{TMP+5}, v{TMP+5}, v{TMP+2}
        v_lshlrev_b32 v{TMP+5}, 4, v{TMP+5}
        v_lshl_add_u32 v{TMP+5}, v{TMP+3}, 9, v{TMP+5}
        v_lshl_add_u32 v{rA[0]}, v{TMP+6}, 3, v{TMP+5}
        v_xor_b32 v{rA[1]}, 64, v{rA[0]}
        v_lshlrev_b32 v{TMP+5}, 2, v{TMP+4}
        v_xor_b32 v{TMP+5}, v{TMP+5}, v{TMP+2}
        v_lshlrev_b32 v{TMP+5}, 4, v{TMP+5}
        v_lshl_add_u32 v{TMP+5}, v{TMP+4}, 9, v{TMP+5}
        v_lshl_add_u32 v{rX[0]}, v{TMP+6}, 3, v{TMP+5}
        v_xor_b32 v{rX[1]}, 64, v{rX[0]}
        """)

    def reads32(sl):
        o = sl * STG
        fa = FA[sl % 2]
        out = []
        if sl % 2 == 0:
            fb = FB[sl // 2]
            po = (sl // 2) * 4096
            out = [f"ds_read_b128 v[{fb+4*j}:{fb+4*j+3}], v{(rB, rB2, vU, vU9)[j]} offset:{po}" for j in range(4)]
        for ks in range(2):
            for T in range(5):
                for i in range(2):
                    d = fa + 4 * (5 * ks + T) + 2 * i
                    out.append(f"ds_read_b64_tr_b16 v[{d}:{d+1}], v{(rA if T < 4 else rX)[i]} offset:{o + T*2048 + ks*256}")
        return out

    def mfmas32(sl):
        fa, fb = FA[sl % 2], FB[sl // 2] + 8 * (sl % 2)
        return [f"v_mfma_f32_32x32x16_bf16 v[{ACC+16*T}:{ACC+16*T+15}], v[{fa+4*(5*ks+T)}:{fa+4*(5*ks+T)+3}], v[{fb+4*ks}:{fb+4*ks+3}], v[{ACC+16*T}:{ACC+16*T+15}]"
                for ks in range(2) for T in range(5)]

    def reads(sl):
        if G32:
            return reads32(sl)
        o = sl * STG
        fa = FA[sl % 2]
        out = []
        if sl % 2 == 0:
            fb = FB[sl // 2]
            po = (sl // 2) * 4096
            out = [f"ds_read_b128 v[{fb+8*sp+4*b}:{fb+8*sp+4*b+3}], v{rB2 if sp else rB} offset:{po + 2048*b}" for sp in range(2) for b in range(2)]
        for tau in range(9):
            for i in range(2):
                reg = rA[2 * (tau % 2) + i] if tau < 8 else rX[i]
                off = o + (tau // 2) * 2048 if tau < 8 else o
                out.append(f"ds_read_b64_tr_b16 v[{fa+4*tau+2*i}:{fa+4*tau+2*i+1}], v{reg} offset:{off}")
        return out

    def mfmas(sl):
        fa, fb = FA[sl % 2], FB[sl // 2] + 8 * (sl % 2)
        out = []
        for tau in range(9):
            for b in range(2):
                d = ACC + 4 * (2 * tau + b)
                out.append(f"v_mfma_f32_16x16x32_bf16 v[{d}:{d+3}], v[{fa+4*tau}:{fa+4*tau+3}], v[{fb+4*b}:{fb+4*b+3}], v[{d}:{d+3}]")
        return out

    def uop(op, P, b, sc=""):
        if P < 4:
            z = Z1 + 4 * (2 * P + b)
            return f"buffer_{op}_dwordx4 v[{z}:{z+3}], v{vU}, s[{sws}:{sws+3}], s{48 + P // 2} offen offset:{(P % 2) * 2048 + b * 256}{sc}"
        z = Z1 + 32 + 2 * b
        return f"buffer_{op}_dwordx2 v[{z}:{z+1}], v{vU9}, s[{sws}:{sws+3}], s50 offen offset:{b * 256}{sc}"

    for i in range(72):
        a(f"v_mov_b32 v{ACC+i}, 0")
    if mega:
        from mkz import flag_store
        a(f"""
        s_lshl_b32 s51, s31, 7
        s_add_u32 s51, s51, {FL_Z}
        s_lshl_b32 s52, s30, 2
        s_add_u32 s52, s52, s51
        s_lshl_b32 s53, s30, 7
        s_lshl_b32 s54, s31, 2
        s_add_u32 s53, s53, s54
        s_add_u32 s53, s53, {FL_U + 64}
        v_mov_b32 v{TMP+10}, 0
        """)
        if z1reg:
            z1reg[0]()
        a("s_waitcnt vmcnt(0)\ns_barrier")
        flag_store(a, f"{L}_NOSIG", sws, 52, TMP + 8, TMP + 9)
        if G32:
            for i in range(72, 80):
                a(f"v_mov_b32 v{ACC+i}, 0")
        pf.stamp()
        a.ext(dma_t(0) + dma_t(1))
        if z1reg:
            z1reg[1]()
        a(f"""
        s_cmp_lg_u32 s32, 0
        s_cbranch_scc1 {L}Z_OK
        v_lshlrev_b32 v{TMP+8}, 2, v{TMP+1}
        """)
        poll(a, f"{L}Z", TMP + 9, TMP + 8, sws, 51, sleep=6)
        a("s_barrier")
        for st in range(4):
            a.ext(dma_sp(st))
        pf.stamp()
        a(f"s_waitcnt vmcnt(3)\ns_barrier")
    a.ext(reads(0))
    pf.stamp()

    def body(sl, vm, dma, rdnext, extra=None):
        ms = mfmas(sl)
        rd = reads((sl + 1) % 4) if rdnext else []
        dm = ((dma_t(sl // 2) if sl % 2 == 0 else []) + dma_sp(sl)) if dma else []
        extra = list(extra or [])
        a(f"s_waitcnt vmcnt({vm}) lgkmcnt(0)\ns_barrier")
        if G32:
            ms = mfmas32(sl)
            pos = [0, 1, 3, 4, 6, 7, 8] if len(dm) > 3 else [0, 3, 6]
            for q in range(10):
                a(ms[q])
                a.ext(rd[:3]); rd = rd[3:]
                if q in pos and dm:
                    a(dm.pop(0))
                if extra:
                    a(extra.pop(0))
            a.ext(rd); a.ext(dm); a.ext(extra)
            return
        pos = [1 + (5 * i) // 2 for i in range(7)] if len(dm) > 3 else [1, 6, 11]
        a.ext(rd[:4]); rd = rd[4:]
        for q in range(18):
            a(ms[q])
            if q in pos and dm:
                a(dm.pop(0))
            elif rd:
                a(rd.pop(0))
                if q < 6 and rd:
                    a(rd.pop(0))
        a.ext(rd); a.ext(dm); a.ext(extra)

    zl = ([] if (z1reg or os.environ.get("XNOZ")) else [uop("load", P, b, ZS) for P in range(5) for b in range(2)]) + \
         [f"buffer_load_ushort v{TMP+18}, v{TMP+21}, s[{sbsp}:{sbsp+3}], s44 offen",
          f"buffer_load_ushort v{TMP+19}, v{TMP+21}, s[{sbsp}:{sbsp+3}], s44 offen offset:32"]
    a(f"s_mov_b32 s47, {14 if mega and not z1reg else 15}\ns_setprio {loop_prio}")
    a.label(f"{L}_LOOP")
    for sl in range(4):
        body(sl, 10, True, True)
    a(f"""
    s_sub_u32 s47, s47, 1
    s_cmp_lg_u32 s47, 0
    s_cbranch_scc1 {L}_LOOP
    """)
    if mega and not z1reg:
        body(0, 10, True, True, [f"buffer_load_dword v{TMP+11}, v{TMP+10}, s[{sws}:{sws+3}], s53 offen sc1"])
        body(1, 10, True, True)
        body(2, 10, True, True)
        body(3, 10, True, True)
        a(f"""
        v_readfirstlane_b32 s54, v{TMP+11}
        s_cmp_lg_u32 s54, 0
        s_cbranch_scc1 {L}Z1_OK
        """)
        poll(a, f"{L}Z1", TMP + 11, TMP + 10, sws, 53, sleep=6)
    if G32:
        ua = lambda gi: f"v{vL16}, s[{sws}:{sws+3}], s{48 + gi // 4} offen offset:{(gi % 4) * 1024} sc1"
        zl = [f"buffer_load_dwordx4 v[{Z1+4*gi}:{Z1+4*gi+3}], {ua(gi)}" for gi in range(9)]
        body(0, 10, False, True, [f"buffer_load_ushort v{TMP+18}, v{TMP+21}, s[{sbsp}:{sbsp+3}], s44 offen"])
        body(1, 4, False, True)
        body(2, 1, False, True)
        body(3, 1, False, False, zl)
        pf.stamp()
        a(f"s_setprio 3\ns_waitcnt vmcnt(9)\nv_lshlrev_b32 v{TMP+18}, 16, v{TMP+18}")
        for i in range(72):
            a(f"v_add_f32 v{ACC+i}, v{ACC+i}, v{TMP+18}")
        for gi in range(9):
            base, z = ACC + 8 * gi, Z1 + 4 * gi
            a(f"s_waitcnt vmcnt(8)")
            for i in range(4):
                a(f"v_lshlrev_b32 v{TMP+2+2*i}, 16, v{z+i}")
                a(f"v_and_b32 v{TMP+3+2*i}, 0xffff0000, v{z+i}")
            for i in range(8):
                a(f"v_mul_f32 v{base+i}, v{base+i}, v{TMP+2+i}")
            for i in range(4):
                a(f"v_cvt_pk_bf16_f32 v{z+i}, v{base+2*i}, v{base+2*i+1}")
            a(f"buffer_store_dwordx4 v[{z}:{z+3}], {ua(gi)}")
        return
    for sl in range(4):
        body(sl, [10, 3 + len(zl), len(zl), len(zl)][sl], False, sl < 3, zl if sl == 0 else None)
    pf.stamp()
    a(f"""
    s_setprio 3
    s_waitcnt vmcnt(0)
    v_lshlrev_b32 v{TMP+18}, 16, v{TMP+18}
    v_lshlrev_b32 v{TMP+19}, 16, v{TMP+19}
    """)
    for P in range(5):
        for b in range(2):
            if P < 4:
                src = [ACC + 4 * (2 * (2 * P) + b) + i for i in range(4)] + [ACC + 4 * (2 * (2 * P + 1) + b) + i for i in range(4)]
                z = Z1 + 4 * (2 * P + b)
            else:
                src = [ACC + 4 * (16 + b) + i for i in range(4)]
                z = Z1 + 32 + 2 * b
            n = len(src)
            for r in src:
                a(f"v_add_f32 v{r}, v{r}, v{TMP+18+b}")
            for i in range(n // 2):
                a(f"v_lshlrev_b32 v{TMP+2+2*i}, 16, v{z+i}")
                a(f"v_and_b32 v{TMP+3+2*i}, 0xffff0000, v{z+i}")
            for i, r in enumerate(src):
                a(f"v_mul_f32 v{r}, v{r}, v{TMP+2+i}")
            for i in range(n // 2):
                a(f"v_cvt_pk_bf16_f32 v{z+i}, v{src[2*i]}, v{src[2*i+1]}")
            a(uop("store", P, b, " sc1"))
```
